```python
import torch

def _softmax(x, axis=-1):
    return torch.softmax(x, dim=axis)
def _gelu(x):
    return torch.nn.functional.gelu(x, approximate="tanh")
def _silu(x):
    return torch.nn.functional.silu(x)
def _sigmoid(x):
    return torch.sigmoid(x)
def _layernorm(x, axis=-1, eps=1e-5):
    m = x.mean(dim=axis, keepdim=True)
    v = x.var(dim=axis, keepdim=True, unbiased=False)
    return (x - m) / torch.sqrt(v + eps)
def _scatter_add(tgt, idx, src, axis=0):
    return tgt.clone().index_add_(axis, idx, src)
def _segment_sum(src, seg, n):
    out = torch.zeros((n,) + src.shape[1:], dtype=src.dtype)
    return out.index_add_(0, seg, src)
def _pad(x, pw):
    flat = tuple(v for pair in reversed(pw) for v in pair)
    return torch.nn.functional.pad(x, flat)

kernel_name = 'interleave_layers__softmax_full_mha__dense_activation_relu__prompt'

def setup_inputs():

    _w = (lambda a: (lambda t: t.to(torch.bfloat16) if t.is_floating_point() else t)(torch.as_tensor(a)))
    def _A_setup():
        B, S, D = 1, 2048, 1024
        return {
            "x": _w((lambda *s: torch.randn(*s, dtype=torch.bfloat16) * 0.05)(B, S, D)),
            "wqkv": _w((lambda *s: torch.randn(*s, dtype=torch.bfloat16) * 0.05)(D, 3 * D)),
            "wo": _w((lambda *s: torch.randn(*s, dtype=torch.bfloat16) * 0.05)(D, D)),
        }
    _A_in = _A_setup()

    def _B_setup():
        B, S, D, Dff = 1, 2048, 1024, 3584
        return {
            "x": _w((lambda *s: torch.randn(*s, dtype=torch.bfloat16) * 0.05)(B, S, D)),
            "w1": _w((lambda *s: torch.randn(*s, dtype=torch.bfloat16) * 0.05)(D, Dff)),
            "w2": _w((lambda *s: torch.randn(*s, dtype=torch.bfloat16) * 0.05)(Dff, D)),
        }
    _B_in = _B_setup()

    return {
        "A_x": _A_in["x"],
        "A_wqkv": _A_in["wqkv"],
        "A_wo": _A_in["wo"],
        "B_x": _B_in["x"],
        "B_w1": _B_in["w1"],
        "B_w2": _B_in["w2"],
    }

def reference(A_x, A_wqkv, A_wo, B_x, B_w1, B_w2):
    def _A_ref(x, wqkv, wo):
        B, S, D = x.shape
        H = 32; Dh = D // H
        qkv = (lambda x, *d: x.permute(*d))((x @ wqkv).reshape(B, S, 3, H, Dh), 2, 0, 3, 1, 4)
        q, k, v = qkv[0], qkv[1], qkv[2]
        scale = Dh ** -0.5
        scores = torch.einsum("bhqd,bhkd->bhqk", q, k) * scale
        p = _softmax(scores, axis=-1)
        o = torch.einsum("bhqk,bhkd->bhqd", p, v)
        return (lambda x, *d: x.permute(*d))(o, 0, 2, 1, 3).reshape(B, S, D) @ wo

    def _B_ref(x, w1, w2):
        h = torch.einsum("bsd,df->bsf", x, w1)
        zero = torch.zeros_like(h)
        h = torch.maximum(h, zero)
        return torch.einsum("bsf,fd->bsd", h, w2)

    x = A_x
    x = x + _A_ref(_layernorm(x, axis=-1), A_wqkv, A_wo)
    x = x + _B_ref(_layernorm(x, axis=-1), B_w1, B_w2)
    x = x + _A_ref(_layernorm(x, axis=-1), A_wqkv, A_wo)
    x = x + _B_ref(_layernorm(x, axis=-1), B_w1, B_w2)
    return x
```

```python
from dsl import Asm, kd
from gemm import KA, WS_QF, WS_KVF, WS_O, f32bits

LDS_ATTN = 5 * 32768
Q, KF, VF, P, ONES, L, O, CI, SA, SB = 8, 16, 24, 32, 40, 44, 48, 64, 80, 96
VGPR_ATTN = 112
VA, VN = 4, 5

def m32(d, x, y, c): return f'v_mfma_f32_32x32x16_bf16 v[{d}:{d+15}], v[{x}:{x+3}], v[{y}:{y+3}], ' + (f'v[{c}:{c+15}]' if c is not None else '0')
def m16(d, x, y): return f'v_mfma_f32_16x16x32_bf16 v[{d}:{d+3}], v[{x}:{x+3}], v[{y}:{y+3}], v[{d}:{d+3}]'

def attn(a, label):
    n = 'attn'
    a(f'.p2align 8\n.globl {label}\n.type {label},@function\n{label}:')
    a(f's_load_dwordx2 s[4:5], s[0:1], {KA["ws"]}')
    a('s_cmp_ge_u32 s2, 256')
    a(f's_cbranch_scc1 {n}_exit')
    a('v_lshrrev_b32 v1, 6, v0')
    a('v_and_b32 v0, 63, v0')
    a('v_readfirstlane_b32 s3, v1')
    a('v_lshlrev_b32 v2, 4, v0')
    a('s_and_b32 s6, s2, 7')
    a('s_lshr_b32 s7, s2, 3')
    a('s_lshl_b32 s6, s6, 2')
    a('s_lshr_b32 s8, s7, 3')
    a('s_add_u32 s6, s6, s8')
    a('s_and_b32 s7, s7, 7')
    a('s_lshl_b32 s8, s7, 3')
    a('s_add_u32 s8, s8, s3')
    a('s_lshl_b32 s9, s6, 17')
    a('s_lshl_b32 s10, s8, 11')
    a('s_add_u32 s9, s9, s10')
    a(f's_add_u32 s9, s9, {WS_QF}')
    a('s_lshl_b32 s10, s6, 18')
    a(f's_add_u32 s10, s10, {WS_KVF}')
    a('s_lshl_b32 s11, s3, 12')
    a('s_add_u32 s12, s10, s11')
    a('s_mov_b32 s13, s11')
    a(f's_mov_b32 s18, {16 << 20}')
    a('s_mov_b32 s19, 0x20000')
    a('s_waitcnt lgkmcnt(0)')
    a('s_mov_b32 s16, s4')
    a('s_mov_b32 s17, s5')
    def issue_chunk():
        a('s_mov_b32 m0, s13')
        for i in range(4):
            a(f'buffer_load_dwordx4 v2, s[16:19], s12 offen offset:{i*1024} lds')
        a('s_add_u32 s12, s12, 32768')
        a('s_add_u32 s13, s13, 32768')
    a(f'buffer_load_dwordx4 v[{Q}:{Q+3}], v2, s[16:19], s9 offen')
    a(f'buffer_load_dwordx4 v[{Q+4}:{Q+7}], v2, s[16:19], s9 offen offset:1024')
    for c in range(5): issue_chunk()
    a('s_mov_b32 s13, s11')
    a('v_lshrrev_b32 v1, 4, v0')
    a('v_lshrrev_b32 v3, 2, v0')
    a('v_xor_b32 v1, v1, v3')
    a('v_and_b32 v1, 1, v1')
    a('v_cmp_eq_u32 vcc, 0, v1')
    a('v_mov_b32 v3, 0x3f803f80')
    a(f'v_cndmask_b32 v{ONES}, 0, v3, vcc')
    for r in range(1, 4): a(f'v_mov_b32 v{ONES+r}, v{ONES}')
    for r in list(range(L, L + 4)) + list(range(O, O + 16)) + list(range(P + 4, P + 8)) + list(range(VF + 4, VF + 8)):
        a(f'v_mov_b32 v{r}, 0')
    a(f'v_mov_b32 v{VA}, v2')
    a(f'v_add_u32 v{VN}, 32768, v2')
    a('s_mov_b32 s20, 0')
    a('s_mov_b32 s21, 32768')
    a('s_mov_b32 s22, 0x1b')
    a('s_waitcnt vmcnt(16)')
    a('s_barrier')
    a(f'ds_read_b128 v[{KF}:{KF+3}], v{VA}')
    a(f'ds_read_b128 v[{KF+4}:{KF+7}], v{VA} offset:1024')
    a('s_waitcnt lgkmcnt(0)')
    a(m32(SA, KF, Q, None))
    a(m32(SA, KF + 4, Q + 4, SA))
    a(f'ds_read_b128 v[{KF}:{KF+3}], v{VA} offset:4096')
    a(f'ds_read_b128 v[{KF+4}:{KF+7}], v{VA} offset:5120')
    a(f'ds_read_b128 v[{VF}:{VF+3}], v{VA} offset:2048')
    a(f'v_max3_f32 v1, v{SA}, v{SA+1}, v{SA+2}')
    for r in range(3, 15, 2): a(f'v_max3_f32 v1, v1, v{SA+r}, v{SA+r+1}')
    a(f'v_max_f32 v1, v1, v{SA+15}')
    a('v_mov_b32 v3, v1')
    a('v_permlane32_swap_b32 v1, v3')
    a('v_max_f32 v1, v1, v3')
    for r in range(16): a(f'v_sub_f32 v{CI+r}, 0, v1')
    for r in range(16): a(f'v_sub_f32 v{SA+r}, v{SA+r}, v1')
    a('s_waitcnt lgkmcnt(0)')
    a(f'.p2align 6\n{n}_loop:')
    for t in range(8):
        sa, sb = (SA, SB) if t % 2 == 0 else (SB, SA)
        E = lambda i: a(f'v_exp_f32 v{sa+i}, v{sa+i}')
        C = lambda i: a(f'v_cvt_pk_bf16_f32 v{P+i}, v{sa+2*i}, v{sa+2*i+1}')
        def addr(tt, off):
            return (VA, tt * 4096 + off) if tt < 8 else (VN, (tt - 8) * 4096 + off)
        def rd(dst, tt, off):
            r, o = addr(tt, off)
            a(f'ds_read_b128 v[{dst}:{dst+3}], v{r} offset:{o}')
        if t == 6:
            a('s_bitcmp1_b32 s22, s20')
            a(f's_cbranch_scc1 {n}_event')
            a(f'{n}_back:')
        a('s_waitcnt lgkmcnt(1)')
        a(m32(sb, KF, Q, CI))
        E(0); E(1); E(2)
        a(m32(sb, KF + 4, Q + 4, sb))
        rd(KF, t + 2, 0); rd(KF + 4, t + 2, 1024)
        E(3); E(4); E(5)
        a(m32(O, VF + 4, P + 4, O))
        rd(VF + 4, t, 3072)
        E(6); E(7); C(0); C(1)
        a(m16(L, ONES, P + 4))
        C(2); C(3); E(8); E(9)
        a('s_waitcnt lgkmcnt(3)')
        a(m32(O, VF, P, O))
        rd(VF, t + 1, 2048)
        E(10); E(11); E(12)
        a(m16(L, ONES, P))
        E(13); E(14); E(15)
        if t == 7:
            a(f'v_mov_b32 v{VA}, v{VN}')
            a('s_add_u32 s21, s21, 32768')
            a(f's_cmp_eq_u32 s21, {LDS_ATTN}')
            a('s_cselect_b32 s21, 0, s21')
            a('s_add_u32 s20, s20, 1')
            a(f'v_add_u32 v{VN}, s21, v2')
            a('s_cmp_lg_u32 s20, 8')
        C(4); C(5); C(6); C(7)
    a(f's_cbranch_scc1 {n}_loop')
    a('s_waitcnt lgkmcnt(0)')
    a(m32(O, VF + 4, P + 4, O))
    a(m16(L, ONES, P + 4))
    a(f'v_mov_b32 v1, v{L}')
    for r in range(16): a(f'v_fma_f32 v1, v{O+r}, 0, v1')
    a(f's_mov_b32 s23, {f32bits(2.0**100)}')
    a('v_cmp_nlt_f32 vcc, v1, s23'.replace('v_cmp_nlt_f32 vcc, v1, s23', 'v_cmp_ngt_f32 vcc, s23, v1'))
    a(f's_cbranch_vccnz {n}_slow')
    a(f'{n}_fin:')
    a(f'v_rcp_f32 v1, v{L}')
    a('v_and_b32 v3, 31, v0')
    a('v_lshlrev_b32 v3, 11, v3')
    a('v_lshrrev_b32 v6, 5, v0')
    a('v_lshl_add_u32 v3, v6, 4, v3')
    a('s_lshl_b32 s24, s8, 16')
    a('s_lshl_b32 s25, s6, 6')
    a('s_add_u32 s24, s24, s25')
    a(f's_add_u32 s24, s24, {WS_O}')
    for r in range(16): a(f'v_mul_f32 v{O+r}, v{O+r}, v1')
    for r in range(8): a(f'v_cvt_pk_bf16_f32 v{P+r}, v{O+2*r}, v{O+2*r+1}')
    for b in (0, 4):
        a(f'v_permlane32_swap_b32 v{P+b}, v{P+b+2}')
        a(f'v_permlane32_swap_b32 v{P+b+1}, v{P+b+3}')
        a(f'buffer_store_dwordx4 v[{P+b}:{P+b+3}], v3, s[16:19], s24 offen offset:{b*8}')
    a(f'{n}_exit:')
    a('s_endpgm')
    a(f'{n}_event:')
    a('s_cmp_lg_u32 s20, 0')
    a(f's_cbranch_scc1 {n}_ev1')
    a('s_waitcnt vmcnt(12)')
    a('s_barrier')
    a(f's_branch {n}_back')
    a(f'{n}_ev1:')
    a('s_waitcnt vmcnt(0)')
    a('s_barrier')
    a('s_cmp_eq_u32 s20, 4')
    a(f's_cbranch_scc1 {n}_back')
    issue_chunk()
    a('s_cmp_eq_u32 s20, 1')
    a(f's_cbranch_scc1 {n}_back')
    issue_chunk()
    a(f's_branch {n}_back')
    a(f'{n}_slow:')
    M, LS = 6, 7
    a(f'v_mov_b32 v{M}, {f32bits(-3.0e38)}')
    a(f'v_mov_b32 v{LS}, 0')
    for r in range(16): a(f'v_mov_b32 v{O+r}, 0')
    a('s_mov_b32 s20, 0')
    a('s_mov_b32 s12, s10')
    a(f'{n}_sloop:')
    for i, d in enumerate((KF, KF + 4, VF, VF + 4)):
        a(f'buffer_load_dwordx4 v[{d}:{d+3}], v2, s[16:19], s12 offen offset:{i*1024}')
    a('s_add_u32 s12, s12, 4096')
    a('s_waitcnt vmcnt(0)')
    a(m32(SA, KF, Q, None))
    a(m32(SA, KF + 4, Q + 4, SA))
    a(f'v_max3_f32 v1, v{SA}, v{SA+1}, v{SA+2}')
    for r in range(3, 15, 2): a(f'v_max3_f32 v1, v1, v{SA+r}, v{SA+r+1}')
    a(f'v_max3_f32 v1, v1, v{SA+15}, v{M}')
    a('v_mov_b32 v3, v1')
    a('v_permlane32_swap_b32 v1, v3')
    a('v_max_f32 v1, v1, v3')
    a(f'v_sub_f32 v3, v{M}, v1')
    a('v_exp_f32 v3, v3')
    a(f'v_mov_b32 v{M}, v1')
    for r in range(16): a(f'v_sub_f32 v{SA+r}, v{SA+r}, v1')
    for r in range(16): a(f'v_exp_f32 v{SA+r}, v{SA+r}')
    for r in range(16): a(f'v_mul_f32 v{O+r}, v{O+r}, v3')
    a(f'v_mul_f32 v{LS}, v{LS}, v3')
    for r in range(8): a(f'v_cvt_pk_bf16_f32 v{P+r}, v{SA+2*r}, v{SA+2*r+1}')
    for r in range(16): a(f'v_add_f32 v{LS}, v{LS}, v{SA+r}')
    a(m32(O, VF, P, O))
    a(m32(O, VF + 4, P + 4, O))
    a('s_add_u32 s20, s20, 1')
    a('s_cmp_lg_u32 s20, 64')
    a('s_nop 7')
    a(f's_cbranch_scc1 {n}_sloop')
    a(f'v_mov_b32 v3, v{LS}')
    a(f'v_permlane32_swap_b32 v{LS}, v3')
    a(f'v_add_f32 v{L}, v{LS}, v3')
    a('s_nop 7')
    a(f's_branch {n}_fin')
```

```python
import re

REG_RE = re.compile(r'\b([vsa])(\d+)\b|\b([vsa])\[(\d+):(\d+)\]|\b(vcc|exec|m0|scc)\b')

def regs_of(op):
    out = []
    for m in REG_RE.finditer(op):
        if m.group(1):
            out.append((m.group(1), int(m.group(2))))
        elif m.group(3):
            out += [(m.group(3), i) for i in range(int(m.group(4)), int(m.group(5)) + 1)]
        else:
            out.append((m.group(6), 0))
    return out

def split_ops(s):
    ops, depth, cur = [], 0, ''
    for ch in s:
        if ch == '[': depth += 1
        if ch == ']': depth -= 1
        if ch == ',' and depth == 0:
            ops.append(cur.strip()); cur = ''
        else:
            cur += ch
    if cur.strip(): ops.append(cur.strip())
    return ops

TRANS = ('v_exp_', 'v_log_', 'v_rcp_', 'v_rsq_', 'v_sqrt_', 'v_sin_', 'v_cos_')

class Ins:
    __slots__ = ('text', 'op', 'kind', 'rd', 'wr', 'srcc', 'ab', 'passes', 'states', 'target', 'wide_store_data')
    def __init__(self, text):
        self.text = text
        t = text.split(';')[0].strip()
        parts = t.split(None, 1)
        self.op = op = parts[0]
        rest = parts[1] if len(parts) > 1 else ''
        ops = split_ops(rest)
        self.rd, self.wr, self.srcc, self.ab = [], [], [], []
        self.passes = 0; self.states = 1; self.target = None; self.wide_store_data = []
        R = lambda i: regs_of(ops[i]) if i < len(ops) else []
        allr = lambda st: [r for o in ops[st:] for r in regs_of(o)]
        if op.startswith('v_mfma') or op.startswith('v_smfmac'):
            self.kind = 'mfma'
            self.wr = R(0); self.ab = R(1) + R(2)
            if op.startswith('v_smfmac'):
                self.srcc = R(0); self.ab += R(3)
            else:
                self.srcc = R(3)
            self.rd = self.ab + self.srcc
            self.passes = 8 if '32x32' in op else 4
        elif op.startswith('v_'):
            self.kind = 'trans' if op.startswith(TRANS) else 'valu'
            if op.startswith('v_cmp'):
                self.wr = R(0); self.rd = allr(1)
                if op.startswith('v_cmpx'): self.wr = self.wr + [('exec', 0)]
            elif 'permlane' in op and 'swap' in op:
                self.kind = 'permlane'
                self.wr = R(0) + R(1); self.rd = R(0) + R(1)
            elif op.startswith(('v_readfirstlane', 'v_readlane')):
                self.kind = 'readlane'
                self.wr = R(0); self.rd = allr(1)
            elif op.startswith(('v_add_co', 'v_sub_co', 'v_addc_co', 'v_subb_co')):
                self.wr = R(0) + R(1); self.rd = allr(2)
            else:
                self.wr = R(0); self.rd = allr(1)
                if op.startswith(('v_fmac', 'v_dot2c', 'v_pk_fmac')) or 'UNUSED_PRESERVE' in t:
                    self.rd = self.rd + R(0)
                if op.startswith('v_cndmask') and len(ops) == 3: self.rd = self.rd + [('vcc', 0)]
            if 'dpp' in op or 'row_' in t or 'quad_perm' in t:
                self.kind = 'dpp'
        elif op.startswith(('buffer_', 'global_', 'flat_')):
            self.kind = 'vmem'
            lds = re.search(r'\blds\b', t) is not None
            if 'store' in op or 'atomic' in op:
                self.rd = allr(0)
                if 'x4' in op or 'x3' in op:
                    self.wide_store_data = R(0) if op.startswith('buffer_') else R(1)
            elif lds:
                self.rd = allr(0) + [('m0', 0)]
                self.kind = 'vmem_lds'
            else:
                self.wr = R(0); self.rd = allr(1)
        elif op.startswith('ds_'):
            self.kind = 'ds'
            if op.startswith(('ds_read', 'ds_bpermute', 'ds_permute', 'ds_swizzle')):
                self.wr = R(0); self.rd = allr(1)
            else:
                self.rd = allr(0)
        elif op.startswith('s_'):
            self.kind = 'salu'
            if op == 's_nop':
                self.states = int(ops[0], 0) + 1
            elif op.startswith(('s_branch', 's_cbranch')):
                self.kind = 'branch'; self.target = ops[0]
            elif op.startswith(('s_waitcnt', 's_barrier', 's_endpgm', 's_setprio', 's_sleep')):
                pass
            elif op.startswith('s_cmp') or op.startswith('s_bitcmp'):
                self.rd = allr(0)
            else:
                self.wr = R(0); self.rd = allr(1)
                if 'saveexec' in op: self.wr = self.wr + [('exec', 0)]
        else:
            raise ValueError('unknown instruction: ' + text)

VALU_KINDS = ('valu', 'trans', 'permlane', 'readlane', 'dpp')

def need(p, c):
    n = 0
    pw, cr, cw = set(p.wr), set(c.rd), set(c.wr)
    pv = p.kind in VALU_KINDS
    cv = c.kind in VALU_KINDS
    vw = {r for r in pw if r[0] in 'va'}
    sw = {r for r in pw if r[0] in ('s', 'vcc')}
    if pv:
        if c.kind == 'mfma' and vw & cr: n = max(n, 2)
        if c.kind == 'permlane' and vw & cr: n = max(n, 2)
        if c.kind == 'dpp' and vw & cr: n = max(n, 2)
        if c.kind == 'readlane' and vw & cr: n = max(n, 1)
        if p.kind == 'trans' and cv and c.kind != 'trans' and vw & cr: n = max(n, 1)
        if p.kind == 'trans' and c.kind == 'mfma' and vw & cr: n = max(n, 2)
        if sw & cr:
            if c.kind in ('vmem', 'vmem_lds'): n = max(n, 5)
            elif c.kind == 'readlane': n = max(n, 4)
            elif cv: n = max(n, 2)
            elif c.kind in ('salu', 'branch'): n = max(n, 1)
        if ('exec', 0) in pw:
            if c.kind in ('mfma', 'readlane', 'permlane'): n = max(n, 4)
            if c.kind == 'dpp': n = max(n, 5)
        if 'sdwa' in p.op and cv and vw & (cr | cw): n = max(n, 1)
        if p.op.startswith('v_dot') and vw & (cr | cw):
            if not (c.op == p.op): n = max(n, 3)
            else:
                ops = split_ops(c.text.split(';')[0].split(None, 1)[1])
                ab = set(regs_of(ops[1]) + regs_of(ops[2]))
                if vw & ab: n = max(n, 3)
    if p.kind == 'mfma':
        big = {4: 8, 8: 12}[p.passes]
        if c.kind == 'mfma':
            if pw & set(c.ab): n = max(n, big)
            sc = set(c.srcc)
            if pw & sc and not (pw == sc and p.passes == c.passes): n = max(n, {4: 6, 8: 10}[p.passes])
            if pw & cw and not (pw & sc):
                n = max(n, {4: 6, 8: 10}[p.passes]) if pw != cw else n
        elif cv or c.kind in ('vmem', 'vmem_lds', 'ds'):
            if pw & (cr | cw): n = max(n, big)
        if cv and set(p.srcc) & cw: n = max(n, {4: 3, 8: 7}[p.passes])
    if p.kind == 'salu' and ('m0', 0) in pw and c.kind == 'vmem_lds': n = max(n, 1)
    if p.wide_store_data and set(p.wide_store_data) & cw: n = max(n, 2)
    return n

class Asm:
    def __init__(self):
        self.items = []
    def __call__(self, text):
        for line in text.split('\n'):
            line = line.strip()
            if not line: continue
            if line.startswith(('.', ';')) or line.endswith(':'):
                self.items.append(line)
            else:
                self.items.append(Ins(line))
    def label(self, name): self.items.append(name + ':')

    def finalize(self, W=24):
        out = []
        hist = []
        for it in self.items:
            if isinstance(it, str):
                out.append(it); continue
            d = 0; req = 0
            for p in reversed(hist[-W:]):
                n = need(p, it)
                if n - d > req: req = n - d
                d += p.states
            while req > 0:
                k = min(req, 16)
                nop = Ins(f's_nop {k-1}')
                out.append(nop); hist.append(nop); req -= k
            out.append(it); hist.append(it)
            if it.op in ('s_branch', 's_endpgm'): hist = []
        self.items = out
        labels = {}
        for i, it in enumerate(out):
            if isinstance(it, str) and it.endswith(':'): labels[it[:-1]] = i
        for i, it in enumerate(out):
            if isinstance(it, Ins) and it.kind == 'branch' and it.target in labels:
                pre = []
                for q in reversed(out[:i + 1]):
                    if isinstance(q, Ins):
                        if q is not it and q.op in ('s_branch', 's_endpgm'): break
                        pre.append(q)
                        if len(pre) >= W: break
                pre.reverse()
                post = []
                for q in out[labels[it.target]:]:
                    if isinstance(q, Ins):
                        post.append(q)
                        if len(post) >= W or q.op in ('s_branch', 's_endpgm'): break
                for ci, c in enumerate(post):
                    d = sum(x.states for x in post[:ci])
                    for p in reversed(pre):
                        n = need(p, c)
                        if n > d:
                            raise RuntimeError(f'hazard across branch {it.text}: "{p.text}" -> "{c.text}" needs {n}, has {d}')
                        d += p.states
        return self
    def text(self):
        return '\n'.join(it if isinstance(it, str) else '  ' + it.text for it in self.items) + '\n'

def kd(name, vgpr, sgpr=102, accum=None):
    accum = accum or ((vgpr + 3) // 4 * 4)
    return f'''.section .rodata,"a"
.p2align 6
.amdhsa_kernel {name}
  .amdhsa_next_free_vgpr {vgpr}
  .amdhsa_next_free_sgpr {sgpr}
  .amdhsa_accum_offset {accum}
  .amdhsa_group_segment_fixed_size 0
  .amdhsa_kernarg_size 72
  .amdhsa_user_sgpr_count 2
  .amdhsa_user_sgpr_kernarg_segment_ptr 1
  .amdhsa_system_sgpr_workgroup_id_x 1
.end_amdhsa_kernel
.text
'''
```

```python
from dsl import Asm, kd

WS_QF  = 0
WS_KVF = 4 << 20
WS_O   = 12 << 20
WS_X1  = 16 << 20
WS_X2  = 20 << 20
WS_X3  = 24 << 20
WS_H   = 32 << 20
KA = dict(x=0, wqkv=8, wo=16, bx=24, w1=32, w2=40, out=48, dbg=56, ws=64)
QSCALE = (32 ** -0.5) * 1.4426950408889634

import struct
def f32bits(x): return struct.unpack('<I', struct.pack('<f', x))[0]

class Cfg:
    def __init__(s, name, kind, K, ldx, ldw, npanel, half, KT, NS, MB, NB, stats):
        s.name, s.kind, s.K, s.ldx, s.ldw = name, kind, K, ldx, ldw
        s.npanel, s.half, s.KT, s.NS, s.MB, s.NB, s.stats = npanel, half, KT, NS, MB, NB, stats
        s.tile_bytes = 16384 + npanel * 8192 + (4096 if half else 0)
        s.stage_bytes = s.tile_bytes * KT
        s.T = K // (64 * KT)
        s.nload = KT * (4 + 2 * npanel + (1 if half else 0))
        s.stat_off = s.stage_bytes * NS
        s.lds = s.stat_off + (2048 + 1024 if stats else 0)
        s.NT = {'qkv': 6, 'w1': 7, 'res': 2}[kind]

CFG_QKV = Cfg('qkv', 'qkv', 1024, 2048, 6144, 3, False, 1, 3, 16, 2, True)
CFG_W1  = Cfg('w1',  'w1',  1024, 2048, 7168, 3, True,  1, 3, 4, 8, True)
CFG_WO  = Cfg('wo',  'res', 1024, 2048, 2048, 1, False, 2, 3, 4, 8, False)
CFG_W2  = Cfg('w2',  'res', 3584, 7168, 2048, 1, False, 2, 3, 4, 8, False)

def log2(x):
    assert x & (x - 1) == 0
    return x.bit_length() - 1

def entry(a, label, body, X, W, OUT, RES=None):
    a(f'.p2align 8\n.globl {label}\n.type {label},@function\n{label}:')
    a(f's_load_dwordx2 s[4:5], s[0:1], {KA[X[0]]}')
    a(f's_load_dwordx2 s[6:7], s[0:1], {KA[W[0]]}')
    a(f's_load_dwordx2 s[8:9], s[0:1], {KA[OUT[0]]}')
    RES = RES or X
    a(f's_load_dwordx2 s[10:11], s[0:1], {KA[RES[0]]}')
    a(f's_mov_b32 s12, {X[1]}')
    a(f's_mov_b32 s13, {OUT[1]}')
    a(f's_mov_b32 s14, {RES[1]}')
    a(f's_branch {body}')

def body(a, c, dbg=None):
    n = c.name
    T, NS, KT = c.T, c.NS, c.KT
    a(f'.p2align 6\n{n}_body:')
    a('s_cmp_ge_u32 s2, 256')
    a(f's_cbranch_scc1 {n}_exit')
    a('v_lshrrev_b32 v1, 6, v0')
    a('v_and_b32 v0, 63, v0')
    a('v_readfirstlane_b32 s3, v1')
    a('s_and_b32 s24, s2, 7')
    a('s_lshr_b32 s25, s2, 3')
    XN = 16 // c.NB
    a(f's_lshr_b32 s26, s24, {log2(XN)}')
    a(f's_and_b32 s27, s24, {XN-1}')
    a(f's_lshl_b32 s26, s26, {log2(c.MB)}')
    a(f's_lshl_b32 s27, s27, {log2(c.NB)}')
    a(f's_and_b32 s28, s25, {c.MB-1}')
    a(f's_lshr_b32 s29, s25, {log2(c.MB)}')
    a('s_add_u32 s26, s26, s28')
    a('s_add_u32 s27, s27, s29')
    if c.kind == 'w1':
        a('s_mul_i32 s30, s27, 448')
        a('s_and_b32 s28, s27, 1')
        a('s_lshl_b32 s29, s28, 6')
        a('s_xor_b32 s28, s28, 1')
        a('s_mul_i32 s28, s28, 384')
        a('s_add_u32 s31, s30, s28')
        a('s_add_u32 s30, s30, s29')
    else:
        a('s_lshl_b32 s30, s27, 7')
    a('s_cmp_ge_u32 s3, 4')
    a(f's_cbranch_scc1 {n}_cons')
    loader(a, c)
    a(f'{n}_exit:')
    a('s_endpgm')
    a(f'.p2align 6\n{n}_cons:')
    consumer(a, c)
    a('s_endpgm')

def loader(a, c):
    n = c.name; T, NS, KT = c.T, c.NS, c.KT
    pstride = 2048 if c.kind == 'qkv' else 128
    a('v_lshrrev_b32 v1, 3, v0')
    a('v_and_b32 v2, 7, v0')
    a('v_lshrrev_b32 v3, 4, v0')
    a('v_xor_b32 v4, v2, v3')
    a('v_xor_b32 v5, 4, v4')
    a('s_lshl_b32 s32, s3, 5')
    a('v_add_u32 v6, s32, v1')
    a(f's_mov_b32 s33, {c.ldx}')
    a('v_mul_lo_u32 v6, s33, v6')
    a('v_lshl_add_u32 v8, v4, 4, v6')
    a('v_lshl_add_u32 v9, v5, 4, v6')
    a(f'v_add_u32 v9, {8*c.ldx}, v9')
    a(f'v_add_u32 v10, {16*c.ldx}, v8')
    a(f'v_add_u32 v11, {16*c.ldx}, v9')
    a('v_and_b32 v4, 1, v3')
    a('v_lshlrev_b32 v4, 1, v4')
    a('v_xor_b32 v4, v2, v4')
    a('v_xor_b32 v5, 4, v4')
    a('s_lshl_b32 s32, s3, 4')
    a('v_add_u32 v6, s32, v1')
    a(f's_mov_b32 s33, {c.ldw}')
    a('v_mul_lo_u32 v6, s33, v6')
    a('v_lshl_add_u32 v12, v4, 4, v6')
    a('v_lshl_add_u32 v13, v5, 4, v6')
    a(f'v_add_u32 v13, {8*c.ldw}, v13')
    if c.half:
        a('v_lshrrev_b32 v4, 2, v0')
        a('v_add_u32 v6, s32, v4')
        a('v_mul_lo_u32 v6, s33, v6')
        a('v_lshrrev_b32 v4, 5, v0')
        a('v_lshlrev_b32 v4, 1, v4')
        a('v_and_b32 v5, 3, v0')
        a('v_xor_b32 v4, v4, v5')
        a('v_lshl_add_u32 v14, v4, 4, v6')
    a('s_lshl_b32 s34, s3, 12')
    a('s_lshl_b32 s35, s3, 11')
    a('s_add_u32 s35, s35, 16384')
    if c.half:
        a('s_lshl_b32 s36, s3, 10')
        a(f's_add_u32 s36, s36, {16384 + c.npanel*8192}')
    a(f's_mul_i32 s37, s26, {128*c.ldx}')
    a('s_add_u32 s37, s37, s12')
    a('s_mov_b32 s40, 0')
    a('s_mov_b32 s41, s30')
    if c.half: a('s_mov_b32 s42, s31')
    a('s_mov_b32 s43, 0')
    a(f's_mov_b32 s18, {128*c.ldx}')
    a('s_mov_b32 s19, 0x20000')
    a(f's_mov_b32 s22, {c.K*c.ldw}')
    a('s_mov_b32 s23, 0x20000')
    a('s_waitcnt lgkmcnt(0)')
    a('s_add_u32 s16, s4, s37')
    a('s_addc_u32 s17, s5, 0')
    a('s_mov_b32 s20, s6')
    a('s_mov_b32 s21, s7')

    def issue():
        for kt in range(KT):
            tb = kt * c.tile_bytes
            a('s_add_u32 s44, s43, s34')
            a('s_add_u32 s45, s43, s35')
            if c.half: a('s_add_u32 s46, s43, s36')
            seq = []
            for i in range(4): seq.append(('x', i))
            for p in range(c.npanel):
                for i in range(2): seq.append(('w', p, i))
            if c.half: seq.append(('h',))
            for it in seq:
                if it[0] == 'x':
                    a(f's_add_u32 m0, s44, {tb + it[1]*1024}')
                    a(f'buffer_load_dwordx4 v{8+it[1]}, s[16:19], s40 offen lds')
                elif it[0] == 'w':
                    p, i = it[1], it[2]
                    a(f's_add_u32 m0, s45, {tb + p*8192 + i*1024}')
                    if p > 0 and i == 0: a(f's_add_u32 s47, s41, {p*pstride}')
                    a(f'buffer_load_dwordx4 v{12+i}, s[20:23], {"s41" if p == 0 else "s47"} offen lds')
                else:
                    a(f's_add_u32 m0, s46, {tb}')
                    a(f'buffer_load_dwordx4 v14, s[20:23], s42 offen lds')
            a('s_add_u32 s40, s40, 128')
            a(f's_add_u32 s41, s41, {64*c.ldw}')
            if c.half: a(f's_add_u32 s42, s42, {64*c.ldw}')
        a(f's_add_u32 s43, s43, {c.stage_bytes}')
        a(f's_cmp_eq_u32 s43, {c.stage_bytes*NS}')
        a('s_cselect_b32 s43, 0, s43')

    for st in range(NS): issue()

    if c.stats:
        a('v_lshlrev_b32 v16, 4, v0')
        a('v_add_u32 v16, s34, v16')
        a('v_lshrrev_b32 v1, 4, v0')
        a('v_lshlrev_b32 v1, 3, v1')
        a('v_bfe_u32 v2, v0, 2, 2')
        a('v_add_u32 v1, v1, v2')
        a('v_bfe_u32 v3, v0, 3, 2')
        a('v_xor_b32 v3, s3, v3')
        a('v_and_b32 v4, 3, v0')
        a('v_lshlrev_b32 v4, 3, v4')
        a('v_lshl_add_u32 v17, v1, 7, v4')
        a('v_lshl_add_u32 v17, v3, 5, v17')
        a('v_add_u32 v17, 16384, v17')
        if c.half:
            a('v_bfe_u32 v3, v0, 4, 1')
            a('s_and_b32 s32, s3, 1')
            a('v_xor_b32 v3, s32, v3')
            a('v_lshl_add_u32 v18, v1, 6, v4')
            a('v_lshl_add_u32 v18, v3, 5, v18')
            a('s_lshr_b32 s32, s3, 1')
            a('s_lshl_b32 s32, s32, 11')
            a(f's_add_u32 s32, s32, {16384 + c.npanel*8192}')
            a('v_add_u32 v18, s32, v18')
        for r in range(20, 32): a(f'v_mov_b32 v{r}, 0')
        a('v_mov_b32 v19, 0x3f803f80')
        a('s_mov_b32 s48, 0')
        a(f's_mov_b32 s51, {-(NS-1)*c.stage_bytes & 0xffffffff}')

    def stats():
        if not c.stats: return
        assert KT == 1
        for i in range(4): a(f'ds_read_b128 v[{32+4*i}:{35+4*i}], v16 offset:{i*1024}')
        k = 0
        for p in range(c.npanel):
            for su in range(4):
                a(f'ds_read_b64_tr_b16 v[{48+2*k}:{49+2*k}], v17 offset:{p*8192 + (su>>1)*4096 + (su&1)*512}'); k += 1
                if k == 8:
                    a('s_waitcnt lgkmcnt(8)')
                    for i in range(4):
                        for r in range(4):
                            a(f'v_dot2c_f32_bf16 v{20+i}, v{32+4*i+r}, v19')
                            a(f'v_dot2c_f32_bf16 v{24+i}, v{32+4*i+r}, v{32+4*i+r}')
        if c.half:
            for u in range(2):
                a(f'ds_read_b64_tr_b16 v[{48+2*k}:{49+2*k}], v18 offset:{u*256}'); k += 1
        a(f's_add_u32 s48, s48, {c.stage_bytes}')
        a(f's_cmp_eq_u32 s48, {c.stage_bytes*NS}')
        a(f's_cselect_b32 s49, s51, {c.stage_bytes}')
        a('s_cselect_b32 s48, 0, s48')
        a('s_waitcnt lgkmcnt(0)')
        a('v_add_u32 v16, s49, v16')
        a('v_add_u32 v17, s49, v17')
        if c.half: a('v_add_u32 v18, s49, v18')
        for j in range(8):
            for p in range(c.npanel):
                a(f'v_dot2c_f32_bf16 v{28+p}, v{48+8*p+j}, v19')
            if c.half and j < 4:
                a(f'v_dot2c_f32_bf16 v31, v{48+8*c.npanel+j}, v19')

    nl = c.nload
    a(f's_waitcnt vmcnt({(NS-1)*nl})')
    a('s_barrier')
    stats()
    a(f's_waitcnt vmcnt({(NS-2)*nl})')
    a('s_barrier')
    a(f's_mov_b32 s50, {T-NS}')
    a(f'{n}_lloop:')
    issue()
    stats()
    a(f's_waitcnt vmcnt({(NS-2)*nl})')
    a('s_barrier')
    a('s_sub_u32 s50, s50, 1')
    a('s_cmp_lg_u32 s50, 0')
    a(f's_cbranch_scc1 {n}_lloop')
    for t in range(T-NS+1, T-1):
        stats()
        a(f's_waitcnt vmcnt({(T-2-t)*nl})')
        a('s_barrier')
    stats()
    if c.stats:
        for mod in ('quad_perm:[1,0,3,2]', 'quad_perm:[2,3,0,1]', 'row_half_mirror'):
            for r in range(20, 28):
                a(f'v_add_f32_dpp v{r}, v{r}, v{r} {mod} row_mask:0xf bank_mask:0xf')
        a('v_lshrrev_b32 v1, 3, v0')
        a('s_lshl_b32 s32, s3, 5')
        a('v_add_u32 v1, s32, v1')
        a('v_lshlrev_b32 v1, 2, v1')
        a(f'v_add_u32 v1, {c.stat_off}, v1')
        a(f's_mov_b32 s32, {f32bits(1.0/1024)}')
        a(f's_mov_b32 s33, {f32bits(1e-5)}')
        for i in range(4):
            a(f'v_mul_f32 v{20+i}, s32, v{20+i}')
            a(f'v_mul_f32 v{24+i}, s32, v{24+i}')
        for i in range(4):
            a(f'v_fma_f32 v{24+i}, -v{20+i}, v{20+i}, v{24+i}')
        for i in range(4):
            a(f'v_max_f32 v{24+i}, 0, v{24+i}')
            a(f'v_add_f32 v{24+i}, s33, v{24+i}')
        for i in range(4):
            a(f'v_rsq_f32 v{24+i}, v{24+i}')
        for i in range(4):
            a(f'v_sub_f32 v{20+i}, 0, v{20+i}')
        for i in range(4):
            a(f'ds_write_b32 v1, v{20+i} offset:{i*32}')
            a(f'ds_write_b32 v1, v{24+i} offset:{512 + i*32}')
        a('v_permlane32_swap_b32 v28, v29')
        a('v_permlane32_swap_b32 v30, v31')
        a('v_add_f32 v28, v28, v29')
        a('v_add_f32 v30, v30, v31')
        a('v_permlane16_swap_b32 v28, v30')
        a('v_add_f32 v28, v28, v30')
        a('v_bfe_u32 v1, v0, 4, 1')
        a('v_bfe_u32 v2, v0, 5, 1')
        a('v_lshl_add_u32 v1, v1, 1, v2')
        a('v_and_b32 v2, 15, v0')
        a('v_lshl_add_u32 v1, v1, 6, v2')
        a('s_lshl_b32 s32, s3, 4')
        a('v_add_u32 v1, s32, v1')
        a('v_lshlrev_b32 v1, 2, v1')
        a(f'v_add_u32 v1, {c.stat_off + 1024}, v1')
        a('ds_write_b32 v1, v28')
        a('s_waitcnt lgkmcnt(0)')
    a('s_barrier')

def mfma(d, x, y): return f'v_mfma_f32_16x16x32_bf16 v[{d}:{d+3}], v[{x}:{x+3}], v[{y}:{y+3}], v[{d}:{d+3}]'

def consumer(a, c):
    n = c.name; T, NS, KT, NT = c.T, c.NS, c.KT, c.NT
    a('s_setprio 2')
    a('s_sub_u32 s3, s3, 4')
    a('s_lshr_b32 s32, s3, 1')
    a('s_and_b32 s33, s3, 1')
    units = [[(0, 0)], [(0, 1)]] if KT == 1 else [[(0, 0), (0, 1)], [(1, 0), (1, 1)]]
    nsub = len(units[0])
    fr_per_unit = nsub * (4 + NT)
    VXA = 4
    VWA = 6
    nwa = 7 if c.kind == 'w1' else 2
    FR = 16
    ACC = FR + 2 * fr_per_unit * 4
    c.vgpr = ACC + 4 * NT * 4
    acc = lambda m, t: ACC + (m * NT + t) * 4
    xf = lambda st, si, m: FR + st * fr_per_unit * 4 + (si * (4 + NT) + m) * 4
    wf = lambda st, si, t: FR + st * fr_per_unit * 4 + (si * (4 + NT) + 4 + t) * 4
    a('v_and_b32 v1, 15, v0')
    a('v_lshrrev_b32 v2, 4, v0')
    a('v_lshrrev_b32 v3, 1, v1')
    a('v_xor_b32 v3, v3, v2')
    a('v_lshlrev_b32 v3, 4, v3')
    a(f'v_lshl_add_u32 v{VXA}, v1, 7, v3')
    a('s_lshl_b32 s34, s32, 13')
    a(f'v_add_u32 v{VXA}, s34, v{VXA}')
    a(f'v_xor_b32 v{VXA+1}, 64, v{VXA}')
    a('v_bfe_u32 v3, v0, 2, 2')
    a('v_lshl_add_u32 v3, v2, 3, v3')
    a('v_and_b32 v13, 3, v0')
    a('v_lshlrev_b32 v13, 3, v13')
    a('v_lshl_add_u32 v14, v3, 7, v13')
    a('v_add_u32 v14, 16384, v14')
    a('v_bfe_u32 v15, v0, 3, 2')
    a('s_lshl_b32 s34, s33, 1')
    if c.kind != 'w1':
        a('v_xor_b32 v15, s34, v15')
        a(f'v_lshl_add_u32 v{VWA}, v15, 5, v14')
        a(f'v_xor_b32 v{VWA+1}, 32, v{VWA}')
        wsrc = lambda t: (VWA + (t & 1), (t >> 1) * 8192, 4096, 512)
    else:
        a(f'v_lshl_add_u32 v{VWA}, v15, 5, v14')
        a('s_lshl_b32 s35, s33, 14')
        a(f'v_add_u32 v{VWA}, s35, v{VWA}')
        for e in range(1, 4): a(f'v_xor_b32 v{VWA+e}, {32*e}, v{VWA}')
        a('v_xor_b32 v15, s34, v15')
        a(f'v_lshl_add_u32 v{VWA+4}, v15, 5, v14')
        a(f'v_add_u32 v{VWA+4}, 8192, v{VWA+4}')
        a(f'v_xor_b32 v{VWA+5}, 32, v{VWA+4}')
        a('v_and_b32 v15, 1, v2')
        a('v_xor_b32 v15, s33, v15')
        a(f'v_lshl_add_u32 v{VWA+6}, v3, 6, v13')
        a(f'v_lshl_add_u32 v{VWA+6}, v15, 5, v{VWA+6}')
        a(f'v_add_u32 v{VWA+6}, {16384 + 3*8192}, v{VWA+6}')
        wsrc = lambda t: (VWA + t, 0, 4096, 512) if t < 6 else (VWA + 6, 0, 2048, 256)
    a('s_waitcnt lgkmcnt(0)')
    a('s_add_u32 s16, s8, s13')
    a('s_addc_u32 s17, s9, 0')
    osz = {'qkv': 12 << 20, 'w1': 2048 * 7168, 'res': 2048 * 2048}[c.kind]
    a(f's_mov_b32 s18, {osz}')
    a('s_mov_b32 s19, 0x20000')
    if c.kind == 'res':
        a('s_add_u32 s20, s10, s14')
        a('s_addc_u32 s21, s11, 0')
        a(f's_mov_b32 s22, {2048*2048}')
        a('s_mov_b32 s23, 0x20000')
        a('v_lshlrev_b32 v3, 3, v2')
        a('v_lshl_add_u32 v3, v1, 11, v3')
        a('s_lshl_b32 s36, s26, 18')
        a('s_lshl_b32 s37, s32, 17')
        a('s_add_u32 s36, s36, s37')
        a('s_add_u32 s36, s36, s30')
        a('s_lshl_b32 s37, s33, 6')
        a('s_add_u32 s36, s36, s37')
        for m in range(4):
            if m: a(f's_add_u32 s37, s36, {m*32768}')
            for e in range(2):
                r = FR + (m * 2 + e) * 2
                a(f'buffer_load_dwordx2 v[{r}:{r+1}], v3, s[20:23], {"s37" if m else "s36"} offen offset:{e*32}')
        for m in range(4):
            for e in range(2):
                r = FR + (m * 2 + e) * 2
                a(f's_waitcnt vmcnt({7 - (m*2+e)})')
                d = acc(m, e)
                a(f'v_lshlrev_b32 v{d}, 16, v{r}')
                a(f'v_and_b32 v{d+1}, 0xffff0000, v{r}')
                a(f'v_lshlrev_b32 v{d+2}, 16, v{r+1}')
                a(f'v_and_b32 v{d+3}, 0xffff0000, v{r+1}')
    else:
        for r in range(ACC, ACC + 16 * NT): a(f'v_mov_b32 v{r}, 0')

    def reads(st, unit):
        out = []
        for si, (kt, s) in enumerate(unit):
            tb = kt * c.tile_bytes
            xs = [f'ds_read_b128 v[{xf(st,si,m)}:{xf(st,si,m)+3}], v{VXA+s} offset:{tb + m*2048}' for m in range(4)]
            ws = []
            for t in range(NT):
                reg, off, ss, us = wsrc(t)
                for u in range(2):
                    d = wf(st, si, t) + 2 * u
                    ws.append(f'ds_read_b64_tr_b16 v[{d}:{d+1}], v{reg} offset:{tb + off + s*ss + u*us}')
            out += xs + ws
        return out
    def mfmas(st, unit):
        out = []
        for si in range(len(unit)):
            for t in range(NT):
                for m in range(4):
                    if c.kind == 'qkv' and t >= 4:
                        out.append(mfma(acc(m, t), xf(st, si, m), wf(st, si, t)))
                    else:
                        out.append(mfma(acc(m, t), wf(st, si, t), xf(st, si, m)))
        return out
    def interleave(ms, rs, tail=(), tail_at=None, per=1):
        rs = list(rs)
        for i, m in enumerate(ms):
            if tail_at is not None and i == tail_at:
                for x in tail: a(x)
            a(m)
            for _ in range(per):
                if rs: a(rs.pop(0))
        assert not rs
    a('s_mov_b32 s40, 0')
    a(f's_mov_b32 s41, {T}')
    a(f's_mov_b32 s43, {-(NS-1)*c.stage_bytes & 0xffffffff}')
    a('s_barrier')
    for r in reads(0, units[0]): a(r)
    a(f'.p2align 6\n{n}_cloop:')
    nm = nsub * 4 * NT
    per = 1 if KT == 1 else 2
    adv = [f'v_add_u32 v{r}, s42, v{r}' for r in [VXA, VXA + 1] + [VWA + i for i in range(nwa)]]
    a(f's_add_u32 s40, s40, {c.stage_bytes}')
    a(f's_cmp_eq_u32 s40, {c.stage_bytes*NS}')
    a(f's_cselect_b32 s42, s43, {c.stage_bytes}')
    a('s_cselect_b32 s40, 0, s40')
    a('s_sub_u32 s41, s41, 1')
    a('s_waitcnt lgkmcnt(0)')
    assert len(reads(1, units[1]) + adv) <= (nm - 1) * per
    interleave(mfmas(0, units[0]), reads(1, units[1]) + adv, tail=['s_waitcnt lgkmcnt(0)', 's_barrier'], tail_at=nm - 1, per=per)
    interleave(mfmas(1, units[1]), reads(0, units[0]), per=per)
    a('s_cmp_lg_u32 s41, 0')
    a(f's_cbranch_scc1 {n}_cloop')
    a('s_waitcnt lgkmcnt(0)')
    S = c.stat_off
    if c.kind == 'res':
        a('v_and_b32 v3, 1, v2')
        a('v_lshlrev_b32 v3, 5, v3')
        a('v_lshrrev_b32 v13, 1, v2')
        a('v_lshl_add_u32 v3, v13, 4, v3')
        a('v_lshl_add_u32 v3, v1, 11, v3')
        for m in range(4):
            d = FR + 4 * m
            for e in range(2):
                s_ = acc(m, e)
                a(f'v_cvt_pk_bf16_f32 v{d+2*e}, v{s_}, v{s_+1}')
                a(f'v_cvt_pk_bf16_f32 v{d+2*e+1}, v{s_+2}, v{s_+3}')
        for m in range(4):
            d = FR + 4 * m
            a(f'v_permlane16_swap_b32 v{d}, v{d+2}')
            a(f'v_permlane16_swap_b32 v{d+1}, v{d+3}')
            if m: a(f's_add_u32 s36, s36, 32768')
            a(f'buffer_store_dwordx4 v[{d}:{d+3}], v3, s[16:19], s36 offen')
        return
    a('s_lshl_b32 s34, s32, 8')
    a('v_lshlrev_b32 v3, 2, v1')
    a('v_add_u32 v3, s34, v3')
    a(f'v_add_u32 v3, {S}, v3')
    for m in range(4):
        a(f'ds_read_b32 v{FR+2*m}, v3 offset:{m*64}')
        a(f'ds_read_b32 v{FR+2*m+1}, v3 offset:{512 + m*64}')
    CS = FR + 8
    a('v_lshlrev_b32 v13, 4, v2')
    a(f'v_add_u32 v13, {S + 1024}, v13')
    def fold(d, cs, st, tmp):
        for h in range(2):
            a(f'v_pk_fma_f32 v[{d+2*h}:{d+2*h+1}], v[{cs+2*h}:{cs+2*h+1}], v[{st}:{st+1}], v[{d+2*h}:{d+2*h+1}] op_sel:[0,0,0] op_sel_hi:[1,0,1]')
        for h in range(2):
            a(f'v_pk_mul_f32 v[{d+2*h}:{d+2*h+1}], v[{d+2*h}:{d+2*h+1}], v[{st}:{st+1}] op_sel:[0,1] op_sel_hi:[1,1]')
        a(f'v_cvt_pk_bf16_f32 v{tmp}, v{d}, v{d+1}')
        a(f'v_cvt_pk_bf16_f32 v{tmp+1}, v{d+2}, v{d+3}')
    if c.kind == 'w1':
        a('s_lshl_b32 s34, s33, 9')
        a('v_add_u32 v14, s34, v13')
        for t in range(4): a(f'ds_read_b128 v[{CS+4*t}:{CS+4*t+3}], v14 offset:{t*64}')
        a('s_lshl_b32 s34, s33, 7')
        a('v_add_u32 v14, s34, v13')
        for t in range(2): a(f'ds_read_b128 v[{CS+16+4*t}:{CS+19+4*t}], v14 offset:{256 + t*64}')
        a('s_lshl_b32 s34, s33, 6')
        a('v_add_u32 v14, s34, v13')
        a(f'ds_read_b128 v[{CS+24}:{CS+27}], v14 offset:768')
        a(f'ds_read_b128 v[{CS+28}:{CS+31}], v14 offset:896')
        a('v_and_b32 v3, 1, v2')
        a('v_lshlrev_b32 v3, 5, v3')
        a('v_lshrrev_b32 v13, 1, v2')
        a('v_lshl_add_u32 v3, v13, 4, v3')
        a('s_movk_i32 s34, 7168')
        a('v_mul_lo_u32 v13, s34, v1')
        a('v_add_u32 v3, v13, v3')
        a('v_lshl_add_u32 v15, v2, 3, v13')
        a(f's_mul_i32 s36, s26, {128*7168}')
        a(f's_mul_i32 s37, s32, {64*7168}')
        a('s_add_u32 s36, s36, s37')
        a('s_lshl_b32 s37, s33, 8')
        a('s_add_u32 s37, s37, s30')
        a('s_add_u32 s37, s37, s36')
        a('s_lshl_b32 s38, s33, 6')
        a('s_add_u32 s38, s38, s30')
        a('s_add_u32 s38, s38, s36')
        a('s_lshl_b32 s39, s33, 5')
        a('s_add_u32 s39, s39, s31')
        a('s_add_u32 s39, s39, s36')
        a('s_waitcnt lgkmcnt(0)')
        for h in range(2):
            a(f'v_pk_add_f32 v[{CS+24+2*h}:{CS+25+2*h}], v[{CS+24+2*h}:{CS+25+2*h}], v[{CS+28+2*h}:{CS+29+2*h}]')
        TM = CS + 32
        k = 0
        for m in range(4):
            st = FR + 2 * m
            for q in range(4):
                d = TM + 4 * (k % 4); k += 1
                tiles = [2 * q, 2 * q + 1] if q < 3 else [6]
                for e, t in enumerate(tiles):
                    fold(acc(m, t), CS + 4 * t, st, d + 2 * e)
                for r in range(2 * len(tiles)):
                    a(f'v_pk_max_i16 v{d+r}, v{d+r}, 0')
                if q < 3:
                    a(f'v_permlane16_swap_b32 v{d}, v{d+2}')
                    a(f'v_permlane16_swap_b32 v{d+1}, v{d+3}')
                    so, io = [('s37', 0), ('s37', 64), ('s38', 128)][q]
                    a(f'buffer_store_dwordx4 v[{d}:{d+3}], v3, s[16:19], {so} offen offset:{io}')
                else:
                    a(f'buffer_store_dwordx2 v[{d}:{d+1}], v15, s[16:19], s39 offen')
            if m < 3:
                for sr in ('s37', 's38', 's39'): a(f's_add_u32 {sr}, {sr}, {16*7168}')
        return
    a('s_lshl_b32 s34, s33, 7')
    a('v_add_u32 v14, s34, v13')
    for t in range(4): a(f'ds_read_b128 v[{CS+4*t}:{CS+4*t+3}], v14 offset:{(t>>1)*256 + (t&1)*64}')
    a('v_lshlrev_b32 v14, 2, v1')
    a('v_add_u32 v14, s34, v14')
    a(f'v_add_u32 v14, {S + 1024 + 512}, v14')
    CV = CS + 16
    a(f'ds_read_b32 v{CV}, v14')
    a(f'ds_read_b32 v{CV+1}, v14 offset:64')
    a('s_lshl_b32 s34, s32, 8')
    a('v_lshlrev_b32 v14, 4, v2')
    a('v_add_u32 v14, s34, v14')
    a(f'v_add_u32 v14, {S}, v14')
    MV = CV + 2 + 2
    for m in range(4):
        a(f'ds_read_b128 v[{MV+8*m}:{MV+8*m+3}], v14 offset:{m*64}')
        a(f'ds_read_b128 v[{MV+8*m+4}:{MV+8*m+7}], v14 offset:{512 + m*64}')
    TM = MV + 32
    assert TM + 16 <= ACC, (TM, ACC)
    a('v_lshlrev_b32 v3, 4, v1')
    a('v_lshl_add_u32 v3, v2, 9, v3')
    a('v_and_b32 v13, 8, v1')
    a('v_lshl_add_u32 v15, v13, 4, v3')
    a('s_lshl_b32 s34, s27, 1')
    a('s_add_u32 s34, s34, s33')
    a('s_lshl_b32 s35, s26, 2')
    a('s_lshl_b32 s36, s32, 1')
    a('s_add_u32 s35, s35, s36')
    a('s_lshl_b32 s36, s34, 17')
    a('s_lshl_b32 s37, s35, 11')
    a('s_add_u32 s36, s36, s37')
    a('s_lshl_b32 s37, s36, 1')
    a(f's_add_u32 s37, s37, {WS_KVF - WS_QF}')
    a('s_add_u32 s38, s37, 4096')
    a(f's_mov_b32 s39, {f32bits(QSCALE)}')
    a('s_waitcnt lgkmcnt(0)')
    k = 0
    for m in range(4):
        d = TM + 4 * (k % 4); k += 1
        for e in range(2): fold(acc(m, 2 + e), CS + 4 * (2 + e), FR + 2 * m, d + 2 * e)
        a(f'buffer_store_dwordx4 v[{d}:{d+3}], v15, s[16:19], {"s37" if m < 2 else "s38"} offen offset:{(m&1)*128}')
    for tp in range(2):
        for e in range(2):
            d = TM + 4 * (k % 4); k += 1
            for mm in range(2):
                m = 2 * tp + mm; s_ = acc(m, 4 + e)
                for h in range(2):
                    a(f'v_pk_fma_f32 v[{s_+2*h}:{s_+2*h+1}], v[{MV+8*m+2*h}:{MV+8*m+2*h+1}], v[{CV}:{CV+1}], v[{s_+2*h}:{s_+2*h+1}] op_sel:[0,{e},0] op_sel_hi:[1,{e},1]')
                for h in range(2):
                    a(f'v_pk_mul_f32 v[{s_+2*h}:{s_+2*h+1}], v[{s_+2*h}:{s_+2*h+1}], v[{MV+8*m+4+2*h}:{MV+8*m+5+2*h}]')
                a(f'v_cvt_pk_bf16_f32 v{d+2*mm}, v{s_}, v{s_+1}')
                a(f'v_cvt_pk_bf16_f32 v{d+2*mm+1}, v{s_+2}, v{s_+3}')
            a(f'buffer_store_dwordx4 v[{d}:{d+3}], v3, s[16:19], {"s37" if tp == 0 else "s38"} offen offset:{2048 + e*256}')
    for m in range(4):
        a(f'v_mul_f32 v{FR+2*m+1}, s39, v{FR+2*m+1}')
    for m in range(4):
        d = TM + 4 * (k % 4); k += 1
        for e in range(2): fold(acc(m, e), CS + 4 * e, FR + 2 * m, d + 2 * e)
        a(f'buffer_store_dwordx4 v[{d}:{d+3}], v3, s[16:19], s36 offen offset:{(m>>1)*2048 + (m&1)*256}')
```

```python
import sys
from dsl import Asm, kd
import gemm, attn
from gemm import *

def build(out_path, launches=None):
    a = Asm()
    a('.amdgcn_target "amdgcn-amd-amdhsa--gfx950"\n.text')
    ents = [
        ('qkv1_kernel', CFG_QKV, ('x', 0), ('wqkv', 0), ('ws', WS_QF), None),
        ('qkv2_kernel', CFG_QKV, ('ws', WS_X2), ('wqkv', 0), ('ws', WS_QF), None),
        ('wo1_kernel', CFG_WO, ('ws', WS_O), ('wo', 0), ('ws', WS_X1), ('x', 0)),
        ('wo2_kernel', CFG_WO, ('ws', WS_O), ('wo', 0), ('ws', WS_X3), ('ws', WS_X2)),
        ('ffa1_kernel', CFG_W1, ('ws', WS_X1), ('w1', 0), ('ws', WS_H), None),
        ('ffa2_kernel', CFG_W1, ('ws', WS_X3), ('w1', 0), ('ws', WS_H), None),
        ('ffb1_kernel', CFG_W2, ('ws', WS_H), ('w2', 0), ('ws', WS_X2), ('ws', WS_X1)),
        ('ffb2_kernel', CFG_W2, ('ws', WS_H), ('w2', 0), ('out', 0), ('ws', WS_X3)),
    ]
    done = set()
    for i, (label, c, X, W, OUT, RES) in enumerate(ents):
        entry(a, label, c.name + '_body', X, W, OUT, RES)
        if i % 2 == 1:
            body(a, c)
    attn.attn(a, 'attn_kernel')
    a.finalize()
    txt = a.text()
    for label, c, *_ in ents:
        txt += kd(label, max(c.vgpr, 80), 64)
    txt += kd('attn_kernel', attn.VGPR_ATTN, 32)
    lds = {l: c.lds for l, c, *_ in ents}; lds['attn_kernel'] = attn.LDS_ATTN
    order = launches or ['qkv1', 'attn', 'wo1', 'ffa1', 'ffb1', 'qkv2', 'attn', 'wo2', 'ffa2', 'ffb2']
    hdr = open('interleave_layers__softmax_full_mha__dense_activation_relu__prompt.s.ref').read().split('; Override launch')[0]
    hdr += '; Generated by gen/build.py (hand-written generator).\n'
    for o in order:
        hdr += f'; @launch kernel={o}_kernel grid=(256,1,1) block=(512,1,1) lds={lds[o + "_kernel"]}\n'
    open(out_path, 'w').write(hdr + txt)

if __name__ == '__main__':
    build(sys.argv[1] if len(sys.argv) > 1 else 'interleave_layers__softmax_full_mha__dense_activation_relu__prompt.s')
```

```python
from dsl import Asm, kd, stamp, prof_begin, prof_end
from gemm import KA, WS_QF, WS_KVF, WS_O, f32bits
NSLOT = 3

LDS_ATTN = NSLOT * 32768
Q, KF, VF, P, ONES, L, O, CI, SA, SB = 8, 16, 24, 32, 40, 44, 48, 64, 80, 96
VGPR_ATTN = 112
VA, VN = 4, 5

def m32(d, x, y, c): return f'v_mfma_f32_32x32x16_bf16 v[{d}:{d+15}], v[{x}:{x+3}], v[{y}:{y+3}], ' + (f'v[{c}:{c+15}]' if c is not None else '0')
def m16(d, x, y): return f'v_mfma_f32_16x16x32_bf16 v[{d}:{d+3}], v[{x}:{x+3}], v[{y}:{y+3}], v[{d}:{d+3}]'

def attn(a, label):
    n = 'attn'
    a(f'.p2align 8\n.globl {label}\n.type {label},@function\n{label}:')
    a(f's_load_dwordx2 s[4:5], s[0:1], {KA["ws"]}')
    a('s_cmp_ge_u32 s2, 256')
    a(f's_cbranch_scc1 {n}_exit')
    prof_begin(a)
    a('v_lshrrev_b32 v1, 6, v0')
    a('v_and_b32 v0, 63, v0')
    a('v_readfirstlane_b32 s3, v1')
    a('v_lshlrev_b32 v2, 4, v0')
    a('s_and_b32 s6, s2, 7')
    a('s_lshr_b32 s7, s2, 3')
    a('s_lshl_b32 s6, s6, 2')
    a('s_lshr_b32 s8, s7, 3')
    a('s_add_u32 s6, s6, s8')
    a('s_and_b32 s7, s7, 7')
    a('s_lshl_b32 s8, s7, 3')
    a('s_add_u32 s8, s8, s3')
    a('s_lshl_b32 s9, s6, 17')
    a('s_lshl_b32 s10, s8, 11')
    a('s_add_u32 s9, s9, s10')
    a(f's_add_u32 s9, s9, {WS_QF}')
    a('s_lshl_b32 s10, s6, 18')
    a(f's_add_u32 s10, s10, {WS_KVF}')
    a('s_lshl_b32 s11, s3, 12')
    a('s_add_u32 s12, s10, s11')
    a('s_mov_b32 s13, s11')
    a(f's_mov_b32 s18, {16 << 20}')
    a('s_mov_b32 s19, 0x20000')
    a('s_waitcnt lgkmcnt(0)')
    a('s_mov_b32 s16, s4')
    a('s_mov_b32 s17, s5')
    def issue_chunk():
        a('s_mov_b32 m0, s13')
        for i in range(4):
            a(f'buffer_load_dwordx4 v2, s[16:19], s12 offen offset:{i*1024} lds')
        a('s_add_u32 s12, s12, 32768')
        a('s_add_u32 s13, s13, 32768')
        a(f's_cmp_ge_u32 s13, {LDS_ATTN}')
        a('s_cselect_b32 s13, s11, s13')
    a(f'buffer_load_dwordx4 v[{Q}:{Q+3}], v2, s[16:19], s9 offen')
    a(f'buffer_load_dwordx4 v[{Q+4}:{Q+7}], v2, s[16:19], s9 offen offset:1024')
    for c in range(2): issue_chunk()
    a('v_lshrrev_b32 v1, 4, v0')
    a('v_lshrrev_b32 v3, 2, v0')
    a('v_xor_b32 v1, v1, v3')
    a('v_and_b32 v1, 1, v1')
    a('v_cmp_eq_u32 vcc, 0, v1')
    a('v_mov_b32 v3, 0x3f803f80')
    a(f'v_cndmask_b32 v{ONES}, 0, v3, vcc')
    for r in range(1, 4): a(f'v_mov_b32 v{ONES+r}, v{ONES}')
    for r in list(range(L, L + 4)) + list(range(O, O + 16)) + list(range(P + 4, P + 8)) + list(range(VF + 4, VF + 8)):
        a(f'v_mov_b32 v{r}, 0')
    a(f'v_mov_b32 v{VA}, v2')
    a(f'v_add_u32 v{VN}, 32768, v2')
    a('s_mov_b32 s20, 0')
    a('s_mov_b32 s21, 32768')
    stamp(a, 3)
    a('s_waitcnt vmcnt(4)')
    a('s_barrier')
    stamp(a, 4)
    a(f'ds_read_b128 v[{KF}:{KF+3}], v{VA}')
    a(f'ds_read_b128 v[{KF+4}:{KF+7}], v{VA} offset:1024')
    a('s_waitcnt lgkmcnt(0)')
    a(m32(SA, KF, Q, None))
    a(m32(SA, KF + 4, Q + 4, SA))
    a(f'ds_read_b128 v[{KF}:{KF+3}], v{VA} offset:4096')
    a(f'ds_read_b128 v[{KF+4}:{KF+7}], v{VA} offset:5120')
    a(f'ds_read_b128 v[{VF}:{VF+3}], v{VA} offset:2048')
    a(f'v_max3_f32 v1, v{SA}, v{SA+1}, v{SA+2}')
    for r in range(3, 15, 2): a(f'v_max3_f32 v1, v1, v{SA+r}, v{SA+r+1}')
    a(f'v_max_f32 v1, v1, v{SA+15}')
    a('v_mov_b32 v3, v1')
    a('v_permlane32_swap_b32 v1, v3')
    a('v_max_f32 v1, v1, v3')
    for r in range(16): a(f'v_sub_f32 v{CI+r}, 0, v1')
    for r in range(16): a(f'v_sub_f32 v{SA+r}, v{SA+r}, v1')
    a('s_waitcnt lgkmcnt(0)')
    stamp(a, 5)
    stamp(a, 8, real=True)
    a(f'.p2align 6\n{n}_loop:')
    for t in range(8):
        sa, sb = (SA, SB) if t % 2 == 0 else (SB, SA)
        E = lambda i: a(f'v_exp_f32 v{sa+i}, v{sa+i}')
        C = lambda i: a(f'v_cvt_pk_bf16_f32 v{P+i}, v{sa+2*i}, v{sa+2*i+1}')
        def addr(tt, off):
            return (VA, tt * 4096 + off) if tt < 8 else (VN, (tt - 8) * 4096 + off)
        def rd(dst, tt, off):
            r, o = addr(tt, off)
            a(f'ds_read_b128 v[{dst}:{dst+3}], v{r} offset:{o}')
        if t == 6:
            a('s_cmp_lt_u32 s20, 7')
            a(f's_cbranch_scc1 {n}_event')
            a(f'{n}_back:')
        a('s_waitcnt lgkmcnt(1)')
        a(m32(sb, KF, Q, CI))
        E(0); E(1); E(2)
        a(m32(sb, KF + 4, Q + 4, sb))
        rd(KF, t + 2, 0); rd(KF + 4, t + 2, 1024)
        E(3); E(4); E(5)
        a(m32(O, VF + 4, P + 4, O))
        rd(VF + 4, t, 3072)
        E(6); E(7); C(0); C(1)
        a(m16(L, ONES, P + 4))
        C(2); C(3); E(8); E(9)
        a('s_waitcnt lgkmcnt(3)')
        a(m32(O, VF, P, O))
        rd(VF, t + 1, 2048)
        E(10); E(11); E(12)
        a(m16(L, ONES, P))
        E(13); E(14); E(15)
        if t == 7:
            a(f'v_mov_b32 v{VA}, v{VN}')
            a('s_add_u32 s21, s21, 32768')
            a(f's_cmp_eq_u32 s21, {LDS_ATTN}')
            a('s_cselect_b32 s21, 0, s21')
            a('s_add_u32 s20, s20, 1')
            a(f'v_add_u32 v{VN}, s21, v2')
            a('s_cmp_lg_u32 s20, 8')
        C(4); C(5); C(6); C(7)
    a(f's_cbranch_scc1 {n}_loop')
    a('s_waitcnt lgkmcnt(0)')
    stamp(a, 6)
    stamp(a, 9, real=True)
    a(m32(O, VF + 4, P + 4, O))
    a(m16(L, ONES, P + 4))
    a(f'v_mov_b32 v1, v{L}')
    for r in range(16): a(f'v_fma_f32 v1, v{O+r}, 0, v1')
    a(f's_mov_b32 s23, {f32bits(2.0**100)}')
    a('v_cmp_nlt_f32 vcc, v1, s23'.replace('v_cmp_nlt_f32 vcc, v1, s23', 'v_cmp_ngt_f32 vcc, s23, v1'))
    a(f's_cbranch_vccnz {n}_slow')
    a(f'{n}_fin:')
    a(f'v_rcp_f32 v1, v{L}')
    a('v_and_b32 v3, 15, v0')
    a('v_lshlrev_b32 v3, 4, v3')
    a('v_lshrrev_b32 v6, 5, v0')
    a('v_lshl_add_u32 v3, v6, 8, v3')
    a('v_bfe_u32 v6, v0, 4, 1')
    a('v_lshl_add_u32 v3, v6, 10, v3')
    a('s_lshr_b32 s24, s8, 2')
    a('s_lshl_b32 s24, s24, 5')
    a('s_add_u32 s24, s24, s6')
    a('s_lshl_b32 s24, s24, 13')
    a('s_and_b32 s25, s8, 3')
    a('s_lshl_b32 s25, s25, 11')
    a('s_add_u32 s24, s24, s25')
    a(f's_add_u32 s24, s24, {WS_O}')
    for r in range(16): a(f'v_mul_f32 v{O+r}, v{O+r}, v1')
    for c in range(2):
        for k, r in enumerate((4*c, 4*c + 2, 8 + 4*c, 8 + 4*c + 2)):
            a(f'v_cvt_pk_bf16_f32 v{P+4*c+k}, v{O+r}, v{O+r+1}')
        a(f'buffer_store_dwordx4 v[{P+4*c}:{P+4*c+3}], v3, s[16:19], s24 offen offset:{c*512}')
    prof_end(a, 's_mov_b32 s96, s3')
    a(f'{n}_exit:')
    a('s_endpgm')
    a(f'{n}_event:')
    a('s_waitcnt vmcnt(0)')
    a('s_barrier')
    a('s_cmp_ge_u32 s20, 6')
    a(f's_cbranch_scc1 {n}_back')
    issue_chunk()
    a(f's_branch {n}_back')
    a(f'{n}_slow:')
    M, LS = 6, 7
    a(f'v_mov_b32 v{M}, {f32bits(-3.0e38)}')
    a(f'v_mov_b32 v{LS}, 0')
    for r in range(16): a(f'v_mov_b32 v{O+r}, 0')
    a('s_mov_b32 s20, 0')
    a('s_mov_b32 s12, s10')
    a(f'{n}_sloop:')
    for i, d in enumerate((KF, KF + 4, VF, VF + 4)):
        a(f'buffer_load_dwordx4 v[{d}:{d+3}], v2, s[16:19], s12 offen offset:{i*1024}')
    a('s_add_u32 s12, s12, 4096')
    a('s_waitcnt vmcnt(0)')
    a(m32(SA, KF, Q, None))
    a(m32(SA, KF + 4, Q + 4, SA))
    a(f'v_max3_f32 v1, v{SA}, v{SA+1}, v{SA+2}')
    for r in range(3, 15, 2): a(f'v_max3_f32 v1, v1, v{SA+r}, v{SA+r+1}')
    a(f'v_max3_f32 v1, v1, v{SA+15}, v{M}')
    a('v_mov_b32 v3, v1')
    a('v_permlane32_swap_b32 v1, v3')
    a('v_max_f32 v1, v1, v3')
    a(f'v_sub_f32 v3, v{M}, v1')
    a('v_exp_f32 v3, v3')
    a(f'v_mov_b32 v{M}, v1')
    for r in range(16): a(f'v_sub_f32 v{SA+r}, v{SA+r}, v1')
    for r in range(16): a(f'v_exp_f32 v{SA+r}, v{SA+r}')
    for r in range(16): a(f'v_mul_f32 v{O+r}, v{O+r}, v3')
    a(f'v_mul_f32 v{LS}, v{LS}, v3')
    for r in range(8): a(f'v_cvt_pk_bf16_f32 v{P+r}, v{SA+2*r}, v{SA+2*r+1}')
    for r in range(16): a(f'v_add_f32 v{LS}, v{LS}, v{SA+r}')
    a(m32(O, VF, P, O))
    a(m32(O, VF + 4, P + 4, O))
    a('s_add_u32 s20, s20, 1')
    a('s_cmp_lg_u32 s20, 64')
    a('s_nop 7')
    a(f's_cbranch_scc1 {n}_sloop')
    a(f'v_mov_b32 v3, v{LS}')
    a(f'v_permlane32_swap_b32 v{LS}, v3')
    a(f'v_add_f32 v{L}, v{LS}, v3')
    a('s_nop 7')
    a(f's_branch {n}_fin')
```

```python
import sys
import dsl
from dsl import Asm, kd
import gemm, attn, pre
from gemm import *

SP = lambda i: WS_SP + i * 262144
def std_entries(Q=CFG_QKV, O=CFG_WO, A=CFG_W1, B=CFG_W2):
    return [
        ('qkv1_kernel', Q, dict(W='wqkv', xoff=WS_X0, ooff=0, spoff=SP(0))),
        ('qkv2_kernel', Q, dict(W='wqkv', xoff=WS_X2, ooff=0, spoff=SP(2))),
        ('wo1_kernel', O, dict(W='wo', xoff=WS_O, ooff=WS_X1, roff=WS_X0, spoff=SP(1))),
        ('wo2_kernel', O, dict(W='wo', xoff=WS_O, ooff=WS_X3, roff=WS_X2, spoff=SP(3))),
        ('ffa1_kernel', A, dict(W='w1', xoff=WS_X1, ooff=WS_H, spoff=SP(1))),
        ('ffa2_kernel', A, dict(W='w1', xoff=WS_X3, ooff=WS_H, spoff=SP(3))),
        ('ffb1_kernel', B, dict(W='w2', xoff=WS_H, ooff=WS_X2, roff=WS_X1, spoff=SP(2))),
        ('ffb2_kernel', B, dict(W='w2', xoff=WS_H, ooff=0, roff=WS_X3, final=True)),
    ]
ORDER = ['pre', 'qkv1', 'attn', 'wo1', 'ffa1', 'ffb1', 'qkv2', 'attn', 'wo2', 'ffa2', 'ffb2']

def build(out_path, launches=None, extra=(), ents=None, attns=()):
    a = Asm()
    a('.amdgcn_target "amdgcn-amd-amdhsa--gfx950"\n.text')
    ents = list(ents or std_entries()) + list(extra)
    pre.pre(a, 'pre_kernel')
    done = []
    for label, c, kw in ents:
        if c not in done: done.append(c)
    for c in done:
        for label, c2, kw in ents:
            if c2 is c: entry(a, label, c.name + '_body', **kw)
        body(a, c)
    attn.attn(a, 'attn_kernel')
    a.finalize()
    txt = a.text()
    sg = lambda x: 102 if dsl.PROF else x
    for label, c, kw in ents: txt += kd(label, c.vgpr, sg(64))
    txt += kd('attn_kernel', attn.VGPR_ATTN, sg(32))
    txt += kd('pre_kernel', pre.VGPR_PRE, sg(32))
    lds = {l: c.lds for l, c, kw in ents}; lds['attn_kernel'] = attn.LDS_ATTN; lds['pre_kernel'] = pre.LDS_PRE
    for nm in anames: lds[nm + '1_kernel'] = attn.LDS_ATTN_TOTAL; lds[nm + '2_kernel'] = attn.LDS_ATTN
    hdr = open('interleave_layers__softmax_full_mha__dense_activation_relu__prompt.s.ref').read().split('; Override launch')[0]
    hdr += '; Generated by gen/build.py (hand-written generator).\n'
    for o in (launches or ORDER):
        g = 232 if o == 'pre' else 256
        hdr += f'; @launch kernel={o}_kernel grid=({g},1,1) block=(512,1,1) lds={lds[o + "_kernel"]}\n'
    open(out_path, 'w').write(hdr + txt)

if __name__ == '__main__':
    if len(sys.argv) > 2 and sys.argv[2] == 'prof': dsl.PROF = True
    build(sys.argv[1] if len(sys.argv) > 1 else 'interleave_layers__softmax_full_mha__dense_activation_relu__prompt.s')
```

```python
import re

REG_RE = re.compile(r'\b([vsa])(\d+)\b|\b([vsa])\[(\d+):(\d+)\]|\b(vcc|exec|m0|scc)\b')

def regs_of(op):
    out = []
    for m in REG_RE.finditer(op):
        if m.group(1):
            out.append((m.group(1), int(m.group(2))))
        elif m.group(3):
            out += [(m.group(3), i) for i in range(int(m.group(4)), int(m.group(5)) + 1)]
        else:
            out.append((m.group(6), 0))
    return out

def split_ops(s):
    ops, depth, cur = [], 0, ''
    for ch in s:
        if ch == '[': depth += 1
        if ch == ']': depth -= 1
        if ch == ',' and depth == 0:
            ops.append(cur.strip()); cur = ''
        else:
            cur += ch
    if cur.strip(): ops.append(cur.strip())
    return ops

TRANS = ('v_exp_', 'v_log_', 'v_rcp_', 'v_rsq_', 'v_sqrt_', 'v_sin_', 'v_cos_')

class Ins:
    __slots__ = ('text', 'op', 'kind', 'rd', 'wr', 'srcc', 'ab', 'passes', 'states', 'target', 'wide_store_data')
    def __init__(self, text):
        self.text = text
        t = text.split(';')[0].strip()
        parts = t.split(None, 1)
        self.op = op = parts[0]
        rest = parts[1] if len(parts) > 1 else ''
        ops = split_ops(rest)
        self.rd, self.wr, self.srcc, self.ab = [], [], [], []
        self.passes = 0; self.states = 1; self.target = None; self.wide_store_data = []
        R = lambda i: regs_of(ops[i]) if i < len(ops) else []
        allr = lambda st: [r for o in ops[st:] for r in regs_of(o)]
        if op.startswith('v_mfma') or op.startswith('v_smfmac'):
            self.kind = 'mfma'
            self.wr = R(0); self.ab = R(1) + R(2)
            if op.startswith('v_smfmac'):
                self.srcc = R(0); self.ab += R(3)
            else:
                self.srcc = R(3)
            self.rd = self.ab + self.srcc
            self.passes = 8 if '32x32' in op else 4
        elif op.startswith('v_'):
            self.kind = 'trans' if op.startswith(TRANS) else 'valu'
            if op.startswith('v_cmp'):
                self.wr = R(0); self.rd = allr(1)
                if op.startswith('v_cmpx'): self.wr = self.wr + [('exec', 0)]
            elif 'permlane' in op and 'swap' in op:
                self.kind = 'permlane'
                self.wr = R(0) + R(1); self.rd = R(0) + R(1)
            elif op.startswith(('v_readfirstlane', 'v_readlane')):
                self.kind = 'readlane'
                self.wr = R(0); self.rd = allr(1)
            elif op.startswith(('v_add_co', 'v_sub_co', 'v_addc_co', 'v_subb_co')):
                self.wr = R(0) + R(1); self.rd = allr(2)
            else:
                self.wr = R(0); self.rd = allr(1)
                if op.startswith(('v_fmac', 'v_dot2c', 'v_pk_fmac')) or 'UNUSED_PRESERVE' in t:
                    self.rd = self.rd + R(0)
                if op.startswith('v_cndmask') and len(ops) == 3: self.rd = self.rd + [('vcc', 0)]
            if 'dpp' in op or 'row_' in t or 'quad_perm' in t:
                self.kind = 'dpp'
        elif op.startswith(('buffer_', 'global_', 'flat_')):
            self.kind = 'vmem'
            lds = re.search(r'\blds\b', t) is not None
            if 'store' in op or 'atomic' in op:
                self.rd = allr(0)
                if 'x4' in op or 'x3' in op:
                    self.wide_store_data = R(0) if op.startswith('buffer_') else R(1)
            elif lds:
                self.rd = allr(0) + [('m0', 0)]
                self.kind = 'vmem_lds'
            else:
                self.wr = R(0); self.rd = allr(1)
        elif op.startswith('ds_'):
            self.kind = 'ds'
            if op.startswith(('ds_read', 'ds_bpermute', 'ds_permute', 'ds_swizzle')):
                self.wr = R(0); self.rd = allr(1)
            else:
                self.rd = allr(0)
        elif op.startswith('s_'):
            self.kind = 'salu'
            if op == 's_nop':
                self.states = int(ops[0], 0) + 1
            elif op.startswith(('s_branch', 's_cbranch')):
                self.kind = 'branch'; self.target = ops[0]
            elif op.startswith(('s_waitcnt', 's_barrier', 's_endpgm', 's_setprio', 's_sleep')):
                pass
            elif op.startswith('s_cmp') or op.startswith('s_bitcmp'):
                self.rd = allr(0)
            else:
                self.wr = R(0); self.rd = allr(1)
                if 'saveexec' in op: self.wr = self.wr + [('exec', 0)]
        else:
            raise ValueError('unknown instruction: ' + text)

VALU_KINDS = ('valu', 'trans', 'permlane', 'readlane', 'dpp')

def need(p, c):
    n = 0
    pw, cr, cw = set(p.wr), set(c.rd), set(c.wr)
    pv = p.kind in VALU_KINDS
    cv = c.kind in VALU_KINDS
    vw = {r for r in pw if r[0] in 'va'}
    sw = {r for r in pw if r[0] in ('s', 'vcc')}
    if pv:
        if c.kind == 'mfma' and vw & cr: n = max(n, 2)
        if c.kind == 'permlane' and vw & cr: n = max(n, 2)
        if c.kind == 'dpp' and vw & cr: n = max(n, 2)
        if c.kind == 'readlane' and vw & cr: n = max(n, 1)
        if p.kind == 'trans' and cv and c.kind != 'trans' and vw & cr: n = max(n, 1)
        if p.kind == 'trans' and c.kind == 'mfma' and vw & cr: n = max(n, 2)
        if sw & cr:
            if c.kind in ('vmem', 'vmem_lds'): n = max(n, 5)
            elif c.kind == 'readlane': n = max(n, 4)
            elif cv: n = max(n, 2)
            elif c.kind in ('salu', 'branch'): n = max(n, 1)
        if ('exec', 0) in pw:
            if c.kind in ('mfma', 'readlane', 'permlane'): n = max(n, 4)
            if c.kind == 'dpp': n = max(n, 5)
        if 'sdwa' in p.op and cv and vw & (cr | cw): n = max(n, 1)
        if p.op.startswith('v_dot') and vw & (cr | cw):
            if not (c.op == p.op): n = max(n, 3)
            else:
                ops = split_ops(c.text.split(';')[0].split(None, 1)[1])
                ab = set(regs_of(ops[1]) + regs_of(ops[2]))
                if vw & ab: n = max(n, 3)
    if p.kind == 'mfma':
        big = {4: 8, 8: 12}[p.passes]
        if c.kind == 'mfma':
            if pw & set(c.ab): n = max(n, big)
            sc = set(c.srcc)
            if pw & sc and not (pw == sc and p.passes == c.passes): n = max(n, {4: 6, 8: 10}[p.passes])
            if pw & cw and not (pw & sc):
                n = max(n, {4: 6, 8: 10}[p.passes]) if pw != cw else n
        elif cv or c.kind in ('vmem', 'vmem_lds', 'ds'):
            if pw & (cr | cw): n = max(n, big)
        if cv and set(p.srcc) & cw: n = max(n, {4: 3, 8: 7}[p.passes])
    if p.kind == 'salu' and ('m0', 0) in pw and c.kind == 'vmem_lds': n = max(n, 1)
    if p.wide_store_data and set(p.wide_store_data) & cw: n = max(n, 2)
    return n

class Asm:
    def __init__(self):
        self.items = []
    def __call__(self, text):
        for line in text.split('\n'):
            line = line.strip()
            if not line: continue
            if line.startswith(('.', ';')) or line.endswith(':'):
                self.items.append(line)
            else:
                self.items.append(Ins(line))
    def label(self, name): self.items.append(name + ':')

    def finalize(self, W=24):
        out = []
        hist = []
        for it in self.items:
            if isinstance(it, str):
                out.append(it); continue
            d = 0; req = 0
            for p in reversed(hist[-W:]):
                n = need(p, it)
                if n - d > req: req = n - d
                d += p.states
            while req > 0:
                k = min(req, 16)
                nop = Ins(f's_nop {k-1}')
                out.append(nop); hist.append(nop); req -= k
            out.append(it); hist.append(it)
            if it.op in ('s_branch', 's_endpgm'): hist = []
        self.items = out
        labels = {}
        for i, it in enumerate(out):
            if isinstance(it, str) and it.endswith(':'): labels[it[:-1]] = i
        for i, it in enumerate(out):
            if isinstance(it, Ins) and it.kind == 'branch' and it.target in labels:
                pre = []
                for q in reversed(out[:i + 1]):
                    if isinstance(q, Ins):
                        if q is not it and q.op in ('s_branch', 's_endpgm'): break
                        pre.append(q)
                        if len(pre) >= W: break
                pre.reverse()
                post = []
                for q in out[labels[it.target]:]:
                    if isinstance(q, Ins):
                        post.append(q)
                        if len(post) >= W or q.op in ('s_branch', 's_endpgm'): break
                for ci, c in enumerate(post):
                    d = sum(x.states for x in post[:ci])
                    for p in reversed(pre):
                        n = need(p, c)
                        if n > d:
                            raise RuntimeError(f'hazard across branch {it.text}: "{p.text}" -> "{c.text}" needs {n}, has {d}')
                        d += p.states
        return self
    def text(self):
        return '\n'.join(it if isinstance(it, str) else '  ' + it.text for it in self.items) + '\n'

def kd(name, vgpr, sgpr=102, accum=None):
    accum = accum or ((vgpr + 3) // 4 * 4)
    return f'''.section .rodata,"a"
.p2align 6
.amdhsa_kernel {name}
  .amdhsa_next_free_vgpr {vgpr}
  .amdhsa_next_free_sgpr {sgpr}
  .amdhsa_accum_offset {accum}
  .amdhsa_group_segment_fixed_size 0
  .amdhsa_kernarg_size 72
  .amdhsa_user_sgpr_count 2
  .amdhsa_user_sgpr_kernarg_segment_ptr 1
  .amdhsa_system_sgpr_workgroup_id_x 1
.end_amdhsa_kernel
.text
'''


PROF = False
PROF_OFF = 64 << 20
def stamp(a, i, real=False):
    if not PROF: return
    a(f"{'s_memrealtime' if real else 's_memtime'} s[{64+2*i}:{65+2*i}]")
    a('s_waitcnt lgkmcnt(0)')
def prof_begin(a):
    if not PROF: return
    a('s_load_dwordx2 s[92:93], s[0:1], 56')
    a('s_load_dwordx2 s[94:95], s[0:1], 64')
    for i in range(64, 92): a(f's_mov_b32 s{i}, 0')
    stamp(a, 0, real=True)
    stamp(a, 2)
def prof_end(a, wave_sgpr_expr_setup):
    if not PROF: return
    a('s_waitcnt vmcnt(0)')
    stamp(a, 7)
    stamp(a, 1, real=True)
    a(wave_sgpr_expr_setup)
    a('s_lshr_b32 s97, s92, 9')
    a('s_and_b32 s97, s97, 31')
    a('s_lshl_b32 s97, s97, 8')
    a('s_add_u32 s97, s97, s2')
    a('s_lshl_b32 s97, s97, 4')
    a('s_add_u32 s97, s97, s96')
    a('s_lshl_b32 s97, s97, 6')
    a(f's_add_u32 s97, s97, {PROF_OFF}')
    a('s_mov_b32 s88, s94')
    a('s_mov_b32 s89, s95')
    a('s_mov_b32 s90, 0x10000000')
    a('s_mov_b32 s91, 0x20000')
    a('v_mov_b32 v1, 0')
    for i in range(12):
        a(f'v_mov_b32 v2, s{64+2*i}')
        a(f'buffer_store_dword v2, v1, s[88:91], s97 offen offset:{4*i}')
```

```python
import dsl
from dsl import Asm, kd, stamp, prof_begin, prof_end
import struct

MB_ = 1 << 20
WS_QF  = 0
WS_KVF = 4 * MB_
WS_O   = 12 * MB_
WS_X0  = 16 * MB_
WS_X1  = 20 * MB_
WS_X2  = 24 * MB_
WS_X3  = 28 * MB_
WS_H   = 32 * MB_
WS_SP  = 46 * MB_
WS_CSQ = 47 * MB_
WS_CS1 = 47 * MB_ + 16384
WS_USED = 48 * MB_
KA = dict(x=0, wqkv=8, wo=16, bx=24, w1=32, w2=40, out=48, dbg=56, ws=64)
QSCALE = (32 ** -0.5) * 1.4426950408889634

def f32bits(x): return struct.unpack('<I', struct.pack('<f', x))[0]
def log2(x):
    assert x & (x - 1) == 0
    return x.bit_length() - 1

class Cfg:
    def __init__(s, name, kind, K, ldw, R, lead, MB, NB, flags=()):
        s.name, s.kind, s.K, s.ldw, s.R, s.lead, s.MB, s.NB = name, kind, K, ldw, R, lead, MB, NB
        s.npanel = 1 if kind == 'res' else 3
        s.half = kind == 'w1'
        s.UB = 8192 + s.npanel * 4096 + (2048 if s.half else 0)
        s.U = K // 32
        s.T = s.U // 2
        s.nload = 2 + s.npanel + (1 if s.half else 0)
        s.stat_off = s.UB * R
        s.lds = s.stat_off + 2048
        s.flags = set(flags)
        assert lead <= R - 2 and s.lds <= 163840 and s.nload * R <= 63
    def variant(s, name, *flags, **kw):
        args = dict(name=name, kind=s.kind, K=s.K, ldw=s.ldw, R=s.R, lead=s.lead, MB=s.MB, NB=s.NB, flags=set(s.flags) | set(flags))
        args.update(kw)
        return Cfg(**args)

CFG_QKV = Cfg('qkv', 'qkv', 1024, 6144, 7, 5, 8, 4)
CFG_W1  = Cfg('w1',  'w1',  1024, 7168, 7, 5, 8, 4)
CFG_WO  = Cfg('wo',  'res', 1024, 2048, 12, 8, 4, 8)
CFG_W2  = Cfg('w2',  'res', 3584, 2048, 12, 8, 4, 8)

def entry(a, label, body, W, xoff, ooff, roff=0, spoff=0, final=False):
    a(f'.p2align 8\n.globl {label}\n.type {label},@function\n{label}:')
    a(f's_load_dwordx2 s[4:5], s[0:1], {KA["ws"]}')
    a(f's_load_dwordx2 s[6:7], s[0:1], {KA[W]}')
    a(f's_load_dwordx2 s[8:9], s[0:1], {KA["out"]}')
    a(f's_mov_b32 s12, {xoff}')
    a(f's_mov_b32 s13, {ooff}')
    a(f's_mov_b32 s14, {roff}')
    a(f's_mov_b32 s15, {spoff}')
    a(f's_mov_b32 s11, {1 if final else 0}')
    a(f's_branch {body}')

def body(a, c):
    n = c.name
    a(f'.p2align 6\n{n}_body:')
    a('s_cmp_ge_u32 s2, 256')
    a(f's_cbranch_scc1 {n}_exit')
    prof_begin(a)
    a('v_lshrrev_b32 v1, 6, v0')
    a('v_and_b32 v0, 63, v0')
    a('v_readfirstlane_b32 s3, v1')
    a('s_and_b32 s24, s2, 7')
    a('s_lshr_b32 s25, s2, 3')
    XN = 16 // c.NB
    a(f's_lshr_b32 s26, s24, {log2(XN)}')
    a(f's_and_b32 s27, s24, {XN-1}')
    a(f's_lshl_b32 s26, s26, {log2(c.MB)}')
    a(f's_lshl_b32 s27, s27, {log2(c.NB)}')
    a(f's_and_b32 s28, s25, {c.MB-1}')
    a(f's_lshr_b32 s29, s25, {log2(c.MB)}')
    a('s_add_u32 s26, s26, s28')
    a('s_add_u32 s27, s27, s29')
    if c.kind == 'w1':
        a('s_mul_i32 s30, s27, 448')
        a('s_and_b32 s28, s27, 1')
        a('s_lshl_b32 s29, s28, 6')
        a('s_xor_b32 s28, s28, 1')
        a('s_mul_i32 s28, s28, 384')
        a('s_add_u32 s31, s30, s28')
        a('s_add_u32 s30, s30, s29')
    else:
        a('s_lshl_b32 s30, s27, 7')
    a(f's_mov_b32 s18, {WS_USED}')
    a('s_mov_b32 s19, 0x20000')
    a('v_lshlrev_b32 v8, 4, v0')
    a('s_cmp_ge_u32 s3, 4')
    a(f's_cbranch_scc1 {n}_cons')
    loader(a, c)
    prof_end(a, 's_mov_b32 s96, s3')
    a(f'{n}_exit:')
    a('s_endpgm')
    a(f'.p2align 6\n{n}_cons:')
    consumer(a, c)

def loader(a, c):
    n = c.name; R, U, T, lead = c.R, c.U, c.T, c.lead
    pstride = 2048 if c.kind == 'qkv' else 128
    ldw = c.ldw
    if 'packedw' in c.flags:
        assert not c.half
        ldw = 128; pstride = c.K * 128
        a(f's_mul_i32 s30, s27, {c.K * 128 * c.npanel}')
    a('v_lshrrev_b32 v1, 3, v0')
    a('v_and_b32 v2, 7, v0')
    a('v_lshrrev_b32 v3, 4, v0')
    a('v_lshlrev_b32 v3, 1, v3')
    a('v_xor_b32 v2, v2, v3')
    a('s_lshl_b32 s32, s3, 3')
    a('v_add_u32 v1, s32, v1')
    a(f's_mov_b32 s33, {ldw}')
    a('v_mul_lo_u32 v1, s33, v1')
    a('v_lshl_add_u32 v9, v2, 4, v1')
    if c.half:
        a('v_bfe_u32 v1, v0, 2, 3')
        a('v_add_u32 v1, s32, v1')
        a('v_mul_lo_u32 v1, s33, v1')
        a('v_and_b32 v2, 3, v0')
        a('v_and_b32 v3, 2, v3')
        a('v_xor_b32 v2, v2, v3')
        a('v_lshl_add_u32 v10, v2, 4, v1')
    a('s_lshl_b32 s34, s3, 11')
    a(f's_mul_i32 s40, s26, {U * 8192}')
    a('s_add_u32 s40, s40, s12')
    a('s_add_u32 s40, s40, s34')
    a('s_mov_b32 s41, s30')
    if c.half: a('s_mov_b32 s42, s31')
    a('s_mov_b32 s44, s34')
    a('s_lshl_b32 s45, s3, 10')
    a('s_add_u32 s45, s45, 8192')
    if c.half:
        a('s_lshl_b32 s46, s3, 9')
        a(f's_add_u32 s46, s46, {8192 + 3*4096}')
    a('s_mov_b32 s43, 0')
    a('s_mov_b32 s52, 0\ns_mov_b32 s53, s40\ns_mov_b32 s54, s41')
    a(f's_mov_b32 s22, {c.K*c.ldw}')
    a('s_mov_b32 s23, 0x20000')
    a('s_waitcnt lgkmcnt(0)')
    a('s_mov_b32 s16, s4')
    a('s_mov_b32 s17, s5')
    a('s_mov_b32 s20, s6')
    a('s_mov_b32 s21, s7')

    def issue(first=False):
        ld = 'noload' not in c.flags
        if not first: a('s_add_u32 m0, s43, s45')
        for p in range(c.npanel):
            if p: a(f's_add_u32 s47, s41, {p*pstride}')
            elif not first: a('s_nop 0')
            if ld: a(f'buffer_load_dwordx4 v9, s[20:23], {"s47" if p else "s41"} offen lds')
            if p + 1 < c.npanel: a('s_add_u32 m0, m0, 4096')
        if c.half:
            a('s_add_u32 m0, s43, s46')
            a('s_mov_b32 exec_hi, 0')
            if ld: a('buffer_load_dwordx4 v10, s[20:23], s42 offen lds')
            a('s_mov_b32 exec_hi, -1')
            a(f's_add_u32 s42, s42, {32*c.ldw}')
        a('s_add_u32 m0, s43, s44')
        a(f's_add_u32 s41, s41, {32*ldw}')
        if ld:
            a('buffer_load_dwordx4 v8, s[16:19], s40 offen lds')
            a('buffer_load_dwordx4 v8, s[16:19], s40 offen offset:1024 lds')
        a('s_add_u32 s40, s40, 8192')
        if 'hot' in c.flags:
            a('s_add_u32 s52, s52, 1')
            a('s_and_b32 s52, s52, 31')
            a('s_cbranch_scc1 2')
            a('s_mov_b32 s40, s53')
            a('s_mov_b32 s41, s54')
        a(f's_add_u32 s43, s43, {c.UB}')
        a(f's_cmp_eq_u32 s43, {c.UB*R}')
        a('s_cselect_b32 s43, 0, s43')

    nl = c.nload
    stamp(a, 3)
    for u in range(lead): issue()
    stamp(a, 4)
    nfull = (U - lead) // 2
    a(f's_mov_b32 s50, {nfull}')
    a('s_add_u32 m0, s43, s45')
    a(f'{n}_lhead:')
    a(f's_waitcnt vmcnt({(lead-2)*nl})')
    a('s_barrier')
    a(f'{n}_lloop:')
    if 'tight' in c.flags:
        issue(first=True); issue()
        a('s_add_u32 m0, s43, s45')
        a('s_sub_u32 s50, s50, 1')
        a('s_cmp_lg_u32 s50, 0')
        a(f's_cbranch_scc1 {n}_lhead')
        a(f's_waitcnt vmcnt({(lead-2)*nl})')
        a('s_barrier')
    else:
        issue(); issue()
        a(f's_waitcnt vmcnt({(lead-2)*nl})')
        a('s_barrier')
        a('s_sub_u32 s50, s50, 1')
        a('s_cmp_lg_u32 s50, 0')
        a(f's_cbranch_scc1 {n}_lloop')
    issued = lead + 2 * nfull
    nbar = c.T if c.kind != 'res' else c.T - 1
    for t in range(nfull, nbar):
        while issued < U and issued < lead + 2 * t + 2:
            issue(); issued += 1
        a(f's_waitcnt vmcnt({max(0, issued - (2*t+4))*nl})')
        a('s_barrier')

def stflag(c):
    for f in ('nt', 'sc1', 'sc0 sc1', 'sc1 nt'):
        if 'st_' + f.replace(' ', '') in c.flags: return ' ' + f
    return ''

def mfma(d, x, y): return f'v_mfma_f32_16x16x32_bf16 v[{d}:{d+3}], v[{x}:{x+3}], v[{y}:{y+3}], v[{d}:{d+3}]'

def wrapmask(nsteps, period):
    m = 0
    for i in range(nsteps):
        if (i + 1) % period == 0: m |= 1 << i
    return m

def consumer(a, c):
    n = c.name; R, U, T = c.R, c.U, c.T
    res = c.kind == 'res'
    NW = {'qkv': 6, 'w1': 8, 'res': 2}[c.kind]
    tiles = [(m, t) for t in range(min(NW, 6)) for m in range(4)]
    if c.kind == 'w1': tiles += [(m, t) for t in (6, 7) for m in range(2)]
    nsub = 2 if res else 1
    VX, VW = 4, 6
    FR = 16
    fset = nsub * (4 + NW) * 4
    ACC = FR + 2 * fset
    accmap = {mt: ACC + 4 * i for i, mt in enumerate(sorted(tiles))}
    c.vgpr = ACC + 4 * len(tiles)
    acc = lambda m, t: accmap[(m, t)]
    xf = lambda st, si, m: FR + st * fset + (si * (4 + NW) + m) * 4
    wf = lambda st, si, t: FR + st * fset + (si * (4 + NW) + 4 + t) * 4
    S = c.stat_off
    a('s_setprio 2')
    a('s_sub_u32 s3, s3, 4')
    a('s_lshr_b32 s32, s3, 1')
    a('s_and_b32 s33, s3, 1')
    a('v_and_b32 v1, 15, v0')
    a('v_lshrrev_b32 v2, 4, v0')
    a('s_lshl_b32 s34, s32, 12')
    if c.kind == 'w1':
        a('s_lshl_b32 s35, s33, 11')
        a('s_add_u32 s34, s34, s35')
        a(f'v_add_u32 v{VX}, s34, v8')
        a(f'v_xor_b32 v{VX+1}, 2048, v{VX}')
        xsrc = lambda m: (VX + (m >> 1), (m & 1) * 1024)
        addr_regs = [VX, VX + 1, VW, VW + 1, 9, 10]
    else:
        a(f'v_add_u32 v{VX}, s34, v8')
        xsrc = lambda m: (VX, m * 1024)
        addr_regs = [VX, VW, VW + 1]
    a('v_lshrrev_b32 v3, 2, v0')
    a('v_and_b32 v13, 3, v0')
    a('v_lshlrev_b32 v13, 3, v13')
    a('v_lshl_add_u32 v14, v3, 7, v13')
    a('v_bfe_u32 v15, v0, 3, 2')
    a('s_lshl_b32 s34, s33, 1')
    a('v_xor_b32 v15, s34, v15')
    a(f'v_lshl_add_u32 v{VW}, v15, 5, v14')
    a(f'v_add_u32 v{VW}, 8192, v{VW}')
    a(f'v_xor_b32 v{VW+1}, 32, v{VW}')
    if c.half:
        a('v_lshl_add_u32 v9, v3, 6, v13')
        a('v_and_b32 v15, 1, v2')
        a('v_lshl_add_u32 v9, v15, 5, v9')
        a(f'v_add_u32 v9, {8192 + 3*4096}, v9')
        a('v_xor_b32 v10, 32, v9')
    wsrc = lambda t: (VW + (t & 1), (t >> 1) * 4096, 2048) if t < 6 else (9 + (t & 1), 0, 1024)
    a('s_waitcnt lgkmcnt(0)')
    a('s_mov_b32 s16, s4')
    a('s_mov_b32 s17, s5')
    if res:
        a('s_lshl_b32 s36, s26, 5')
        a('s_lshl_b32 s37, s27, 1')
        a('s_add_u32 s36, s36, s37')
        a('s_add_u32 s36, s36, s33')
        a('s_lshl_b32 s36, s36, 13')
        a('s_lshl_b32 s37, s32, 12')
        a('s_add_u32 s36, s36, s37')
        a('s_add_u32 s37, s36, s14')
        for m in range(4):
            a(f'buffer_load_dwordx4 v[{FR+4*m}:{FR+4*m+3}], v8, s[16:19], s37 offen offset:{m*1024}')
        for m in range(4):
            a(f's_waitcnt vmcnt({3-m})')
            for e in range(2):
                d = acc(m, e); r = FR + 4 * m + 2 * e
                a(f'v_lshlrev_b32 v{d}, 16, v{r}')
                a(f'v_and_b32 v{d+1}, 0xffff0000, v{r}')
                a(f'v_lshlrev_b32 v{d+2}, 16, v{r+1}')
                a(f'v_and_b32 v{d+3}, 0xffff0000, v{r+1}')
    else:
        a('v_lshlrev_b32 v3, 4, v1')
        a('v_lshl_add_u32 v3, v2, 10, v3')
        a('s_lshl_b32 s36, s26, 14')
        a('s_lshl_b32 s37, s3, 8')
        a('s_add_u32 s36, s36, s37')
        a('s_add_u32 s36, s36, s15')
        for i in range(4):
            if i: a('s_add_u32 s36, s36, 4096')
            a(f'buffer_load_dwordx4 v[{FR+4*i}:{FR+4*i+3}], v3, s[16:19], s36 offen')
        csoff = WS_CSQ if c.kind == 'qkv' else WS_CS1
        if c.kind == 'qkv':
            a('s_min_u32 s37, s3, 2')
            a('s_lshl_b32 s37, s37, 11')
            a('s_add_u32 s37, s37, s30')
        else:
            a('s_lshl_b32 s37, s3, 7')
            a('s_add_u32 s37, s37, s30')
            a('s_cmp_eq_u32 s3, 3')
            a('s_cselect_b32 s37, s31, s37')
        a('s_lshl_b32 s37, s37, 1')
        a(f's_add_u32 s37, s37, {csoff}')
        a('s_lshl_b32 s38, s3, 8')
        a(f's_add_u32 m0, s38, {S + 1024}')
        a('v_lshlrev_b32 v13, 2, v0')
        a('buffer_load_dword v13, s[16:19], s37 offen lds')
        for r in range(ACC, c.vgpr): a(f'v_mov_b32 v{r}, 0')
        a('s_waitcnt vmcnt(0)')
        for i in range(1, 4):
            for h in range(2):
                a(f'v_pk_add_f32 v[{FR+2*h}:{FR+2*h+1}], v[{FR+2*h}:{FR+2*h+1}], v[{FR+4*i+2*h}:{FR+4*i+2*h+1}]')
        for sw in ('v_permlane32_swap_b32', 'v_permlane16_swap_b32'):
            for r in range(4): a(f'v_mov_b32 v{FR+4+r}, v{FR+r}')
            for r in range(4): a(f'{sw} v{FR+r}, v{FR+4+r}')
            for r in range(4): a(f'v_add_f32 v{FR+r}, v{FR+r}, v{FR+4+r}')
        a(f's_mov_b32 s36, {f32bits(1.0/1024)}')
        a(f's_mov_b32 s37, {f32bits(1e-5)}')
        for r in range(4): a(f'v_mul_f32 v{FR+r}, s36, v{FR+r}')
        for q in (0, 2): a(f'v_fma_f32 v{FR+q+1}, -v{FR+q}, v{FR+q}, v{FR+q+1}')
        for q in (0, 2): a(f'v_max_f32 v{FR+q+1}, 0, v{FR+q+1}')
        for q in (0, 2): a(f'v_add_f32 v{FR+q+1}, s37, v{FR+q+1}')
        a(f'v_rsq_f32 v{FR+6}, v{FR+1}')
        a(f'v_rsq_f32 v{FR+7}, v{FR+3}')
        a(f'v_sub_f32 v{FR+4}, 0, v{FR}')
        a(f'v_sub_f32 v{FR+5}, 0, v{FR+2}')
        a('s_lshl_b32 s36, s3, 7')
        a(f's_add_u32 s36, s36, {S}')
        a('v_lshlrev_b32 v3, 3, v1')
        a('v_add_u32 v3, s36, v3')
        a(f'ds_write_b64 v3, v[{FR+4}:{FR+5}]')
        a(f'ds_write_b64 v3, v[{FR+6}:{FR+7}] offset:512')

    def reads(st):
        out = []
        for si in range(nsub):
            ub = si * c.UB
            for m in range(4):
                reg, off = xsrc(m)
                out.append(f'ds_read_b128 v[{xf(st,si,m)}:{xf(st,si,m)+3}], v{reg} offset:{ub + off}')
            for t in range(NW):
                reg, off, us = wsrc(t)
                for u in range(2):
                    d = wf(st, si, t) + 2 * u
                    out.append(f'ds_read_b64_tr_b16 v[{d}:{d+1}], v{reg} offset:{ub + off + u*us}')
        if 'noread' in c.flags: out = []
        return out
    def mfmas(st):
        out = []
        for si in range(nsub):
            for m, t in tiles:
                if c.kind == 'qkv' and t >= 4: out.append(mfma(acc(m, t), xf(st, si, m), wf(st, si, t)))
                else: out.append(mfma(acc(m, t), wf(st, si, t), xf(st, si, m)))
        if 'nomfma' in c.flags: out = ['s_nop 0'] * len(out)
        return out
    step = c.UB * nsub
    period = R // nsub
    nsteps = U // nsub
    mask = wrapmask(nsteps + 1, period)
    a(f's_mov_b32 s44, {mask & 0xffffffff}')
    a(f's_mov_b32 s45, {mask >> 32}')
    a(f's_mov_b32 s43, {-(period-1)*step & 0xffffffff}')
    a('s_mov_b32 s41, 0')
    pre = ['s_bitcmp1_b64 s[44:45], s41', f's_cselect_b32 s42, s43, {step}', 's_add_u32 s41, s41, 1']
    adv = [f'v_add_u32 v{r}, s42, v{r}' for r in addr_regs]
    def weave(ms, fill, at=None):
        for i, m in enumerate(ms):
            for x in (at or {}).get(i, []): a(x)
            a(m)
            for x in (fill[i] if i < len(fill) else []): a(x)
    def spread(items, ngaps):
        out = [[] for _ in range(ngaps)]
        extra = max(0, len(items) - ngaps)
        k = 0
        for i in range(ngaps):
            cnt = 2 if i < extra else 1
            out[i] = items[k:k + cnt]; k += cnt
        assert k >= len(items), (len(items), ngaps)
        return out
    a('s_waitcnt lgkmcnt(0)')
    stamp(a, 3)
    a('s_barrier')
    stamp(a, 4)
    stamp(a, 8, real=True)
    for x in pre: a(x)
    for r in reads(0): a(r)
    for x in adv: a(x)
    nm = len(tiles) * nsub
    bar = [] if 'nobar' in c.flags else ['s_barrier']
    if not res:
        a('s_waitcnt lgkmcnt(0)')
        a(f'.p2align 6\n{n}_cloop:')
        weave(mfmas(0), spread(reads(1) + pre + adv, nm - 3), at={nm - 1: ['s_waitcnt lgkmcnt(0)'] + bar})
        f = spread(reads(0) + pre + adv, nm - 4)
        f += [[f's_cmp_lt_u32 s41, {nsteps + 1}'], [], ['s_waitcnt lgkmcnt(0)'], [f's_cbranch_scc1 {n}_cloop']]
        weave(mfmas(1), f)
    else:
        a(f'.p2align 6\n{n}_cloop:')
        a('s_waitcnt lgkmcnt(0)')
        for x in bar: a(x)
        weave(mfmas(0), spread(reads(1) + pre + adv, nm))
        a('s_waitcnt lgkmcnt(0)')
        a(f's_cmp_lt_u32 s41, {nsteps}')
        a(f's_cbranch_scc0 {n}_clast')
        for x in bar: a(x)
        weave(mfmas(1), spread(reads(0) + pre + adv, nm))
        a(f's_branch {n}_cloop')
        a(f'{n}_clast:')
        weave(mfmas(1), [])
    stamp(a, 5)
    stamp(a, 9, real=True)
    def fin():
        prof_end(a, 's_add_u32 s96, s3, 4')
        a('s_endpgm')
    if res:
        for m in range(4):
            d = FR + 4 * m
            for e in range(2):
                s_ = acc(m, e)
                a(f'v_cvt_pk_bf16_f32 v{d+2*e}, v{s_}, v{s_+1}')
                a(f'v_cvt_pk_bf16_f32 v{d+2*e+1}, v{s_+2}, v{s_+3}')
        a('s_cmp_lg_u32 s11, 0')
        a(f's_cbranch_scc1 {n}_final')
        a('s_add_u32 s36, s36, s13')
        for m in range(4):
            a(f'buffer_store_dwordx4 v[{FR+4*m}:{FR+4*m+3}], v8, s[16:19], s36 offen offset:{m*1024}{stflag(c)}')
        SQ = FR + 16
        a('v_mov_b32 v3, 0x3f803f80')
        for r in range(8): a(f'v_mov_b32 v{SQ+r}, 0')
        for r in range(4):
            for m in range(4):
                a(f'v_dot2c_f32_bf16 v{SQ+m}, v{FR+4*m+r}, v3')
                a(f'v_dot2c_f32_bf16 v{SQ+4+m}, v{FR+4*m+r}, v{FR+4*m+r}')
        for b in (0, 4):
            a(f'v_permlane32_swap_b32 v{SQ+b}, v{SQ+b+1}')
            a(f'v_permlane32_swap_b32 v{SQ+b+2}, v{SQ+b+3}')
        for b in (0, 4):
            a(f'v_add_f32 v{SQ+b}, v{SQ+b}, v{SQ+b+1}')
            a(f'v_add_f32 v{SQ+b+2}, v{SQ+b+2}, v{SQ+b+3}')
        for b in (0, 4): a(f'v_permlane16_swap_b32 v{SQ+b}, v{SQ+b+2}')
        a(f'v_add_f32 v{SQ}, v{SQ}, v{SQ+2}')
        a(f'v_add_f32 v{SQ+1}, v{SQ+4}, v{SQ+6}')
        a('v_lshlrev_b32 v3, 3, v0')
        a('s_lshl_b32 s37, s32, 9')
        a(f's_add_u32 s37, s37, {S}')
        a('v_add_u32 v3, s37, v3')
        a('s_cmp_eq_u32 s33, 0')
        a(f's_cbranch_scc1 {n}_st0')
        a(f'ds_write_b64 v3, v[{SQ}:{SQ+1}]')
        a('s_waitcnt lgkmcnt(0)')
        a('s_barrier')
        fin()
        a(f'{n}_st0:')
        a('v_and_b32 v13, 1, v2')
        a('v_lshrrev_b32 v14, 1, v2')
        a('v_lshl_add_u32 v13, v13, 1, v14')
        a('v_lshl_add_u32 v13, v13, 4, v1')
        a('v_lshlrev_b32 v13, 3, v13')
        a('s_lshl_b32 s37, s26, 4')
        a('s_add_u32 s37, s37, s27')
        a('s_lshl_b32 s37, s37, 10')
        a('s_lshl_b32 s38, s32, 9')
        a('s_add_u32 s37, s37, s38')
        a('s_add_u32 s37, s37, s15')
        a('s_barrier')
        a(f'ds_read_b64 v[{SQ+2}:{SQ+3}], v3')
        a('s_waitcnt lgkmcnt(0)')
        a(f'v_pk_add_f32 v[{SQ}:{SQ+1}], v[{SQ}:{SQ+1}], v[{SQ+2}:{SQ+3}]')
        a(f'buffer_store_dwordx2 v[{SQ}:{SQ+1}], v13, s[16:19], s37 offen')
        fin()
        a(f'{n}_final:')
        a('s_mov_b32 s20, s8')
        a('s_mov_b32 s21, s9')
        a(f's_mov_b32 s22, {2048*2048}')
        a('s_mov_b32 s23, 0x20000')
        a('v_and_b32 v3, 1, v2')
        a('v_lshlrev_b32 v3, 5, v3')
        a('v_lshrrev_b32 v13, 1, v2')
        a('v_lshl_add_u32 v3, v13, 4, v3')
        a('v_lshl_add_u32 v3, v1, 11, v3')
        a('s_lshl_b32 s36, s26, 18')
        a('s_lshl_b32 s37, s32, 17')
        a('s_add_u32 s36, s36, s37')
        a('s_add_u32 s36, s36, s30')
        a('s_lshl_b32 s37, s33, 6')
        a('s_add_u32 s36, s36, s37')
        for m in range(4):
            d = FR + 4 * m
            a(f'v_permlane16_swap_b32 v{d}, v{d+2}')
            a(f'v_permlane16_swap_b32 v{d+1}, v{d+3}')
            if m: a('s_add_u32 s36, s36, 32768')
            a(f'buffer_store_dwordx4 v[{d}:{d+3}], v3, s[20:23], s36 offen')
        fin()
        return
    a('s_lshl_b32 s34, s32, 8')
    a(f's_add_u32 s34, s34, {S}')
    a('v_lshlrev_b32 v3, 2, v1')
    if c.kind == 'w1':
        a('s_lshl_b32 s35, s33, 7')
        a('s_add_u32 s35, s35, s34')
        a('v_add_u32 v3, s35, v3')
        a('v_xor_b32 v14, 128, v3')
        msrc = lambda m: (3 if m < 2 else 14, (m & 1) * 64)
    else:
        a('v_add_u32 v3, s34, v3')
        msrc = lambda m: (3, m * 64)
    assert S % 256 == 0
    for m in range(4):
        r, o = msrc(m)
        a(f'ds_read_b32 v{FR+2*m}, v{r} offset:{o}')
        a(f'ds_read_b32 v{FR+2*m+1}, v{r} offset:{512 + o}')
    CS = FR + 8
    a('v_lshlrev_b32 v13, 4, v2')
    a(f'v_add_u32 v13, {S + 1024}, v13')
    a('s_lshl_b32 s35, s33, 7')
    a('v_add_u32 v15, s35, v13')
    def fold(d, cs, st, tmp):
        for h in range(2):
            a(f'v_pk_fma_f32 v[{d+2*h}:{d+2*h+1}], v[{cs+2*h}:{cs+2*h+1}], v[{st}:{st+1}], v[{d+2*h}:{d+2*h+1}] op_sel:[0,0,0] op_sel_hi:[1,0,1]')
        for h in range(2):
            a(f'v_pk_mul_f32 v[{d+2*h}:{d+2*h+1}], v[{d+2*h}:{d+2*h+1}], v[{st}:{st+1}] op_sel:[0,1] op_sel_hi:[1,1]')
        a(f'v_cvt_pk_bf16_f32 v{tmp}, v{d}, v{d+1}')
        a(f'v_cvt_pk_bf16_f32 v{tmp+1}, v{d+2}, v{d+3}')
    if c.kind == 'w1':
        for t in range(6): a(f'ds_read_b128 v[{CS+4*t}:{CS+4*t+3}], v15 offset:{(t>>1)*256 + (t&1)*64}')
        for t in (6, 7): a(f'ds_read_b128 v[{CS+4*t}:{CS+4*t+3}], v13 offset:{768 + (t&1)*64}')
        a('s_mul_i32 s36, s26, 112')
        a('s_lshr_b32 s37, s30, 6')
        a('s_add_u32 s37, s37, s33')
        a('s_add_u32 s37, s37, s36')
        a('s_lshr_b32 s38, s31, 6')
        a('s_add_u32 s38, s38, s36')
        a('s_lshl_b32 s37, s37, 13')
        a('s_lshl_b32 s38, s38, 13')
        a('s_lshl_b32 s36, s32, 12')
        a('s_add_u32 s36, s36, s13')
        a('s_add_u32 s37, s37, s36')
        a('s_add_u32 s38, s38, s36')
        a('s_lshl_b32 s35, s33, 11')
        a('v_add_u32 v3, s35, v8')
        a('v_xor_b32 v14, 2048, v3')
        a('s_waitcnt lgkmcnt(0)')
        TM = CS + 32
        k = 0
        for p in range(4):
            for m in range(4 if p < 3 else 2):
                d = TM + 4 * (k % 4); k += 1
                for e in range(2): fold(acc(m, 2 * p + e), CS + 4 * (2 * p + e), FR + 2 * m, d + 2 * e)
                for r in range(4): a(f'v_pk_max_i16 v{d+r}, v{d+r}, 0')
                a(f'buffer_store_dwordx4 v[{d}:{d+3}], v{3 if m < 2 else 14}, s[16:19], {"s37" if p < 3 else "s38"} offen offset:{(m&1)*1024}{stflag(c)}')
            if p < 2: a(f's_add_u32 s37, s37, {2*8192}')
        fin()
        return
    for t in range(4): a(f'ds_read_b128 v[{CS+4*t}:{CS+4*t+3}], v15 offset:{(t>>1)*256 + (t&1)*64}')
    a('v_lshlrev_b32 v14, 2, v1')
    a('v_add_u32 v14, s35, v14')
    a(f'v_add_u32 v14, {S + 1024 + 512}, v14')
    CV = CS + 16
    a(f'ds_read_b32 v{CV}, v14')
    a(f'ds_read_b32 v{CV+1}, v14 offset:64')
    a('v_lshlrev_b32 v14, 4, v2')
    a('v_add_u32 v14, s34, v14')
    MV = CV + 4
    a('s_waitcnt lgkmcnt(6)')
    for m in range(4):
        a(f'ds_read_b128 v[{MV+8*m}:{MV+8*m+3}], v14 offset:{m*64}')
        a(f'ds_read_b128 v[{MV+8*m+4}:{MV+8*m+7}], v14 offset:{512 + m*64}')
    TM = MV + 32
    assert TM + 16 <= ACC, (TM, ACC)
    a('v_lshlrev_b32 v3, 4, v1')
    a('v_lshl_add_u32 v3, v2, 9, v3')
    a('v_and_b32 v13, 8, v1')
    a('v_lshl_add_u32 v15, v13, 4, v3')
    a('s_lshl_b32 s34, s27, 1')
    a('s_add_u32 s34, s34, s33')
    a('s_lshl_b32 s35, s26, 2')
    a('s_lshl_b32 s36, s32, 1')
    a('s_add_u32 s35, s35, s36')
    a('s_lshl_b32 s36, s34, 17')
    a('s_lshl_b32 s37, s35, 11')
    a('s_add_u32 s36, s36, s37')
    a('s_lshl_b32 s37, s36, 1')
    a(f's_add_u32 s37, s37, {WS_KVF}')
    a('s_add_u32 s38, s37, 4096')
    if WS_QF: a(f's_add_u32 s36, s36, {WS_QF}')
    a(f's_mov_b32 s39, {f32bits(QSCALE)}')
    a('s_waitcnt lgkmcnt(0)')
    k = 0
    for m in range(4):
        d = TM + 4 * (k % 4); k += 1
        for e in range(2): fold(acc(m, 2 + e), CS + 4 * (2 + e), FR + 2 * m, d + 2 * e)
        a(f'buffer_store_dwordx4 v[{d}:{d+3}], v15, s[16:19], {"s37" if m < 2 else "s38"} offen offset:{(m&1)*128}{stflag(c)}')
    for tp in range(2):
        for e in range(2):
            d = TM + 4 * (k % 4); k += 1
            for mm in range(2):
                m = 2 * tp + mm; s_ = acc(m, 4 + e)
                for h in range(2):
                    a(f'v_pk_fma_f32 v[{s_+2*h}:{s_+2*h+1}], v[{MV+8*m+2*h}:{MV+8*m+2*h+1}], v[{CV}:{CV+1}], v[{s_+2*h}:{s_+2*h+1}] op_sel:[0,{e},0] op_sel_hi:[1,{e},1]')
                for h in range(2):
                    a(f'v_pk_mul_f32 v[{s_+2*h}:{s_+2*h+1}], v[{s_+2*h}:{s_+2*h+1}], v[{MV+8*m+4+2*h}:{MV+8*m+5+2*h}]')
                a(f'v_cvt_pk_bf16_f32 v{d+2*mm}, v{s_}, v{s_+1}')
                a(f'v_cvt_pk_bf16_f32 v{d+2*mm+1}, v{s_+2}, v{s_+3}')
            a(f'buffer_store_dwordx4 v[{d}:{d+3}], v3, s[16:19], {"s37" if tp == 0 else "s38"} offen offset:{2048 + e*256}{stflag(c)}')
    for m in range(4): a(f'v_mul_f32 v{FR+2*m+1}, s39, v{FR+2*m+1}')
    for m in range(4):
        d = TM + 4 * (k % 4); k += 1
        for e in range(2): fold(acc(m, e), CS + 4 * e, FR + 2 * m, d + 2 * e)
        a(f'buffer_store_dwordx4 v[{d}:{d+3}], v3, s[16:19], s36 offen offset:{(m>>1)*2048 + (m&1)*256}{stflag(c)}')
    fin()
```

```python
from dsl import Asm, kd, stamp, prof_begin, prof_end
from gemm import *
VGPR_PRE = 96
LDS_PRE = 2048
def pre(a, label):
    n = 'pre'
    a(f'.p2align 8\n.globl {label}\n.type {label},@function\n{label}:')
    a(f's_load_dwordx2 s[4:5], s[0:1], {KA["ws"]}')
    a(f's_load_dwordx2 s[6:7], s[0:1], {KA["x"]}')
    a(f's_load_dwordx2 s[8:9], s[0:1], {KA["wqkv"]}')
    a(f's_load_dwordx2 s[10:11], s[0:1], {KA["w1"]}')
    a('s_cmp_ge_u32 s2, 232')
    a(f's_cbranch_scc1 {n}_exit')
    prof_begin(a)
    a('v_lshrrev_b32 v1, 6, v0')
    a('v_and_b32 v0, 63, v0')
    a('v_readfirstlane_b32 s3, v1')
    a(f's_mov_b32 s18, {WS_USED}')
    a('s_mov_b32 s19, 0x20000')
    a('s_mov_b32 s23, 0x20000')
    a('s_cmp_lt_u32 s2, 104')
    a(f's_cbranch_scc1 {n}_cs')
    a('s_sub_u32 s24, s2, 104')
    a('v_and_b32 v1, 15, v0')
    a('v_lshrrev_b32 v2, 4, v0')
    a('v_lshlrev_b32 v3, 3, v2')
    a('v_lshl_add_u32 v3, v1, 11, v3')
    a('v_lshlrev_b32 v4, 4, v0')
    a('s_lshl_b32 s25, s24, 15')
    a('s_lshl_b32 s26, s3, 8')
    a('s_add_u32 s25, s25, s26')
    a(f's_mov_b32 s22, {2048*2048}')
    a('s_waitcnt lgkmcnt(0)')
    a('s_mov_b32 s16, s4\ns_mov_b32 s17, s5\ns_mov_b32 s20, s6\ns_mov_b32 s21, s7')
    for k in range(4):
        for u in range(2):
            a(f'buffer_load_dwordx2 v[{8+4*k+2*u}:{9+4*k+2*u}], v3, s[20:23], s25 offen offset:{k*64 + u*32}')
    a('s_lshr_b32 s26, s24, 3')
    a('s_and_b32 s27, s24, 7')
    a('s_lshl_b32 s28, s26, 5')
    a('s_lshl_b32 s29, s3, 2')
    a('s_add_u32 s28, s28, s29')
    a('s_lshl_b32 s28, s28, 3')
    a('s_add_u32 s28, s28, s27')
    a('s_lshl_b32 s28, s28, 10')
    a(f's_add_u32 s28, s28, {WS_X0}')
    a('v_mov_b32 v5, 0x3f803f80')
    for r in range(4): a(f'v_mov_b32 v{24+r}, 0')
    for k in range(4):
        a(f's_waitcnt vmcnt({6 - k})')
        a(f'buffer_store_dwordx4 v[{8+4*k}:{11+4*k}], v4, s[16:19], s28 offen')
        a('s_add_u32 s28, s28, 8192')
        for r in range(4):
            a(f'v_dot2c_f32_bf16 v{24+(k>>1)}, v{8+4*k+r}, v5')
            a(f'v_dot2c_f32_bf16 v{26+(k>>1)}, v{8+4*k+r}, v{8+4*k+r}')
    a('v_permlane32_swap_b32 v24, v25')
    a('v_permlane32_swap_b32 v26, v27')
    a('v_add_f32 v24, v24, v25')
    a('v_add_f32 v26, v26, v27')
    a('v_permlane16_swap_b32 v24, v26')
    a('v_add_f32 v24, v24, v26')
    a('v_lshrrev_b32 v3, 1, v2')
    a('v_lshlrev_b32 v3, 10, v3')
    a('v_lshl_add_u32 v3, v1, 3, v3')
    a('v_and_b32 v2, 1, v2')
    a('v_lshl_add_u32 v3, v2, 2, v3')
    a('s_lshl_b32 s28, s26, 4')
    a('s_lshl_b32 s29, s3, 1')
    a('s_add_u32 s28, s28, s29')
    a('s_lshl_b32 s28, s28, 10')
    a('s_lshl_b32 s29, s27, 7')
    a('s_add_u32 s28, s28, s29')
    a(f's_add_u32 s28, s28, {WS_SP}')
    a('buffer_store_dword v24, v3, s[16:19], s28 offen')
    prof_end(a, 's_mov_b32 s96, s3')
    a(f'{n}_exit:')
    a('s_endpgm')
    a(f'{n}_cs:')
    a('s_cmp_lt_u32 s2, 48')
    a('s_cselect_b32 s24, 0, 48')
    a('s_movk_i32 s25, 7168')
    a('s_cselect_b32 s25, 6144, s25')
    a(f's_mov_b32 s26, {WS_CS1}')
    a(f's_cselect_b32 s26, {WS_CSQ}, s26')
    a('s_waitcnt lgkmcnt(0)')
    a('s_cselect_b32 s20, s8, s10')
    a('s_cselect_b32 s21, s9, s11')
    a('s_mov_b32 s16, s4\ns_mov_b32 s17, s5')
    a('s_lshl_b32 s22, s25, 10')
    a('s_sub_u32 s24, s2, s24')
    a('v_lshrrev_b32 v1, 3, v0')
    a('v_mul_lo_u32 v1, s25, v1')
    a('v_and_b32 v2, 7, v0')
    a('v_lshl_add_u32 v1, v2, 4, v1')
    a('s_mul_i32 s27, s25, s3')
    a('s_lshl_b32 s27, s27, 7')
    a('s_lshl_b32 s28, s24, 7')
    a('s_add_u32 s27, s27, s28')
    a('s_lshl_b32 s28, s25, 3')
    for i in range(16):
        a(f'buffer_load_dwordx4 v[{16+4*i}:{19+4*i}], v1, s[20:23], s27 offen')
        a('s_add_u32 s27, s27, s28')
    for r in range(8): a(f'v_mov_b32 v{8+r}, 0')
    for i in range(16):
        a(f's_waitcnt vmcnt({15-i})')
        for r in range(4):
            a(f'v_lshlrev_b32 v{80+2*r}, 16, v{16+4*i+r}')
            a(f'v_and_b32 v{81+2*r}, 0xffff0000, v{16+4*i+r}')
        for r in range(4):
            a(f'v_pk_add_f32 v[{8+2*r}:{9+2*r}], v[{8+2*r}:{9+2*r}], v[{80+2*r}:{81+2*r}]')
    for b in (8, 12):
        a(f'v_permlane32_swap_b32 v{b}, v{b+1}')
        a(f'v_permlane32_swap_b32 v{b+2}, v{b+3}')
    for b in (8, 12):
        a(f'v_add_f32 v{b}, v{b}, v{b+1}')
        a(f'v_add_f32 v{b+2}, v{b+2}, v{b+3}')
    for b in (8, 12): a(f'v_permlane16_swap_b32 v{b}, v{b+2}')
    for b in (8, 12): a(f'v_add_f32 v{b}, v{b}, v{b+2}')
    for b in (8, 12): a(f'v_add_f32_dpp v{b}, v{b}, v{b} row_ror:8 row_mask:0xf bank_mask:0xf')
    a('v_bfe_u32 v3, v0, 4, 1')
    a('v_bfe_u32 v4, v0, 5, 1')
    a('v_lshl_add_u32 v3, v3, 1, v4')
    a('v_lshl_add_u32 v3, v2, 3, v3')
    a('v_lshlrev_b32 v3, 2, v3')
    a('s_lshl_b32 s28, s3, 8')
    a('v_add_u32 v3, s28, v3')
    a('ds_write_b32 v3, v8')
    a('ds_write_b32 v3, v12 offset:16')
    a('s_waitcnt lgkmcnt(0)')
    a('s_barrier')
    a('s_cmp_lg_u32 s3, 0')
    a(f's_cbranch_scc1 {n}_cs_end')
    a('v_lshlrev_b32 v3, 2, v0')
    for i in range(8): a(f'ds_read_b32 v{8+i}, v3 offset:{i*256}')
    a('s_lshl_b32 s28, s24, 8')
    a('s_add_u32 s28, s28, s26')
    a('s_waitcnt lgkmcnt(0)')
    for i in range(1, 8): a(f'v_add_f32 v8, v8, v{8+i}')
    a('buffer_store_dword v8, v3, s[16:19], s28 offen')
    a(f'{n}_cs_end:')
    prof_end(a, 's_mov_b32 s96, s3')
    a('s_endpgm')
```

```python
import dsl; dsl.PROF = True
from build import *
ex = []
def add(base, tag, io, *flags, **kw):
    c = base.variant(base.name + tag, *flags, **kw)
    ex.append((base.name + tag + '_kernel', c, io))
QIO = dict(W='wqkv', xoff=WS_X2, ooff=0, spoff=SP(2))
AIO = dict(W='w1', xoff=WS_X1, ooff=WS_H, spoff=SP(1))
BIO = dict(W='w2', xoff=WS_H, ooff=WS_X3, roff=WS_X1, spoff=SP(3))
OIO = dict(W='wo', xoff=WS_O, ooff=WS_X3, roff=WS_X2, spoff=SP(3))
add(CFG_W2, 'A', BIO, 'packedw', 'tight', 'nomfma', 'noread')
add(CFG_W2, 'B', BIO, 'packedw', 'tight', 'nomfma', 'noread', 'hot')
add(CFG_W2, 'C', BIO, 'packedw', 'nomfma', 'noread', 'hot')
add(CFG_W2, 'D', BIO, 'packedw', 'tight', 'hot')
add(CFG_W2, 'E', BIO, 'tight', 'nomfma', 'noread', 'hot')
add(CFG_W2, 'F', BIO, 'packedw', 'tight', 'nomfma', 'noread', 'hot', lead=4)
add(CFG_W2, 'G', BIO, 'packedw', 'tight', 'nomfma', 'noread', lead=4)
build('exp4.s', launches=ORDER[:6] + [e[0][:-7] for e in ex], extra=ex)
```

```python
from dsl import Asm, kd, stamp, prof_begin, prof_end
from gemm import KA, WS_QF, WS_KVF, WS_O, WS_USED, f32bits, log2
import pack

NSLOT = 4
LDS_ATTN = NSLOT * 32768
LDS_ATTN_TOTAL = LDS_ATTN + 32768
Q, KB, VB, P, ONES, L, IDX, O, CI, S = (8, 16), (24, 32), (40, 48), 56, 64, (68, 72), 76, (80, 96), (112, 128), (144, 160)
VGPR_ATTN = 176
VA, VBASE = 4, 5
MBK, NBK = 8, 4

def m32(d, x, y, c): return f'v_mfma_f32_32x32x16_bf16 v[{d}:{d+15}], v[{x}:{x+3}], v[{y}:{y+3}], ' + (f'v[{c}:{c+15}]' if c is not None else '0')
def sm(d): return f'v_smfmac_f32_16x16x64_bf16 v[{d}:{d+3}], v[{ONES}:{ONES+3}], v[{P}:{P+7}], v{IDX}'

def attn(a, n='attn', opt=()):
    for label, flag in ((n + '2_kernel', 0), (n + '1_kernel', 1)):
        a(f'.p2align 8\n.globl {label}\n.type {label},@function\n{label}:')
        a(f's_load_dwordx2 s[4:5], s[0:1], {KA["ws"]}')
        a(f's_load_dwordx2 s[26:27], s[0:1], {KA["wo"]}')
        a(f's_load_dwordx4 s[28:31], s[0:1], {KA["w1"]}')
        a(f's_mov_b32 s22, {flag}')
        if not flag: a(f's_branch {n}_body')
    a(f'{n}_body:')
    a('s_cmp_ge_u32 s2, 256')
    a(f's_cbranch_scc1 {n}_exit')
    prof_begin(a)
    a('v_lshrrev_b32 v1, 6, v0')
    a('v_and_b32 v0, 63, v0')
    a('v_readfirstlane_b32 s3, v1')
    a('v_lshlrev_b32 v2, 4, v0')
    a('s_and_b32 s8, s2, 7')
    a('s_lshr_b32 s9, s2, 3')
    XN = 16 // NBK
    a(f's_lshr_b32 s6, s8, {log2(XN)}')
    a(f's_and_b32 s7, s8, {XN-1}')
    a(f's_lshl_b32 s6, s6, {log2(MBK)}')
    a(f's_lshl_b32 s7, s7, {log2(NBK)}')
    a(f's_and_b32 s8, s9, {MBK-1}')
    a(f's_lshr_b32 s9, s9, {log2(MBK)}')
    a('s_add_u32 s6, s6, s8')
    a('s_add_u32 s7, s7, s9')
    a('s_and_b32 s48, s3, 3')
    a('s_lshr_b32 s8, s48, 1')
    a('s_and_b32 s9, s48, 1')
    a('s_lshl_b32 s10, s7, 1')
    a('s_add_u32 s10, s10, s8')
    a('s_lshl_b32 s11, s10, 18')
    a(f's_add_u32 s11, s11, {WS_KVF}')
    a(f's_mov_b32 s18, {WS_USED}')
    a('s_mov_b32 s19, 0x20000')
    a('s_cmp_ge_u32 s3, 4')
    a(f's_cbranch_scc1 {n}_cons')
    a('s_lshl_b32 s12, s9, 13')
    a('s_add_u32 s12, s12, s11')
    a('s_lshl_b32 s13, s6, 14' if 'rot' in opt else 's_mov_b32 s13, 0')
    a('s_lshl_b32 s15, s48, 13')
    a('s_mov_b32 s35, 0x20000')
    a('s_waitcnt lgkmcnt(0)')
    a('s_mov_b32 s16, s4')
    a('s_mov_b32 s17, s5')
    def issue_chunk():
        a('s_mov_b32 m0, s15')
        a('s_add_u32 s14, s12, s13')
        for i in range(4): a(f'buffer_load_dwordx4 v2, s[16:19], s14 offen offset:{i*1024} lds')
        a('s_add_u32 m0, s15, 4096')
        a('s_add_u32 s14, s14, 4096')
        for i in range(4): a(f'buffer_load_dwordx4 v2, s[16:19], s14 offen offset:{i*1024} lds')
        a('s_add_u32 s13, s13, 16384')
        a('s_and_b32 s13, s13, 0x3ffff')
        a('s_add_u32 s15, s15, 32768')
        a(f's_and_b32 s15, s15, {LDS_ATTN-1}')
    issue_chunk()
    issue_chunk()
    stamp(a, 3)
    a('s_waitcnt vmcnt(8)')
    a('s_barrier')
    stamp(a, 4)
    issue_chunk()
    if 'nobar' in opt:
        issue_chunk()
        a(f's_branch {n}_lend')
    a('s_cmp_lg_u32 s22, 0')
    a(f's_cbranch_scc1 {n}_ldpack')
    a('s_mov_b32 s20, 13')
    a(f'{n}_lloop:')
    issue_chunk()
    a('s_waitcnt vmcnt(16)')
    a('s_barrier')
    a('s_sub_u32 s20, s20, 1')
    a('s_cmp_lg_u32 s20, 0')
    a(f's_cbranch_scc1 {n}_lloop')
    a('s_waitcnt vmcnt(8)')
    a('s_barrier')
    a('s_waitcnt vmcnt(0)')
    a('s_barrier')
    a(f'{n}_lend:')
    prof_end(a, 's_mov_b32 s96, s3')
    a(f'{n}_exit:')
    a('s_endpgm')
    a(f'{n}_ldpack:')
    PK = 8
    a('s_lshl_b32 s45, s48, 13')
    a(f's_add_u32 s45, s45, {LDS_ATTN}')
    a('s_cmp_lt_u32 s2, 32')
    a(f's_cbranch_scc1 {n}_pk_wo')
    a('s_cmp_lt_u32 s2, 144')
    a(f's_cbranch_scc1 {n}_pk_w1')
    a('s_sub_u32 s46, s2, 144')
    a('s_lshr_b32 s47, s46, 4')
    a('s_and_b32 s46, s46, 15')
    pack.decode(a, 32, 'w2', 's46', 's47', 's48', ('s30', 's31'), 4)
    a(f's_branch {n}_pk1')
    a(f'{n}_pk_wo:')
    a('s_lshr_b32 s47, s2, 4')
    a('s_and_b32 s46, s2, 15')
    pack.decode(a, 32, 'wo', 's46', 's47', 's48', ('s26', 's27'), 4)
    a(f's_branch {n}_pk1')
    a(f'{n}_pk_w1:')
    a('s_cmp_ge_u32 s2, 88')
    a('s_cselect_b32 s47, 1, 0')
    a('s_cselect_b32 s46, 88, 32')
    a('s_sub_u32 s46, s2, s46')
    pack.decode(a, 32, 'w1', 's46', 's47', 's48', ('s28', 's29'), 4)
    a(f'{n}_pk1:')
    pack.setup(a, 32, 0, PK, 's45')
    q = [('c', 1)] * 8 + [('c', 2)] * 8
    def need(tag):
        last = max([i for i, t in enumerate(q) if t == tag], default=-1)
        cnt = len(q) - 1 - last
        a(f's_waitcnt vmcnt({cnt})')
        del q[:last + 1]
    LOADS = {0: 0, 2: 1, 5: 2, 7: 3}
    FINS = {4: 0, 6: 1, 9: 2, 11: 3}
    for e in range(15):
        if e + 3 < 16: issue_chunk(); q += [('c', e + 3)] * 8
        if e in FINS:
            u = FINS[e]
            need(('p', u))
            pack.finish1(a, 32, 2, PK, 's[16:19]', flip=True); q += [('s', u)] * 4
        if e in LOADS:
            pack.issue1(a, 32, PK, wrap=('s45', LOADS[e] % 2 == 1)); q += [('p', LOADS[e])] * 4
        if e == 13:
            a('s_cmp_eq_u32 s41, 0')
            a(f's_cbranch_scc1 {n}_nocs')
            pack.colsum1(a, 32, 0, PK, 's[16:19]')
            a(f'{n}_nocs:')
            a('s_waitcnt vmcnt(0)'); q.clear()
        need(('c', e + 1))
        a('s_barrier')
    a(f's_branch {n}_lend')

    a(f'.p2align 6\n{n}_cons:')
    a('s_setprio 2')
    a('s_lshl_b32 s12, s6, 2')
    a('s_lshl_b32 s13, s9, 1')
    a('s_add_u32 s12, s12, s13')
    a('s_lshl_b32 s13, s10, 17')
    a('s_lshl_b32 s14, s12, 11')
    a('s_add_u32 s13, s13, s14')
    if WS_QF: a(f's_add_u32 s13, s13, {WS_QF}')
    a('s_waitcnt lgkmcnt(0)')
    a('s_mov_b32 s16, s4')
    a('s_mov_b32 s17, s5')
    for i in range(4): a(f'buffer_load_dwordx4 v[{Q[0]+4*i}:{Q[0]+4*i+3}], v2, s[16:19], s13 offen offset:{i*1024}')
    a('v_lshrrev_b32 v3, 2, v0')
    a('v_mov_b32 v6, 0x3f803f80')
    if True:
        a('v_and_b32 v1, 1, v3')
        a('v_cmp_eq_u32 vcc, 0, v1')
        a(f'v_cndmask_b32 v{ONES}, 0, v6, vcc')
        a(f'v_mov_b32 v{ONES+1}, v{ONES}')
        a(f'v_xor_b32 v{ONES+2}, v6, v{ONES}')
        a(f'v_mov_b32 v{ONES+3}, v{ONES+2}')
    else:
        a('v_lshrrev_b32 v1, 4, v0')
        a('v_xor_b32 v1, v1, v3')
        a('v_and_b32 v1, 1, v1')
        a('v_cmp_eq_u32 vcc, 0, v1')
        a(f'v_cndmask_b32 v{ONES}, 0, v6, vcc')
        for r in range(1, 4): a(f'v_mov_b32 v{ONES+r}, v{ONES}')
    a('v_and_b32 v1, 1, v0')
    a('v_cmp_eq_u32 vcc, 0, v1')
    a('v_mov_b32 v6, 0x44444444')
    a('v_mov_b32 v7, 0xeeeeeeee')
    a(f'v_cndmask_b32 v{IDX}, v7, v6, vcc')
    for r in list(range(L[0], L[0] + 8)) + list(range(O[0], O[0] + 32)) + list(range(P, P + 8)) + list(range(VB[1] + 4, VB[1] + 8)):
        a(f'v_mov_b32 v{r}, 0')
    a('s_lshl_b32 s14, s8, 14')
    a(f'v_add_u32 v{VBASE}, s14, v2')
    a(f'v_mov_b32 v{VA}, v{VBASE}')
    a('s_mov_b32 s20, 0')
    a('s_mov_b32 s21, 0')
    stamp(a, 3)
    a('s_waitcnt vmcnt(0)')
    a('s_barrier')
    stamp(a, 4)
    def rd(dst, off): a(f'ds_read_b128 v[{dst}:{dst+3}], v{VA} offset:{off}')
    rd(KB[0], 0); rd(KB[0] + 4, 1024); rd(VB[0], 2048); rd(VB[0] + 4, 3072)
    a('s_waitcnt lgkmcnt(2)')
    for qi in range(2):
        a(m32(S[qi], KB[0], Q[qi], None))
        a(m32(S[qi], KB[0] + 4, Q[qi] + 4, S[qi]))
    for qi in range(2):
        s_, t_ = S[qi], 6 + qi
        a(f'v_max3_f32 v{t_}, v{s_}, v{s_+1}, v{s_+2}')
        for r in range(3, 15, 2): a(f'v_max3_f32 v{t_}, v{t_}, v{s_+r}, v{s_+r+1}')
        a(f'v_max_f32 v{t_}, v{t_}, v{s_+15}')
    a('v_mov_b32 v1, v6')
    a('v_mov_b32 v3, v7')
    a('v_permlane32_swap_b32 v6, v1')
    a('v_permlane32_swap_b32 v7, v3')
    a('v_max_f32 v6, v6, v1')
    a('v_max_f32 v7, v7, v3')
    for r in range(16): a(f'v_sub_f32 v{CI[0]+r}, 0, v6')
    a(m32(S[0], KB[0], Q[0], CI[0]))
    a(m32(S[0], KB[0] + 4, Q[0] + 4, S[0]))
    for r in range(16): a(f'v_sub_f32 v{CI[1]+r}, 0, v7')
    a('s_waitcnt lgkmcnt(0)')
    a('s_nop 0')
    stamp(a, 5)
    stamp(a, 8, real=True)
    a(f'.p2align 6\n{n}_loop:')
    for kt in range(4):
        for qi in range(2):
            sa, sb = S[qi], S[1 - qi]
            E = lambda *r: [a(f'v_exp_f32 v{sa+i}, v{sa+i}') for i in r]
            C = lambda *r: [a(f'v_cvt_pk_bf16_f32 v{P+i}, v{sa+2*i}, v{sa+2*i+1}') for i in r]
            kn = KB[kt % 2] if qi == 0 else KB[(kt + 1) % 2]
            vp = VB[(kt + 1) % 2] if qi == 0 else VB[kt % 2]
            nb = (kt + 1) % 2; off = ((kt + 1) % 4) * 4096
            f = [[] for _ in range(5)]
            if qi == 0:
                f[0] = [('rd', KB[nb], off)]; f[1] = [('rd', KB[nb] + 4, off + 1024)]
                f[2] = [('rd', VB[nb] + 4, off + 3072)]; f[3] = [('rd', VB[nb], off + 2048)]
                f[4] = ['s_waitcnt lgkmcnt(2)']
            else:
                f[1] = ['s_waitcnt lgkmcnt(0)']
                if kt == 1:
                    f[0] = ['s_add_u32 s21, s21, 32768']; f[2] = [f's_and_b32 s21, s21, {LDS_ATTN-1}']
                    f[3] = ['s_add_u32 s20, s20, 1']
                if kt == 2:
                    f[0] = ['s_cmp_eq_u32 s20, 16']
                    f[2] = [f's_cbranch_scc1 {n}_nobar']
                    f[3] = [('s_barrier' if 'nobar' not in opt else 's_nop 0'), f'{n}_nobar2:', f'v_add_u32 v{VA}, s21, v{VBASE}']
                if kt == 3:
                    f[0] = ['s_cmp_lg_u32 s20, 16']
            def F(i):
                for x in f[i]:
                    if isinstance(x, tuple): rd(x[1], x[2])
                    else: a(x)
            a(m32(sb, kn, Q[1 - qi], CI[1 - qi])); F(0); E(0, 1, 2)
            a(sm(L[1 - qi])); F(1); E(3, 4, 5)
            a(m32(O[1 - qi], vp + 4, P + 4, O[1 - qi])); F(2); E(6, 7); C(0, 1)
            a(m32(sb, kn + 4, Q[1 - qi] + 4, sb)); F(3); C(2, 3); E(8, 9)
            a(m32(O[qi], VB[kt % 2], P, O[qi])); F(4); E(10, 11, 12, 13, 14, 15); C(4, 5, 6, 7)
            if kt == 2 and qi == 1: tailcode = (sa, sb, kn)
    a(f's_cbranch_scc1 {n}_loop')
    a('s_waitcnt lgkmcnt(0)')
    stamp(a, 6)
    stamp(a, 9, real=True)
    a(sm(L[1]))
    a(m32(O[1], VB[1] + 4, P + 4, O[1]))
    for qi in range(2): a(f'v_add_f32 v{L[qi]}, v{L[qi]}, v{L[qi]+1}')
    a(f'v_add_f32 v1, v{L[0]}, v{L[1]}')
    for r in range(0, 32, 2): a(f'v_pk_fma_f32 v[6:7], v[{O[0]+r}:{O[0]+r+1}], 0, v[6:7]' if r else f'v_pk_mul_f32 v[6:7], v[{O[0]}:{O[0]+1}], 0')
    a('v_add_f32 v1, v1, v6')
    a('v_add_f32 v1, v1, v7')
    a(f's_mov_b32 s23, {f32bits(2.0**100)}')
    a('v_cmp_ngt_f32 vcc, s23, v1')
    a(f's_cbranch_vccnz {n}_slow')
    a(f'{n}_fin:')
    a(f'v_rcp_f32 v6, v{L[0]}')
    a(f'v_rcp_f32 v7, v{L[1]}')
    a('v_and_b32 v3, 15, v0')
    a('v_lshlrev_b32 v3, 4, v3')
    a('v_lshrrev_b32 v1, 5, v0')
    a('v_lshl_add_u32 v3, v1, 8, v3')
    a('v_bfe_u32 v1, v0, 4, 1')
    a('v_lshl_add_u32 v3, v1, 10, v3')
    a('s_lshl_b32 s24, s6, 5')
    a('s_add_u32 s24, s24, s10')
    a('s_lshl_b32 s24, s24, 13')
    a('s_lshl_b32 s25, s9, 12')
    a('s_add_u32 s24, s24, s25')
    a(f's_add_u32 s24, s24, {WS_O}')
    for qi in range(2):
        for r in range(0, 16, 2):
            a(f'v_pk_mul_f32 v[{O[qi]+r}:{O[qi]+r+1}], v[{O[qi]+r}:{O[qi]+r+1}], v[6:7] op_sel:[0,{qi}] op_sel_hi:[1,{qi}]')
        for c in range(2):
            d = S[0] + 8 * qi + 4 * c
            for k, r in enumerate((4*c, 4*c + 2, 8 + 4*c, 8 + 4*c + 2)):
                a(f'v_cvt_pk_bf16_f32 v{d+k}, v{O[qi]+r}, v{O[qi]+r+1}')
            a(f'buffer_store_dwordx4 v[{d}:{d+3}], v3, s[16:19], s24 offen offset:{qi*2048 + c*512} sc0 sc1')
    prof_end(a, 's_mov_b32 s96, s3')
    a('s_endpgm')
    a(f'{n}_nobar:')
    sa, sb, kn = tailcode
    for i in (6, 7): a(f'v_exp_f32 v{sa+i}, v{sa+i}')
    for i in (0, 1): a(f'v_cvt_pk_bf16_f32 v{P+i}, v{sa+2*i}, v{sa+2*i+1}')
    a(m32(sb, kn + 4, Q[0] + 4, sb))
    a(f's_branch {n}_nobar2')
    a(f'{n}_slow:')
    M, LS, SA, KF, VF, OT = 6, 7, S[0], KB[0], VB[0], S[1]
    a('s_mov_b32 s21, 0')
    a(f'{n}_sq:')
    a(f'v_mov_b32 v{M}, {f32bits(-3.0e38)}')
    a(f'v_mov_b32 v{LS}, 0')
    for r in range(16): a(f'v_mov_b32 v{OT+r}, 0')
    a('s_mov_b32 s20, 0')
    a('s_mov_b32 s12, s11')
    a(f'{n}_sloop:')
    for i, d in enumerate((KF, KF + 4, VF, VF + 4)):
        a(f'buffer_load_dwordx4 v[{d}:{d+3}], v2, s[16:19], s12 offen offset:{i*1024}')
    a('s_add_u32 s12, s12, 4096')
    a('s_waitcnt vmcnt(0)')
    a(m32(SA, KF, Q[0], None))
    a(m32(SA, KF + 4, Q[0] + 4, SA))
    a(f'v_max3_f32 v1, v{SA}, v{SA+1}, v{SA+2}')
    for r in range(3, 15, 2): a(f'v_max3_f32 v1, v1, v{SA+r}, v{SA+r+1}')
    a(f'v_max3_f32 v1, v1, v{SA+15}, v{M}')
    a('v_mov_b32 v3, v1')
    a('v_permlane32_swap_b32 v1, v3')
    a('v_max_f32 v1, v1, v3')
    a(f'v_sub_f32 v3, v{M}, v1')
    a('v_exp_f32 v3, v3')
    a(f'v_mov_b32 v{M}, v1')
    for r in range(16): a(f'v_sub_f32 v{SA+r}, v{SA+r}, v1')
    for r in range(16): a(f'v_exp_f32 v{SA+r}, v{SA+r}')
    for r in range(16): a(f'v_mul_f32 v{OT+r}, v{OT+r}, v3')
    a(f'v_mul_f32 v{LS}, v{LS}, v3')
    for r in range(8): a(f'v_cvt_pk_bf16_f32 v{P+r}, v{SA+2*r}, v{SA+2*r+1}')
    for r in range(16): a(f'v_add_f32 v{LS}, v{LS}, v{SA+r}')
    a(m32(OT, VF, P, OT))
    a(m32(OT, VF + 4, P + 4, OT))
    a('s_add_u32 s20, s20, 1')
    a('s_cmp_lg_u32 s20, 64')
    a('s_nop 7')
    a(f's_cbranch_scc1 {n}_sloop')
    a(f'v_mov_b32 v3, v{LS}')
    a(f'v_permlane32_swap_b32 v{LS}, v3')
    a(f'v_add_f32 v{L[1]}, v{LS}, v3')
    for r in range(16): a(f'v_mov_b32 v{O[1]+r}, v{OT+r}')
    a('s_cmp_lg_u32 s21, 0')
    a(f's_cbranch_scc1 {n}_fin')
    a('s_mov_b32 s21, 1')
    a(f'v_mov_b32 v{L[0]}, v{L[1]}')
    for r in range(16): a(f'v_mov_b32 v{O[0]+r}, v{OT+r}')
    for r in range(8): a(f'v_mov_b32 v{Q[0]+r}, v{Q[1]+r}')
    a(f's_branch {n}_sq')
```

```python
import dsl
from dsl import Asm, kd, stamp, prof_begin, prof_end
import struct

MB_ = 1 << 20
WS_QF  = 0
WS_KVF = 4 * MB_
WS_O   = 12 * MB_
WS_X0  = 16 * MB_
WS_X1  = 20 * MB_
WS_X2  = 24 * MB_
WS_X3  = 28 * MB_
WS_H   = 32 * MB_
WS_SP  = 46 * MB_
WS_CSQ = 47 * MB_
WS_CS1 = 47 * MB_ + 262144
WS_PQ  = 48 * MB_
WS_PO  = 54 * MB_
WS_P1  = 56 * MB_
WS_P2  = 63 * MB_
WS_USED = 126 * MB_
KA = dict(x=0, wqkv=8, wo=16, bx=24, w1=32, w2=40, out=48, dbg=56, ws=64)
QSCALE = (32 ** -0.5) * 1.4426950408889634

def f32bits(x): return struct.unpack('<I', struct.pack('<f', x))[0]
def log2(x):
    assert x & (x - 1) == 0
    return x.bit_length() - 1

class Cfg:
    def __init__(s, name, kind, K, woff, R, lead, MB, NB, flags=()):
        s.name, s.kind, s.K, s.woff, s.R, s.lead, s.MB, s.NB = name, kind, K, woff, R, lead, MB, NB
        s.npanel = 1 if kind == 'res' else 3
        s.half = kind == 'w1'
        s.NF = 4 * s.npanel + (2 if s.half else 0)
        s.UB = 8192 + s.NF * 1024
        s.U = K // 32
        s.T = s.U // 2
        s.nload = 2 + s.npanel + (1 if s.half else 0)
        s.stat_off = s.UB * R
        s.lds = s.stat_off + 2048
        s.flags = set(flags)
        assert lead <= R - 2 and s.lds <= 163840 and s.nload * R <= 63
    def variant(s, name, *flags, **kw):
        args = dict(name=name, kind=s.kind, K=s.K, woff=s.woff, R=s.R, lead=s.lead, MB=s.MB, NB=s.NB, flags=set(s.flags) | set(flags))
        args.update(kw)
        return Cfg(**args)

CFG_QKV = Cfg('qkv', 'qkv', 1024, WS_PQ, 7, 4, 8, 4, ['st_sc0sc1'])
CFG_W1  = Cfg('w1',  'w1',  1024, WS_P1, 7, 4, 8, 4, ['st_sc0sc1'])
CFG_WO  = Cfg('wo',  'res', 1024, WS_PO, 12, 6, 4, 8, ['st_sc0sc1'])
CFG_W2  = Cfg('w2',  'res', 3584, WS_P2, 12, 6, 4, 8, ['st_sc0sc1'])

def entry(a, label, body, xoff, ooff, roff=0, spoff=0, final=False):
    a(f'.p2align 8\n.globl {label}\n.type {label},@function\n{label}:')
    a(f's_load_dwordx2 s[4:5], s[0:1], {KA["ws"]}')
    a(f's_load_dwordx2 s[8:9], s[0:1], {KA["out"]}')
    a(f's_mov_b32 s12, {xoff}')
    a(f's_mov_b32 s13, {ooff}')
    a(f's_mov_b32 s14, {roff}')
    a(f's_mov_b32 s15, {spoff}')
    a(f's_mov_b32 s11, {1 if final else 0}')
    a(f's_branch {body}')

def body(a, c):
    n = c.name
    a(f'.p2align 6\n{n}_body:')
    a('s_cmp_ge_u32 s2, 256')
    a(f's_cbranch_scc1 {n}_exit')
    prof_begin(a)
    a('v_lshrrev_b32 v1, 6, v0')
    a('v_and_b32 v0, 63, v0')
    a('v_readfirstlane_b32 s3, v1')
    a('s_and_b32 s24, s2, 7')
    a('s_lshr_b32 s25, s2, 3')
    XN = 16 // c.NB
    a(f's_lshr_b32 s26, s24, {log2(XN)}')
    a(f's_and_b32 s27, s24, {XN-1}')
    a(f's_lshl_b32 s26, s26, {log2(c.MB)}')
    a(f's_lshl_b32 s27, s27, {log2(c.NB)}')
    a(f's_and_b32 s28, s25, {c.MB-1}')
    a(f's_lshr_b32 s29, s25, {log2(c.MB)}')
    a('s_add_u32 s26, s26, s28')
    a('s_add_u32 s27, s27, s29')
    a(f's_mov_b32 s18, {WS_USED}')
    a('s_mov_b32 s19, 0x20000')
    a('v_lshlrev_b32 v8, 4, v0')
    a('s_cmp_ge_u32 s3, 4')
    a(f's_cbranch_scc1 {n}_cons')
    loader(a, c)
    prof_end(a, 's_mov_b32 s96, s3')
    a(f'{n}_exit:')
    a('s_endpgm')
    a(f'.p2align 6\n{n}_cons:')
    consumer(a, c)

def stats_issue(a, c):
    FR = 16; S = c.stat_off
    a('v_and_b32 v1, 15, v0')
    a('v_lshrrev_b32 v2, 4, v0')
    a('v_lshlrev_b32 v3, 4, v1')
    a('v_lshl_add_u32 v3, v2, 10, v3')
    a('s_lshl_b32 s36, s26, 14')
    a('s_lshl_b32 s37, s3, 8')
    a('s_add_u32 s36, s36, s37')
    a('s_add_u32 s36, s36, s15')
    for i in range(4):
        if i: a('s_add_u32 s36, s36, 4096')
        a(f'buffer_load_dwordx4 v[{FR+4*i}:{FR+4*i+3}], v3, s[16:19], s36 offen')
    csoff, csld = (WS_CSQ, 3072 * 4) if c.kind == 'qkv' else (WS_CS1, 3584 * 4)
    if c.kind == 'qkv':
        a('s_min_u32 s37, s3, 2')
        a('s_lshl_b32 s37, s37, 12')
        a('s_lshl_b32 s38, s27, 8')
    else:
        a('s_lshl_b32 s37, s3, 8')
        a('s_mul_i32 s38, s27, 896')
    a('s_add_u32 s37, s37, s38')
    a(f's_add_u32 s37, s37, {csoff}')
    a('v_lshlrev_b32 v13, 2, v0')
    ncs = 16 if c.kind == 'qkv' else 8
    for i in range(ncs):
        a(f'buffer_load_dword v{FR+16+i}, v13, s[16:19], s37 offen')
        if i < ncs - 1: a(f's_add_u32 s37, s37, {csld}')
    return 4 + ncs

def stats_finish(a, c):
    FR = 16; S = c.stat_off
    ncs = 16 if c.kind == 'qkv' else 8
    a('s_lshl_b32 s38, s3, 8')
    a(f's_add_u32 s38, s38, {S + 1024}')
    a('v_add_u32 v13, s38, v13')
    a('s_waitcnt vmcnt(0)')
    for i in range(1, ncs // 2): a(f'v_pk_add_f32 v[{FR+16}:{FR+17}], v[{FR+16}:{FR+17}], v[{FR+16+2*i}:{FR+17+2*i}]')
    a(f'v_add_f32 v{FR+16}, v{FR+16}, v{FR+17}')
    a(f'ds_write_b32 v13, v{FR+16}')
    for i in range(1, 4):
        for h in range(2):
            a(f'v_pk_add_f32 v[{FR+2*h}:{FR+2*h+1}], v[{FR+2*h}:{FR+2*h+1}], v[{FR+4*i+2*h}:{FR+4*i+2*h+1}]')
    for sw in ('v_permlane32_swap_b32', 'v_permlane16_swap_b32'):
        for r in range(4): a(f'v_mov_b32 v{FR+4+r}, v{FR+r}')
        for r in range(4): a(f'{sw} v{FR+r}, v{FR+4+r}')
        for r in range(4): a(f'v_add_f32 v{FR+r}, v{FR+r}, v{FR+4+r}')
    a(f's_mov_b32 s36, {f32bits(1.0/1024)}')
    a(f's_mov_b32 s37, {f32bits(1e-5)}')
    for r in range(4): a(f'v_mul_f32 v{FR+r}, s36, v{FR+r}')
    for q in (0, 2): a(f'v_fma_f32 v{FR+q+1}, -v{FR+q}, v{FR+q}, v{FR+q+1}')
    for q in (0, 2): a(f'v_max_f32 v{FR+q+1}, 0, v{FR+q+1}')
    for q in (0, 2): a(f'v_add_f32 v{FR+q+1}, s37, v{FR+q+1}')
    a(f'v_rsq_f32 v{FR+6}, v{FR+1}')
    a(f'v_rsq_f32 v{FR+7}, v{FR+3}')
    a(f'v_sub_f32 v{FR+4}, 0, v{FR}')
    a(f'v_sub_f32 v{FR+5}, 0, v{FR+2}')
    a('s_lshl_b32 s36, s3, 7')
    a(f's_add_u32 s36, s36, {S}')
    a('v_lshlrev_b32 v3, 3, v1')
    a('v_add_u32 v3, s36, v3')
    a(f'ds_write_b64 v3, v[{FR+4}:{FR+5}]')
    a(f'ds_write_b64 v3, v[{FR+6}:{FR+7}] offset:512')
    a('s_waitcnt lgkmcnt(0)')

def loader(a, c):
    n = c.name; R, U, T, lead = c.R, c.U, c.T, c.lead
    npw = c.npanel
    a('s_lshl_b32 s44, s3, 11')
    a(f's_mul_i32 s40, s26, {U * 8192}')
    a('s_add_u32 s40, s40, s12')
    a('s_add_u32 s40, s40, s44')
    a(f's_mul_i32 s45, s3, {npw * 1024}')
    a(f's_mul_i32 s41, s27, {U * c.NF * 1024}')
    a(f's_add_u32 s41, s41, {c.woff}')
    if c.half:
        a('s_lshl_b32 s46, s3, 9')
        a(f's_add_u32 s46, s46, {12 * 1024}')
        a('s_add_u32 s42, s41, s46')
        a('s_add_u32 s46, s46, 8192')
    a('s_add_u32 s41, s41, s45')
    a('s_add_u32 s45, s45, 8192')
    a('s_mov_b32 s43, 0')
    a('s_waitcnt lgkmcnt(0)')
    a('s_mov_b32 s16, s4')
    a('s_mov_b32 s17, s5')

    def issue(first=False):
        ld = 'noload' not in c.flags
        if not first:
            a('s_add_u32 m0, s43, s45')
            a('s_nop 0')
        for p in range(npw):
            if ld: a(f'buffer_load_dwordx4 v8, s[16:19], s41 offen offset:{p*1024} lds')
        if c.half:
            a('s_add_u32 m0, s43, s46')
            a('s_mov_b32 exec_hi, 0')
            if ld: a('buffer_load_dwordx4 v8, s[16:19], s42 offen lds')
            a('s_mov_b32 exec_hi, -1')
            a(f's_add_u32 s42, s42, {c.NF*1024}')
        a('s_add_u32 m0, s43, s44')
        a(f's_add_u32 s41, s41, {c.NF*1024}')
        if ld:
            a('buffer_load_dwordx4 v8, s[16:19], s40 offen lds')
            a('buffer_load_dwordx4 v8, s[16:19], s40 offen offset:1024 lds')
        a('s_add_u32 s40, s40, 8192')
        a(f's_add_u32 s43, s43, {c.UB}')
        a(f's_cmp_eq_u32 s43, {c.UB*R}')
        a('s_cselect_b32 s43, 0, s43')

    nl = c.nload
    stamp(a, 3)
    for u in range(lead): issue()
    stamp(a, 4)
    nfull = (U - lead) // 2
    a(f's_mov_b32 s50, {nfull}')
    a('s_add_u32 m0, s43, s45')
    a(f'{n}_lhead:')
    a(f's_waitcnt vmcnt({(lead-2)*nl})')
    a('s_barrier')
    a(f'{n}_lloop:')
    if True:
        issue(first=True); issue()
        a('s_add_u32 m0, s43, s45')
        a('s_sub_u32 s50, s50, 1')
        a('s_cmp_lg_u32 s50, 0')
        a(f's_cbranch_scc1 {n}_lhead')
        a(f's_waitcnt vmcnt({(lead-2)*nl})')
        a('s_barrier')
    else:
        issue(); issue()
        a(f's_waitcnt vmcnt({(lead-2)*nl})')
        a('s_barrier')
        a('s_sub_u32 s50, s50, 1')
        a('s_cmp_lg_u32 s50, 0')
        a(f's_cbranch_scc1 {n}_lloop')
    issued = lead + 2 * nfull
    extra = 0
    nbar = c.T if c.kind != 'res' else c.T - 1
    for t in range(nfull, nbar):
        while issued < U and issued < lead + 2 * t + 2:
            issue(); issued += 1
        if issued == U and not extra and c.kind != 'res': extra = stats_issue(a, c)
        if t == nbar - 1 and c.kind != 'res': stats_finish(a, c)
        else: a(f's_waitcnt vmcnt({max(0, issued - (2*t+4))*nl + extra})')
        a('s_barrier')

def stflag(c):
    for f in ('nt', 'sc1', 'sc0 sc1', 'sc1 nt'):
        if 'st_' + f.replace(' ', '') in c.flags: return ' ' + f
    return ''

def mfma(d, x, y): return f'v_mfma_f32_16x16x32_bf16 v[{d}:{d+3}], v[{x}:{x+3}], v[{y}:{y+3}], v[{d}:{d+3}]'

def wrapmask(nsteps, period):
    m = 0
    for i in range(nsteps):
        if (i + 1) % period == 0: m |= 1 << i
    return m

def consumer(a0, c):
    def a(t):
        if 'nostore' in c.flags and t.startswith('buffer_store_dwordx4'): return
        a0(t)
    n = c.name; R, U, T = c.R, c.U, c.T
    res = c.kind == 'res'
    NW = {'qkv': 6, 'w1': 8, 'res': 2}[c.kind]
    tiles = [(m, t) for t in range(min(NW, 6)) for m in range(4)]
    if c.kind == 'w1': tiles += [(m, t) for t in (6, 7) for m in range(2)]
    nsub = 2 if res else 1
    VX, VW = 4, 6
    FR = 16
    fset = nsub * (4 + NW) * 4
    ACC = FR + 2 * fset
    accmap = {mt: ACC + 4 * i for i, mt in enumerate(sorted(tiles))}
    c.vgpr = ACC + 4 * len(tiles)
    acc = lambda m, t: accmap[(m, t)]
    xf = lambda st, si, m: FR + st * fset + (si * (4 + NW) + m) * 4
    wf = lambda st, si, t: FR + st * fset + (si * (4 + NW) + 4 + t) * 4
    S = c.stat_off
    a('s_setprio 2')
    a('s_sub_u32 s3, s3, 4')
    a('s_lshr_b32 s32, s3, 1')
    a('s_and_b32 s33, s3, 1')
    a('v_and_b32 v1, 15, v0')
    a('v_lshrrev_b32 v2, 4, v0')
    a('s_lshl_b32 s34, s32, 12')
    if c.kind == 'w1':
        a('s_lshl_b32 s35, s33, 11')
        a('s_add_u32 s34, s34, s35')
        a(f'v_add_u32 v{VX}, s34, v8')
        a(f'v_xor_b32 v{VX+1}, 2048, v{VX}')
        xsrc = lambda m: (VX + (m >> 1), (m & 1) * 1024)
        addr_regs = [VX, VX + 1, VW, VW + 1]
    else:
        a(f'v_add_u32 v{VX}, s34, v8')
        xsrc = lambda m: (VX, m * 1024)
        addr_regs = [VX, VW]
    a('s_lshl_b32 s34, s33, 11')
    a('s_add_u32 s34, s34, 8192')
    a(f'v_add_u32 v{VW}, s34, v8')
    if c.half: a(f'v_add_u32 v{VW+1}, {8192 + 12*1024}, v8')
    wsrc = lambda t: (VW, (t >> 1) * 4096 + (t & 1) * 1024) if t < 6 else (VW + 1, (t & 1) * 1024)
    a('s_waitcnt lgkmcnt(0)')
    a('s_mov_b32 s16, s4')
    a('s_mov_b32 s17, s5')
    if res:
        a('s_lshl_b32 s36, s26, 5')
        a('s_lshl_b32 s37, s27, 1')
        a('s_add_u32 s36, s36, s37')
        a('s_add_u32 s36, s36, s33')
        a('s_lshl_b32 s36, s36, 13')
        a('s_lshl_b32 s37, s32, 12')
        a('s_add_u32 s36, s36, s37')
        a('s_add_u32 s37, s36, s14')
        for m in range(4):
            a(f'buffer_load_dwordx4 v[{FR+4*m}:{FR+4*m+3}], v8, s[16:19], s37 offen offset:{m*1024}')
        for m in range(4):
            a(f's_waitcnt vmcnt({3-m})')
            for e in range(2):
                d = acc(m, e); r = FR + 4 * m + 2 * e
                a(f'v_lshlrev_b32 v{d}, 16, v{r}')
                a(f'v_and_b32 v{d+1}, 0xffff0000, v{r}')
                a(f'v_lshlrev_b32 v{d+2}, 16, v{r+1}')
                a(f'v_and_b32 v{d+3}, 0xffff0000, v{r+1}')
    else:
        for r in range(ACC, c.vgpr): a(f'v_mov_b32 v{r}, 0')

    def reads(st):
        out = []
        for si in range(nsub):
            ub = si * c.UB
            for m in range(4):
                reg, off = xsrc(m)
                out.append(f'ds_read_b128 v[{xf(st,si,m)}:{xf(st,si,m)+3}], v{reg} offset:{ub + off}')
            for t in range(NW):
                reg, off = wsrc(t)
                d = wf(st, si, t)
                out.append(f'ds_read_b128 v[{d}:{d+3}], v{reg} offset:{ub + off}')
        if 'noread' in c.flags: out = []
        return out
    def mfmas(st):
        out = []
        for si in range(nsub):
            for m, t in tiles:
                if c.kind == 'qkv' and t >= 4: out.append(mfma(acc(m, t), xf(st, si, m), wf(st, si, t)))
                else: out.append(mfma(acc(m, t), wf(st, si, t), xf(st, si, m)))
        if 'nomfma' in c.flags: out = ['s_nop 0'] * len(out)
        return out
    step = c.UB * nsub
    period = R // nsub
    nsteps = U // nsub
    mask = wrapmask(nsteps + 1, period)
    a(f's_mov_b32 s44, {mask & 0xffffffff}')
    a(f's_mov_b32 s45, {mask >> 32}')
    a(f's_mov_b32 s43, {-(period-1)*step & 0xffffffff}')
    a('s_mov_b32 s41, 0')
    pre = ['s_bitcmp1_b64 s[44:45], s41', f's_cselect_b32 s42, s43, {step}', 's_add_u32 s41, s41, 1']
    adv = [f'v_add_u32 v{r}, s42, v{r}' for r in addr_regs]
    def weave(ms, fill, at=None):
        for i, m in enumerate(ms):
            for x in (at or {}).get(i, []): a(x)
            a(m)
            for x in (fill[i] if i < len(fill) else []): a(x)
    def spread(items, ngaps):
        out = [[] for _ in range(ngaps)]
        extra = max(0, len(items) - ngaps)
        k = 0
        for i in range(ngaps):
            cnt = 2 if i < extra else 1
            out[i] = items[k:k + cnt]; k += cnt
        assert k >= len(items), (len(items), ngaps)
        return out
    PF = getattr(c, 'pf', 0)
    def pf_issue():
        a('buffer_load_dword v12, v11, s[16:19], s48 offen')
        a('s_add_u32 s48, s48, s49')
    if PF:
        assert res and c.MB == 4 and c.NB == 8
        a('v_lshlrev_b32 v11, 7, v0')
        a(f's_mul_i32 s48, s26, {U * 8192}')
        a('s_add_u32 s48, s48, s12')
        a('s_lshl_b32 s49, s33, 3')
        a('s_add_u32 s49, s49, s29')
        a('s_lshl_b32 s49, s49, 13')
        a('s_add_u32 s48, s48, s49')
        a(f's_mul_i32 s50, s27, {U * c.NF * 1024}')
        a(f's_add_u32 s50, s50, {c.woff}')
        a('s_lshl_b32 s49, s33, 2')
        a('s_add_u32 s49, s49, s28')
        a('s_lshl_b32 s49, s49, 13')
        a('s_add_u32 s50, s50, s49')
        a('s_cmp_eq_u32 s32, 0')
        a('s_cselect_b32 s48, s48, s50')
        a('s_mov_b32 s49, 65536')
        a('s_cselect_b32 s49, 131072, s49')
        for i in range(PF): pf_issue()
    a('s_waitcnt lgkmcnt(0)')
    stamp(a, 3)
    a('s_barrier')
    stamp(a, 4)
    stamp(a, 8, real=True)
    for x in pre: a(x)
    for r in reads(0): a(r)
    for x in adv: a(x)
    nm = len(tiles) * nsub
    bar = [] if 'nobar' in c.flags else ['s_barrier']
    if not res:
        a('s_waitcnt lgkmcnt(0)')
        a(f'.p2align 6\n{n}_cloop:')
        weave(mfmas(0), spread(reads(1) + pre + adv, nm - 3), at={nm - 1: ['s_waitcnt lgkmcnt(0)'] + bar})
        f = spread(reads(0) + pre + adv, nm - 4)
        f += [[f's_cmp_lt_u32 s41, {nsteps + 1}'], [], ['s_waitcnt lgkmcnt(0)'], [f's_cbranch_scc1 {n}_cloop']]
        weave(mfmas(1), f)
    else:
        a(f'.p2align 6\n{n}_cloop:')
        a('s_waitcnt lgkmcnt(0)')
        for x in bar: a(x)
        weave(mfmas(0), spread(reads(1) + pre + adv, nm))
        a('s_waitcnt lgkmcnt(0)')
        a(f's_cmp_lt_u32 s41, {nsteps}')
        a(f's_cbranch_scc0 {n}_clast')
        for x in bar: a(x)
        weave(mfmas(1), spread(reads(0) + pre + adv, nm))
        if PF:
            a('s_and_b32 s50, s41, 7')
            a('s_cmp_lg_u32 s50, 1')
            a(f's_cbranch_scc1 {n}_cloop')
            a(f's_cmp_gt_u32 s41, {nsteps - 8 * PF + 1}')
            a(f's_cbranch_scc1 {n}_cloop')
            pf_issue()
        a(f's_branch {n}_cloop')
        a(f'{n}_clast:')
        weave(mfmas(1), [])
    stamp(a, 5)
    stamp(a, 9, real=True)
    def fin():
        stamp(a, 6)
        prof_end(a, 's_add_u32 s96, s3, 4')
        a('s_endpgm')
    if res:
        for m in range(4):
            d = FR + 4 * m
            for e in range(2):
                s_ = acc(m, e)
                a(f'v_cvt_pk_bf16_f32 v{d+2*e}, v{s_}, v{s_+1}')
                a(f'v_cvt_pk_bf16_f32 v{d+2*e+1}, v{s_+2}, v{s_+3}')
        a('s_cmp_lg_u32 s11, 0')
        a(f's_cbranch_scc1 {n}_final')
        a('s_add_u32 s36, s36, s13')
        for m in range(4):
            a(f'buffer_store_dwordx4 v[{FR+4*m}:{FR+4*m+3}], v8, s[16:19], s36 offen offset:{m*1024}{stflag(c)}')
        SQ = FR + 16
        a('v_mov_b32 v3, 0x3f803f80')
        for r in range(8): a(f'v_mov_b32 v{SQ+r}, 0')
        for r in range(4):
            for m in range(4):
                a(f'v_dot2c_f32_bf16 v{SQ+m}, v{FR+4*m+r}, v3')
                a(f'v_dot2c_f32_bf16 v{SQ+4+m}, v{FR+4*m+r}, v{FR+4*m+r}')
        for b in (0, 4):
            a(f'v_permlane32_swap_b32 v{SQ+b}, v{SQ+b+1}')
            a(f'v_permlane32_swap_b32 v{SQ+b+2}, v{SQ+b+3}')
        for b in (0, 4):
            a(f'v_add_f32 v{SQ+b}, v{SQ+b}, v{SQ+b+1}')
            a(f'v_add_f32 v{SQ+b+2}, v{SQ+b+2}, v{SQ+b+3}')
        for b in (0, 4): a(f'v_permlane16_swap_b32 v{SQ+b}, v{SQ+b+2}')
        a(f'v_add_f32 v{SQ}, v{SQ}, v{SQ+2}')
        a(f'v_add_f32 v{SQ+1}, v{SQ+4}, v{SQ+6}')
        a('v_lshlrev_b32 v3, 3, v0')
        a('s_lshl_b32 s37, s32, 9')
        a(f's_add_u32 s37, s37, {S}')
        a('v_add_u32 v3, s37, v3')
        a('s_cmp_eq_u32 s33, 0')
        a(f's_cbranch_scc1 {n}_st0')
        a(f'ds_write_b64 v3, v[{SQ}:{SQ+1}]')
        a('s_waitcnt lgkmcnt(0)')
        a('s_barrier')
        fin()
        a(f'{n}_st0:')
        a('v_and_b32 v13, 1, v2')
        a('v_lshrrev_b32 v14, 1, v2')
        a('v_lshl_add_u32 v13, v13, 1, v14')
        a('v_lshl_add_u32 v13, v13, 4, v1')
        a('v_lshlrev_b32 v13, 3, v13')
        a('s_lshl_b32 s37, s26, 4')
        a('s_add_u32 s37, s37, s27')
        a('s_lshl_b32 s37, s37, 10')
        a('s_lshl_b32 s38, s32, 9')
        a('s_add_u32 s37, s37, s38')
        a('s_add_u32 s37, s37, s15')
        a('s_barrier')
        a(f'ds_read_b64 v[{SQ+2}:{SQ+3}], v3')
        a('s_waitcnt lgkmcnt(0)')
        a(f'v_pk_add_f32 v[{SQ}:{SQ+1}], v[{SQ}:{SQ+1}], v[{SQ+2}:{SQ+3}]')
        a(f'buffer_store_dwordx2 v[{SQ}:{SQ+1}], v13, s[16:19], s37 offen{stflag(c)}')
        fin()
        a(f'{n}_final:')
        a('s_mov_b32 s20, s8')
        a('s_mov_b32 s21, s9')
        a(f's_mov_b32 s22, {2048*2048}')
        a('s_mov_b32 s23, 0x20000')
        a('v_and_b32 v3, 1, v2')
        a('v_lshlrev_b32 v3, 5, v3')
        a('v_lshrrev_b32 v13, 1, v2')
        a('v_lshl_add_u32 v3, v13, 4, v3')
        a('v_lshl_add_u32 v3, v1, 11, v3')
        a('s_lshl_b32 s36, s26, 18')
        a('s_lshl_b32 s37, s32, 17')
        a('s_add_u32 s36, s36, s37')
        a('s_lshl_b32 s37, s27, 7')
        a('s_add_u32 s36, s36, s37')
        a('s_lshl_b32 s37, s33, 6')
        a('s_add_u32 s36, s36, s37')
        for m in range(4):
            d = FR + 4 * m
            a(f'v_permlane16_swap_b32 v{d}, v{d+2}')
            a(f'v_permlane16_swap_b32 v{d+1}, v{d+3}')
            if m: a('s_add_u32 s36, s36, 32768')
            a(f'buffer_store_dwordx4 v[{d}:{d+3}], v3, s[20:23], s36 offen{stflag(c)}')
        fin()
        return
    a('s_lshl_b32 s34, s32, 8')
    a(f's_add_u32 s34, s34, {S}')
    a('v_lshlrev_b32 v3, 2, v1')
    if c.kind == 'w1':
        a('s_lshl_b32 s35, s33, 7')
        a('s_add_u32 s35, s35, s34')
        a('v_add_u32 v3, s35, v3')
        a('v_xor_b32 v14, 128, v3')
        msrc = lambda m: (3 if m < 2 else 14, (m & 1) * 64)
    else:
        a('v_add_u32 v3, s34, v3')
        msrc = lambda m: (3, m * 64)
    assert S % 256 == 0
    for m in range(4):
        r, o = msrc(m)
        a(f'ds_read_b32 v{FR+2*m}, v{r} offset:{o}')
        a(f'ds_read_b32 v{FR+2*m+1}, v{r} offset:{512 + o}')
    CS = FR + 8
    a('v_lshlrev_b32 v13, 4, v2')
    a(f'v_add_u32 v13, {S + 1024}, v13')
    a('s_lshl_b32 s35, s33, 7')
    a('v_add_u32 v15, s35, v13')
    def fold(d, cs, st, tmp):
        for h in range(2):
            a(f'v_pk_fma_f32 v[{d+2*h}:{d+2*h+1}], v[{cs+2*h}:{cs+2*h+1}], v[{st}:{st+1}], v[{d+2*h}:{d+2*h+1}] op_sel:[0,0,0] op_sel_hi:[1,0,1]')
        for h in range(2):
            a(f'v_pk_mul_f32 v[{d+2*h}:{d+2*h+1}], v[{d+2*h}:{d+2*h+1}], v[{st}:{st+1}] op_sel:[0,1] op_sel_hi:[1,1]')
        a(f'v_cvt_pk_bf16_f32 v{tmp}, v{d}, v{d+1}')
        a(f'v_cvt_pk_bf16_f32 v{tmp+1}, v{d+2}, v{d+3}')
    if c.kind == 'w1':
        for t in range(6): a(f'ds_read_b128 v[{CS+4*t}:{CS+4*t+3}], v15 offset:{(t>>1)*256 + (t&1)*64}')
        for t in (6, 7): a(f'ds_read_b128 v[{CS+4*t}:{CS+4*t+3}], v13 offset:{768 + (t&1)*64}')
        a('s_mul_i32 s36, s26, 112')
        a('s_mul_i32 s37, s27, 7')
        a('s_add_u32 s36, s36, s37')
        a('s_add_u32 s37, s36, s33')
        a('s_add_u32 s38, s36, 6')
        a('s_lshl_b32 s37, s37, 13')
        a('s_lshl_b32 s38, s38, 13')
        a('s_lshl_b32 s36, s32, 12')
        a('s_add_u32 s36, s36, s13')
        a('s_add_u32 s37, s37, s36')
        a('s_add_u32 s38, s38, s36')
        a('s_lshl_b32 s35, s33, 11')
        a('v_add_u32 v3, s35, v8')
        a('v_xor_b32 v14, 2048, v3')
        a('s_waitcnt lgkmcnt(0)')
        TM = CS + 32
        k = 0
        for p in range(4):
            for m in range(4 if p < 3 else 2):
                d = TM + 4 * (k % 4); k += 1
                for e in range(2): fold(acc(m, 2 * p + e), CS + 4 * (2 * p + e), FR + 2 * m, d + 2 * e)
                for r in range(4): a(f'v_pk_max_i16 v{d+r}, v{d+r}, 0')
                a(f'buffer_store_dwordx4 v[{d}:{d+3}], v{3 if m < 2 else 14}, s[16:19], {"s37" if p < 3 else "s38"} offen offset:{(m&1)*1024}{stflag(c)}')
            if p < 2: a(f's_add_u32 s37, s37, {2*8192}')
        fin()
        return
    for t in range(4): a(f'ds_read_b128 v[{CS+4*t}:{CS+4*t+3}], v15 offset:{(t>>1)*256 + (t&1)*64}')
    a('v_lshlrev_b32 v14, 2, v1')
    a('v_add_u32 v14, s35, v14')
    a(f'v_add_u32 v14, {S + 1024 + 512}, v14')
    CV = CS + 16
    a(f'ds_read_b32 v{CV}, v14')
    a(f'ds_read_b32 v{CV+1}, v14 offset:64')
    a('v_lshlrev_b32 v14, 4, v2')
    a('v_add_u32 v14, s34, v14')
    MV = CV + 4
    a('s_waitcnt lgkmcnt(6)')
    for m in range(4):
        a(f'ds_read_b128 v[{MV+8*m}:{MV+8*m+3}], v14 offset:{m*64}')
        a(f'ds_read_b128 v[{MV+8*m+4}:{MV+8*m+7}], v14 offset:{512 + m*64}')
    TM = MV + 32
    assert TM + 16 <= ACC, (TM, ACC)
    a('v_lshlrev_b32 v3, 4, v1')
    a('v_lshl_add_u32 v3, v2, 9, v3')
    a('v_and_b32 v13, 8, v1')
    a('v_lshl_add_u32 v15, v13, 4, v3')
    a('s_lshl_b32 s34, s27, 1')
    a('s_add_u32 s34, s34, s33')
    a('s_lshl_b32 s35, s26, 2')
    a('s_lshl_b32 s36, s32, 1')
    a('s_add_u32 s35, s35, s36')
    a('s_lshl_b32 s36, s34, 17')
    a('s_lshl_b32 s37, s35, 11')
    a('s_add_u32 s36, s36, s37')
    a('s_lshl_b32 s37, s36, 1')
    a(f's_add_u32 s37, s37, {WS_KVF}')
    a('s_add_u32 s38, s37, 4096')
    if WS_QF: a(f's_add_u32 s36, s36, {WS_QF}')
    a(f's_mov_b32 s39, {f32bits(QSCALE)}')
    a('s_waitcnt lgkmcnt(0)')
    k = 0
    for m in range(4):
        d = TM + 4 * (k % 4); k += 1
        for e in range(2): fold(acc(m, 2 + e), CS + 4 * (2 + e), FR + 2 * m, d + 2 * e)
        a(f'buffer_store_dwordx4 v[{d}:{d+3}], v15, s[16:19], {"s37" if m < 2 else "s38"} offen offset:{(m&1)*128}{stflag(c)}')
    for tp in range(2):
        for e in range(2):
            d = TM + 4 * (k % 4); k += 1
            for mm in range(2):
                m = 2 * tp + mm; s_ = acc(m, 4 + e)
                for h in range(2):
                    a(f'v_pk_fma_f32 v[{s_+2*h}:{s_+2*h+1}], v[{MV+8*m+2*h}:{MV+8*m+2*h+1}], v[{CV}:{CV+1}], v[{s_+2*h}:{s_+2*h+1}] op_sel:[0,{e},0] op_sel_hi:[1,{e},1]')
                for h in range(2):
                    a(f'v_pk_mul_f32 v[{s_+2*h}:{s_+2*h+1}], v[{s_+2*h}:{s_+2*h+1}], v[{MV+8*m+4+2*h}:{MV+8*m+5+2*h}]')
                a(f'v_cvt_pk_bf16_f32 v{d+2*mm}, v{s_}, v{s_+1}')
                a(f'v_cvt_pk_bf16_f32 v{d+2*mm+1}, v{s_+2}, v{s_+3}')
            a(f'buffer_store_dwordx4 v[{d}:{d+3}], v3, s[16:19], {"s37" if tp == 0 else "s38"} offen offset:{2048 + e*256}{stflag(c)}')
    for m in range(4): a(f'v_mul_f32 v{FR+2*m+1}, s39, v{FR+2*m+1}')
    for m in range(4):
        d = TM + 4 * (k % 4); k += 1
        for e in range(2): fold(acc(m, e), CS + 4 * e, FR + 2 * m, d + 2 * e)
        a(f'buffer_store_dwordx4 v[{d}:{d+3}], v3, s[16:19], s36 offen offset:{(m>>1)*2048 + (m&1)*256}{stflag(c)}')
    fin()
```

```python
from gemm import *

def decode(a, B, kind, panel, kc, wave, ptr, UPW):
    ldw, K, NF, base, cs, N = {
        'qkv': (6144, 1024, 12, WS_PQ, WS_CSQ, 3072), 'w1': (7168, 1024, 14, WS_P1, WS_CS1, 3584),
        'wo': (2048, 1024, 4, WS_PO, 0, 0), 'w2': (2048, 3584, 4, WS_P2, 0, 0)}[kind]
    U = K // 32
    t0, t1, t2 = f's{B+10}', f's{B+11}', f's{B+12}'
    a(f's_mov_b32 s{B}, {ptr[0]}')
    a(f's_mov_b32 s{B+1}, {ptr[1]}')
    a(f's_mov_b32 s{B+2}, {K*ldw}')
    a(f's_mov_b32 s{B+4}, {ldw}')
    a(f's_mul_i32 {t0}, {kc}, {16 // UPW}')
    a(f's_add_u32 {t0}, {t0}, {wave}')
    a(f's_mul_i32 s{B+5}, {t0}, {UPW*32*ldw}')
    a(f's_lshl_b32 {t1}, {panel}, 7')
    a(f's_add_u32 s{B+5}, s{B+5}, {t1}')
    a(f's_mov_b32 s{B+8}, {NF*1024}')
    if cs:
        a(f's_mul_i32 s{B+9}, {t0}, {N*4}')
        a(f's_lshl_b32 {t1}, {panel}, 8')
        a(f's_add_u32 s{B+9}, s{B+9}, {t1}')
        a(f's_add_u32 s{B+9}, s{B+9}, {cs}')
    else:
        a(f's_mov_b32 s{B+9}, 0')
    a(f's_mul_i32 {t0}, {t0}, {UPW*NF*1024}')
    a(f's_add_u32 {t0}, {t0}, {base}')
    if kind in ('wo', 'w2'):
        a(f's_mul_i32 s{B+6}, {panel}, {U*NF*1024}')
        a(f's_add_u32 s{B+6}, s{B+6}, {t0}')
        a(f's_add_u32 s{B+7}, s{B+6}, 2048')
    elif kind == 'qkv':
        a(f's_and_b32 {t1}, {panel}, 15')
        a(f's_mul_i32 s{B+6}, {t1}, {U*NF*1024}')
        a(f's_lshr_b32 {t1}, {panel}, 4')
        a(f's_lshl_b32 {t1}, {t1}, 12')
        a(f's_add_u32 s{B+6}, s{B+6}, {t1}')
        a(f's_add_u32 s{B+6}, s{B+6}, {t0}')
        a(f's_add_u32 s{B+7}, s{B+6}, 2048')
    else:
        for h in range(2):
            a(f's_lshl_b32 {t1}, {panel}, 1')
            if h: a(f's_add_u32 {t1}, {t1}, 1')
            a(f's_mul_i32 {t2}, {t1}, 9363')
            a(f's_lshr_b32 {t2}, {t2}, 16')
            a(f's_mul_i32 s{B+6+h}, {t2}, {U*NF*1024 - 7*2048}')
            a(f's_lshl_b32 {t1}, {t1}, 11')
            a(f's_add_u32 s{B+6+h}, s{B+6+h}, {t1}')
            a(f's_add_u32 s{B+6+h}, s{B+6+h}, {t0}')

def issue(a, B, lane, V, ldsbase, UPW):
    a(f'v_lshrrev_b32 v{V}, 3, v{lane}')
    a(f'v_mul_lo_u32 v{V}, s{B+4}, v{V}')
    a(f'v_and_b32 v{V+1}, 7, v{lane}')
    a(f'v_lshrrev_b32 v{V+2}, 4, v{lane}')
    a(f'v_lshlrev_b32 v{V+2}, 1, v{V+2}')
    a(f'v_xor_b32 v{V+1}, v{V+1}, v{V+2}')
    a(f'v_lshl_add_u32 v{V}, v{V+1}, 4, v{V}')
    a(f's_lshl_b32 s{B+10}, s{B+4}, 3')
    a(f's_mov_b32 m0, {ldsbase}')
    a('s_nop 0')
    for r in range(4 * UPW):
        a(f'buffer_load_dwordx4 v{V}, s[{B}:{B+3}], s{B+5} offen lds')
        if r < 4 * UPW - 1:
            a('s_add_u32 m0, m0, 1024')
            a(f's_add_u32 s{B+5}, s{B+5}, s{B+10}')

NREG = 4 + 4 + 16 + 32
def finish(a, B, lane, lane16, V, ldsbase, ws, tag, UPW, st=' sc0 sc1', wait=None):
    A, ON, C, F = V, V + 4, V + 8, V + 24
    a(f'v_lshrrev_b32 v{A+1}, 2, v{lane}')
    a(f'v_and_b32 v{A+2}, 3, v{lane}')
    a(f'v_lshlrev_b32 v{A+2}, 3, v{A+2}')
    a(f'v_lshl_add_u32 v{A+1}, v{A+1}, 7, v{A+2}')
    a(f'v_bfe_u32 v{A+2}, v{lane}, 3, 2')
    a(f'v_lshl_add_u32 v{A}, v{A+2}, 5, v{A+1}')
    a(f'v_add_u32 v{A}, {ldsbase}, v{A}')
    for i in range(1, 4): a(f'v_xor_b32 v{A+i}, {32*i}, v{A}')
    for r in range(4): a(f'v_mov_b32 v{ON+r}, 0x3f803f80')
    for u in range(UPW):
        if wait: wait(u)
        fb = F + (u & 1) * 16
        for i in range(4):
            for h in range(2):
                d = fb + i * 4 + 2 * h
                a(f'ds_read_b64_tr_b16 v[{d}:{d+1}], v{A+i} offset:{u*4096 + h*2048}')
        a('s_waitcnt lgkmcnt(0)')
        for i in range(4):
            d = fb + i * 4
            a(f'buffer_store_dwordx4 v[{d}:{d+3}], v{lane16}, {ws}, s{B+6+(i>>1)} offen offset:{(i&1)*1024}{st}')
            c = f'v[{C+4*i}:{C+4*i+3}]'
            a(f'v_mfma_f32_16x16x32_bf16 {c}, v[{ON}:{ON+3}], v[{d}:{d+3}], {c if u else 0}')
        if u < UPW - 1:
            a(f's_add_u32 s{B+6}, s{B+6}, s{B+8}')
            a(f's_add_u32 s{B+7}, s{B+7}, s{B+8}')
    a(f's_cmp_eq_u32 s{B+9}, 0')
    a(f's_cbranch_scc1 {tag}_nocs')
    a(f'v_and_b32 v{A}, 15, v{lane}')
    a(f'v_lshlrev_b32 v{A}, 2, v{A}')
    a('s_mov_b64 exec, 0xffff')
    for i in range(4):
        a(f'buffer_store_dword v{C+4*i}, v{A}, {ws}, s{B+9} offen offset:{i*64}{st}')
    a('s_mov_b64 exec, -1')
    a(f'{tag}_nocs:')
    a('s_nop 7')


def setup(a, B, lane, V, ldsbase):
    A, ON, C, F, VO = V, V + 4, V + 8, V + 24, V + 40
    a(f'v_lshrrev_b32 v{VO}, 3, v{lane}')
    a(f'v_mul_lo_u32 v{VO}, s{B+4}, v{VO}')
    a(f'v_and_b32 v{A+1}, 7, v{lane}')
    a(f'v_lshrrev_b32 v{A+2}, 4, v{lane}')
    a(f'v_lshlrev_b32 v{A+2}, 1, v{A+2}')
    a(f'v_xor_b32 v{A+1}, v{A+1}, v{A+2}')
    a(f'v_lshl_add_u32 v{VO}, v{A+1}, 4, v{VO}')
    a(f's_lshl_b32 s{B+10}, s{B+4}, 3')
    a(f's_mov_b32 s{B+11}, {ldsbase}')
    a(f'v_lshrrev_b32 v{A+1}, 2, v{lane}')
    a(f'v_and_b32 v{A+2}, 3, v{lane}')
    a(f'v_lshlrev_b32 v{A+2}, 3, v{A+2}')
    a(f'v_lshl_add_u32 v{A+1}, v{A+1}, 7, v{A+2}')
    a(f'v_bfe_u32 v{A+2}, v{lane}, 3, 2')
    a(f'v_lshl_add_u32 v{A}, v{A+2}, 5, v{A+1}')
    a(f'v_add_u32 v{A}, {ldsbase}, v{A}')
    for i in range(1, 4): a(f'v_xor_b32 v{A+i}, {32*i}, v{A}')
    for r in range(4): a(f'v_mov_b32 v{ON+r}, 0x3f803f80')
    for r in range(16): a(f'v_mov_b32 v{C+r}, 0')
NREG1 = 44
def issue1(a, B, V, wrap=None):
    VO = V + 40
    for r in range(4):
        a(f's_mov_b32 m0, s{B+11}')
        a(f's_add_u32 s{B+11}, s{B+11}, 1024')
        a(f'buffer_load_dwordx4 v{VO}, s[{B}:{B+3}], s{B+5} offen lds')
        a(f's_add_u32 s{B+5}, s{B+5}, s{B+10}')
    if wrap and wrap[1]: a(f's_mov_b32 s{B+11}, {wrap[0]}')
def finish1(a, B, lane16, V, ws, st=' sc0 sc1', flip=False):
    A, ON, C, F = V, V + 4, V + 8, V + 24
    for i in range(4):
        for h in range(2):
            d = F + i * 4 + 2 * h
            a(f'ds_read_b64_tr_b16 v[{d}:{d+1}], v{A+i} offset:{h*2048}')
    for i in range(4 if flip is not None else 0): a(f'v_xor_b32 v{A+i}, 4096, v{A+i}' if flip else f'v_add_u32 v{A+i}, 4096, v{A+i}')
    a('s_waitcnt lgkmcnt(0)')
    for i in range(4):
        d = F + i * 4
        a(f'buffer_store_dwordx4 v[{d}:{d+3}], v{lane16}, {ws}, s{B+6+(i>>1)} offen offset:{(i&1)*1024}{st}')
        c = f'v[{C+4*i}:{C+4*i+3}]'
        a(f'v_mfma_f32_16x16x32_bf16 {c}, v[{ON}:{ON+3}], v[{d}:{d+3}], {c}')
    a(f's_add_u32 s{B+6}, s{B+6}, s{B+8}')
    a(f's_add_u32 s{B+7}, s{B+7}, s{B+8}')
def colsum1(a, B, lane, V, ws, st=' sc0 sc1'):
    A, C = V, V + 8
    a(f'v_and_b32 v{A}, 15, v{lane}')
    a(f'v_lshlrev_b32 v{A}, 2, v{A}')
    a('s_mov_b64 exec, 0xffff')
    for i in range(4):
        a(f'buffer_store_dword v{C+4*i}, v{A}, {ws}, s{B+9} offen offset:{i*64}{st}')
    a('s_mov_b64 exec, -1')
```

```python
import sys, struct
import dsl
from dsl import Asm, kd

MB_ = 1 << 20
LSTR  = 40 * MB_
L_QF, L_KVF, L_O, L_XA, L_XB, L_H, L_SPA, L_SPB = 0, 4*MB_, 12*MB_, 16*MB_, 20*MB_, 24*MB_, 38*MB_, 38*MB_ + 524288
WS_CSQ, WS_CS1 = 80*MB_, 80*MB_ + 262144
WS_FLG = 81*MB_
WS_PKF = WS_FLG + 10 * 16384
WS_PQ, WS_PO, WS_P1, WS_P2 = 82*MB_, 88*MB_, 90*MB_, 97*MB_
WS_USED = 104 * MB_
KA = dict(x=0, wqkv=8, wo=16, bx=24, w1=32, w2=40, out=48, dbg=56, ws=64)
QSCALE = (32 ** -0.5) * 1.4426950408889634
STAT = 163840 - 2048
SC = ' sc1'
MBK, NBK = 8, 4
TIMEOUT = 200000
SLEEP = 2

def f32bits(x): return struct.unpack('<I', struct.pack('<f', x))[0]
def log2(x):
    assert x & (x - 1) == 0
    return x.bit_length() - 1

def stamp(a, i):
    if not dsl.PROF: return
    a(f's_memrealtime s[{64+2*i}:{65+2*i}]')
    a('s_waitcnt lgkmcnt(0)')
def prof_flush(a, ph, role):
    if not dsl.PROF: return
    a('s_cmp_eq_u32 s10, 0')
    a(f's_cselect_b32 s97, {ph}, {ph + 5}')
    a('s_lshl_b32 s97, s97, 8')
    a('s_add_u32 s97, s97, s2')
    a('s_lshl_b32 s97, s97, 3')
    a('s_add_u32 s97, s97, s3')
    if role: a('s_add_u32 s97, s97, 4')
    a('s_lshl_b32 s97, s97, 5')
    a(f's_add_u32 s97, s97, {dsl.PROF_OFF}')
    a('s_mov_b32 s88, s4\ns_mov_b32 s89, s5\ns_mov_b32 s90, 0x10000000\ns_mov_b32 s91, 0x20000')
    a('v_mov_b32 v1, 0')
    for i in range(8):
        a(f'v_mov_b32 v3, s{64+2*i}')
        a(f'buffer_store_dword v3, v1, s[88:91], s97 offen offset:{4*i}')

FSTR = 64
GSTR = 16 * FSTR
PSTR = 16 * GSTR
RDY = STAT - 64
def spin_global(a, tag, soff, shift, lanes=-1, n4=0):
    a(f's_mov_b32 s55, {TIMEOUT}')
    a(f'v_lshlrev_b32 v9, {shift}, v0')
    if lanes != -1: a(f's_mov_b64 exec, {lanes}')
    a(f'{tag}_poll:')
    if n4:
        for i in range(n4): a(f'buffer_load_dwordx4 v[{12+4*i}:{15+4*i}], v9, s[16:19], {soff} offen offset:{i*1024}{SC}')
        a('s_waitcnt vmcnt(0)')
        a('v_and_b32 v10, v12, v13')
        for r in range(14, 12 + 4 * n4): a(f'v_and_b32 v10, v10, v{r}')
    else:
        a(f'buffer_load_dword v10, v9, s[16:19], {soff} offen{SC}')
        a('s_waitcnt vmcnt(0)')
    a('v_cmp_eq_u32 vcc, 0, v10')
    a(f's_cbranch_vccz {tag}_ok')
    a(f's_sleep {SLEEP}')
    a('s_sub_u32 s55, s55, 1')
    a('s_cmp_lg_u32 s55, 0')
    a(f's_cbranch_scc1 {tag}_poll')
    a(f'{tag}_ok:')
    if lanes != -1: a('s_mov_b64 exec, -1')

def handoff(a, tag, ph, pgroup, pidx, cgroup):
    a('s_barrier')
    a('s_add_u32 s58, s58, 1')
    a(f'v_mov_b32 v11, {RDY}')
    a('s_cmp_lg_u32 s3, 0')
    a(f's_cbranch_scc1 {tag}_wait')
    a(f's_mul_i32 s54, {pgroup}, {GSTR}')
    a(f's_mul_i32 s55, {pidx}, {FSTR}')
    a('s_add_u32 s54, s54, s55')
    a('s_add_u32 s54, s54, s11')
    a(f's_add_u32 s54, s54, {ph*PSTR & 0xffffffff}')
    a('v_mov_b32 v9, 0')
    a('v_mov_b32 v10, 1')
    a('s_mov_b64 exec, 1')
    a(f'buffer_store_dword v10, v9, s[16:19], s54 offen{SC}')
    a('s_mov_b64 exec, -1')
    a(f's_mul_i32 s54, {cgroup}, {GSTR}')
    a('s_add_u32 s54, s54, s11')
    a(f's_add_u32 s54, s54, {ph*PSTR & 0xffffffff}')
    spin_global(a, tag, 's54', log2(FSTR), lanes=0xffff)
    a('v_mov_b32 v10, s58')
    a('ds_write_b32 v11, v10')
    a(f's_branch {tag}_go')
    a(f'{tag}_wait:')
    a(f's_mov_b32 s55, {TIMEOUT * 16}')
    a(f'{tag}_w2:')
    a('ds_read_b32 v10, v11')
    a('s_waitcnt lgkmcnt(0)')
    a('v_cmp_ne_u32 vcc, s58, v10')
    a(f's_cbranch_vccz {tag}_go')
    a('s_sleep 1')
    a('s_sub_u32 s55, s55, 1')
    a('s_cmp_lg_u32 s55, 0')
    a(f's_cbranch_scc1 {tag}_w2')
    a(f'{tag}_go:')

def signal(a, ph, group, idx):
    stamp(a, 3)
    a('s_waitcnt vmcnt(0)')
    stamp(a, 4)
    a('s_barrier')

class Cfg:
    def __init__(s, name, kind, ph, K, woff, R, lead, xoff, ooff, roff=0, spoff=0):
        s.name, s.kind, s.ph, s.K, s.woff, s.R, s.lead = name, kind, ph, K, woff, R, lead
        s.xoff, s.ooff, s.roff, s.spoff = xoff, ooff, roff, spoff
        s.npanel = 1 if kind == 'res' else 3
        s.half = kind == 'w1'
        s.NF = 4 * s.npanel + (2 if s.half else 0)
        s.UB = 8192 + s.NF * 1024
        s.U = K // 32
        s.T = s.U // 2
        s.nw = s.npanel + (1 if s.half else 0)
        s.nload = 2 + s.nw
        assert lead <= R - 2 and lead % 2 == 0 and s.UB * R <= STAT - 64 and s.nload * R <= 63

C_QKV = Cfg('qkv', 'qkv', 0, 1024, WS_PQ, 7, 4, L_XA, 0, spoff=L_SPA)
C_WO  = Cfg('wo',  'res', 2, 1024, WS_PO, 12, 6, L_O, L_XB, roff=L_XA, spoff=L_SPB)
C_W1  = Cfg('w1',  'w1',  3, 1024, WS_P1, 7, 4, L_XB, L_H, spoff=L_SPB)
C_W2  = Cfg('w2',  'res', 4, 3584, WS_P2, 12, 6, L_H, L_XA + LSTR, roff=L_XB, spoff=L_SPA + LSTR)

def stats_issue(a, c):
    FR = 16
    a('v_and_b32 v1, 15, v0')
    a('v_lshrrev_b32 v2, 4, v0')
    a('v_lshlrev_b32 v3, 4, v1')
    a('v_lshl_add_u32 v3, v2, 10, v3')
    a('s_lshl_b32 s36, s26, 15')
    a('s_lshl_b32 s37, s3, 8')
    a('s_add_u32 s36, s36, s37')
    a('s_add_u32 s36, s36, s10')
    a(f's_add_u32 s36, s36, {c.spoff}')
    for i in range(8):
        if i: a('s_add_u32 s36, s36, 4096')
        a(f'buffer_load_dwordx4 v[{FR+4*i}:{FR+4*i+3}], v3, s[16:19], s36 offen{SC}')
    csoff, csld = (WS_CSQ, 3072 * 4) if c.kind == 'qkv' else (WS_CS1, 3584 * 4)
    if c.kind == 'qkv':
        a('s_min_u32 s37, s3, 2')
        a('s_lshl_b32 s37, s37, 12')
        a('s_lshl_b32 s38, s27, 8')
    else:
        a('s_lshl_b32 s37, s3, 8')
        a('s_mul_i32 s38, s27, 896')
    a('s_add_u32 s37, s37, s38')
    a(f's_add_u32 s37, s37, {csoff}')
    a('v_lshlrev_b32 v13, 2, v0')
    ncs = 16 if c.kind == 'qkv' else 8
    for i in range(ncs):
        a(f'buffer_load_dword v{FR+32+i}, v13, s[16:19], s37 offen{SC}')
        if i < ncs - 1: a(f's_add_u32 s37, s37, {csld}')
    return 8 + ncs

def stats_finish(a, c):
    FR = 16; S = STAT; CSR = FR + 32
    ncs = 16 if c.kind == 'qkv' else 8
    a('s_lshl_b32 s38, s3, 8')
    a(f's_add_u32 s38, s38, {S + 1024}')
    a('v_add_u32 v13, s38, v13')
    a('s_waitcnt vmcnt(0)')
    for i in range(1, ncs // 2): a(f'v_pk_add_f32 v[{CSR}:{CSR+1}], v[{CSR}:{CSR+1}], v[{CSR+2*i}:{CSR+1+2*i}]')
    a(f'v_add_f32 v{CSR}, v{CSR}, v{CSR+1}')
    a(f'ds_write_b32 v13, v{CSR}')
    for i in range(1, 8):
        for h in range(2):
            a(f'v_pk_add_f32 v[{FR+2*h}:{FR+2*h+1}], v[{FR+2*h}:{FR+2*h+1}], v[{FR+4*i+2*h}:{FR+4*i+2*h+1}]')
    for sw in ('v_permlane32_swap_b32', 'v_permlane16_swap_b32'):
        for r in range(4): a(f'v_mov_b32 v{FR+4+r}, v{FR+r}')
        for r in range(4): a(f'{sw} v{FR+r}, v{FR+4+r}')
        for r in range(4): a(f'v_add_f32 v{FR+r}, v{FR+r}, v{FR+4+r}')
    a(f's_mov_b32 s36, {f32bits(1.0/1024)}')
    a(f's_mov_b32 s37, {f32bits(1e-5)}')
    for r in range(4): a(f'v_mul_f32 v{FR+r}, s36, v{FR+r}')
    for q in (0, 2): a(f'v_fma_f32 v{FR+q+1}, -v{FR+q}, v{FR+q}, v{FR+q+1}')
    for q in (0, 2): a(f'v_max_f32 v{FR+q+1}, 0, v{FR+q+1}')
    for q in (0, 2): a(f'v_add_f32 v{FR+q+1}, s37, v{FR+q+1}')
    a(f'v_rsq_f32 v{FR+6}, v{FR+1}')
    a(f'v_rsq_f32 v{FR+7}, v{FR+3}')
    a(f'v_sub_f32 v{FR+4}, 0, v{FR}')
    a(f'v_sub_f32 v{FR+5}, 0, v{FR+2}')
    a('s_lshl_b32 s36, s3, 7')
    a(f's_add_u32 s36, s36, {S}')
    a('v_lshlrev_b32 v3, 3, v1')
    a('v_add_u32 v3, s36, v3')
    a(f'ds_write_b64 v3, v[{FR+4}:{FR+5}]')
    a(f'ds_write_b64 v3, v[{FR+6}:{FR+7}] offset:512')
    a('s_waitcnt lgkmcnt(0)')

def gemm_loader(a, c):
    n = c.name; R, U, T, lead, npw = c.R, c.U, c.T, c.lead, c.npanel
    stamp(a, 0)
    a('v_lshlrev_b32 v8, 4, v0')
    a('s_lshl_b32 s44, s3, 11')
    a(f's_mul_i32 s40, s26, {U * 8192}')
    a('s_add_u32 s40, s40, s10')
    a(f's_add_u32 s40, s40, {c.xoff}')
    a('s_add_u32 s40, s40, s44')
    a(f's_mul_i32 s45, s3, {npw * 1024}')
    a(f's_mul_i32 s41, s27, {U * c.NF * 1024}')
    a(f's_add_u32 s41, s41, {c.woff}')
    if c.half:
        a('s_lshl_b32 s46, s3, 9')
        a(f's_add_u32 s46, s46, {12 * 1024}')
        a('s_add_u32 s42, s41, s46')
        a('s_add_u32 s46, s46, 8192')
    a('s_add_u32 s41, s41, s45')
    a('s_add_u32 s45, s45, 8192')
    def issue_w(slot, first=False):
        if not first:
            a(f's_add_u32 m0, {slot}, s45')
            a('s_nop 0')
        for p in range(npw): a(f'buffer_load_dwordx4 v8, s[16:19], s41 offen offset:{p*1024}{SC} lds')
        if c.half:
            a(f's_add_u32 m0, {slot}, s46')
            a('s_mov_b32 exec_hi, 0')
            a(f'buffer_load_dwordx4 v8, s[16:19], s42 offen{SC} lds')
            a('s_mov_b32 exec_hi, -1')
            a(f's_add_u32 s42, s42, {c.NF*1024}')
        a(f's_add_u32 s41, s41, {c.NF*1024}')
    def issue_x(slot):
        a(f's_add_u32 m0, {slot}, s44')
        a('s_nop 0')
        a(f'buffer_load_dwordx4 v8, s[16:19], s40 offen{SC} lds')
        a(f'buffer_load_dwordx4 v8, s[16:19], s40 offen offset:1024{SC} lds')
        a('s_add_u32 s40, s40, 8192')
    def issue(first=False):
        issue_w('s43', first); issue_x('s43')
        a(f's_add_u32 s43, s43, {c.UB}')
        a(f's_cmp_eq_u32 s43, {c.UB*R}')
        a('s_cselect_b32 s43, 0, s43')
    if c is C_WO:
        a('s_cmp_lg_u32 s10, 0')
        a(f's_cbranch_scc1 {n}_pk_ok')
        a(f's_mov_b32 s47, {WS_PKF}')
        spin_global(a, n + '_pk', 's47', 4, n4=4)
    for u in range(lead): issue_w(u * c.UB)
    stamp(a, 1)
    if c is C_QKV:
        a('s_cmp_eq_u32 s10, 0')
        a(f's_cbranch_scc1 {n}_go')
    handoff(a, n, c.ph - 1, 's26', 's27', 's26')
    stamp(a, 2)
    for u in range(lead): issue_x(u * c.UB)
    a(f's_mov_b32 s43, {lead * c.UB}')
    nl = c.nload
    q = [u for u in range(lead) for _ in range(2)]
    def wait_units(last, extra=0):
        k = max([i for i, t in enumerate(q) if t <= last], default=-1)
        a(f's_waitcnt vmcnt({len(q) - 1 - k + extra})')
        del q[:k + 1]
    wait_units(1)
    a('s_barrier')
    stamp(a, 3)
    issued = lead; t = 0
    while 2 * t + 4 < lead + 0:
        for _ in range(2): issue(); q += [issued] * nl; issued += 1
        wait_units(2 * t + 3); a('s_barrier'); t += 1
    nfull = (U - issued) // 2
    a(f's_mov_b32 s50, {nfull}')
    a('s_add_u32 m0, s43, s45')
    a(f's_branch {n}_lbody')
    a(f'{n}_lhead:')
    a(f's_waitcnt vmcnt({(lead-2)*nl})')
    a('s_barrier')
    a(f'{n}_lbody:')
    issue(first=True); issue()
    a('s_add_u32 m0, s43, s45')
    a('s_sub_u32 s50, s50, 1')
    a('s_cmp_lg_u32 s50, 0')
    a(f's_cbranch_scc1 {n}_lhead')
    issued += 2 * nfull; t += nfull - 1
    assert issued == U
    extra = stats_issue(a, c) if c.kind != 'res' else 0
    while t < T:
        if t == T - 1 and c.kind != 'res': stats_finish(a, c)
        else: a(f's_waitcnt vmcnt({max(0, issued - (2*t+4))*nl + extra})')
        a('s_barrier'); t += 1
    stamp(a, 4)
    prof_flush(a, c.ph, 0)

def mfma(d, x, y): return f'v_mfma_f32_16x16x32_bf16 v[{d}:{d+3}], v[{x}:{x+3}], v[{y}:{y+3}], v[{d}:{d+3}]'
def wrapmask(nsteps, period):
    m = 0
    for i in range(nsteps):
        if (i + 1) % period == 0: m |= 1 << i
    return m

def gemm_consumer(a, c):
    n = c.name; R, U, T = c.R, c.U, c.T
    res = c.kind == 'res'
    NW = {'qkv': 6, 'w1': 8, 'res': 2}[c.kind]
    tiles = [(m, t) for t in range(min(NW, 6)) for m in range(4)]
    if c.kind == 'w1': tiles += [(m, t) for t in (6, 7) for m in range(2)]
    nsub = 2 if res else 1
    VX, VW = 4, 6
    FR = 16
    fset = nsub * (4 + NW) * 4
    ACC = FR + 2 * fset
    accmap = {mt: ACC + 4 * i for i, mt in enumerate(sorted(tiles))}
    c.vgpr = ACC + 4 * len(tiles)
    acc = lambda m, t: accmap[(m, t)]
    xf = lambda st, si, m: FR + st * fset + (si * (4 + NW) + m) * 4
    wf = lambda st, si, t: FR + st * fset + (si * (4 + NW) + 4 + t) * 4
    S = STAT
    stamp(a, 0)
    a('v_lshlrev_b32 v8, 4, v0')
    a('v_and_b32 v1, 15, v0')
    a('v_lshrrev_b32 v2, 4, v0')
    a('s_lshl_b32 s34, s32, 12')
    if c.kind == 'w1':
        a('s_lshl_b32 s35, s33, 11')
        a('s_add_u32 s34, s34, s35')
        a(f'v_add_u32 v{VX}, s34, v8')
        a(f'v_xor_b32 v{VX+1}, 2048, v{VX}')
        xsrc = lambda m: (VX + (m >> 1), (m & 1) * 1024)
        addr_regs = [VX, VX + 1, VW, VW + 1]
    else:
        a(f'v_add_u32 v{VX}, s34, v8')
        xsrc = lambda m: (VX, m * 1024)
        addr_regs = [VX, VW]
    a('s_lshl_b32 s34, s33, 11')
    a('s_add_u32 s34, s34, 8192')
    a(f'v_add_u32 v{VW}, s34, v8')
    if c.half: a(f'v_add_u32 v{VW+1}, {8192 + 12*1024}, v8')
    wsrc = lambda t: (VW, (t >> 1) * 4096 + (t & 1) * 1024) if t < 6 else (VW + 1, (t & 1) * 1024)
    if res:
        a('s_lshl_b32 s36, s26, 5')
        a('s_lshl_b32 s37, s27, 1')
        a('s_add_u32 s36, s36, s37')
        a('s_add_u32 s36, s36, s33')
        a('s_lshl_b32 s36, s36, 13')
        a('s_lshl_b32 s37, s32, 12')
        a('s_add_u32 s36, s36, s37')
        a('s_add_u32 s36, s36, s10')
        a(f's_add_u32 s37, s36, {c.roff}')
        for m in range(4):
            a(f'buffer_load_dwordx4 v[{FR+4*m}:{FR+4*m+3}], v8, s[16:19], s37 offen offset:{m*1024}{SC}')
        for m in range(4):
            a(f's_waitcnt vmcnt({3-m})')
            for e in range(2):
                d = acc(m, e); r = FR + 4 * m + 2 * e
                a(f'v_lshlrev_b32 v{d}, 16, v{r}')
                a(f'v_and_b32 v{d+1}, 0xffff0000, v{r}')
                a(f'v_lshlrev_b32 v{d+2}, 16, v{r+1}')
                a(f'v_and_b32 v{d+3}, 0xffff0000, v{r+1}')
    else:
        for r in range(ACC, c.vgpr): a(f'v_mov_b32 v{r}, 0')
    def reads(st):
        out = []
        for si in range(nsub):
            ub = si * c.UB
            for m in range(4):
                reg, off = xsrc(m)
                out.append(f'ds_read_b128 v[{xf(st,si,m)}:{xf(st,si,m)+3}], v{reg} offset:{ub + off}')
            for t in range(NW):
                reg, off = wsrc(t); d = wf(st, si, t)
                out.append(f'ds_read_b128 v[{d}:{d+3}], v{reg} offset:{ub + off}')
        return out
    def mfmas(st):
        out = []
        for si in range(nsub):
            for m, t in tiles:
                if c.kind == 'qkv' and t >= 4: out.append(mfma(acc(m, t), xf(st, si, m), wf(st, si, t)))
                else: out.append(mfma(acc(m, t), wf(st, si, t), xf(st, si, m)))
        return out
    step = c.UB * nsub; period = R // nsub; nsteps = U // nsub
    mask = wrapmask(nsteps + 1, period)
    a(f's_mov_b32 s44, {mask & 0xffffffff}')
    a(f's_mov_b32 s45, {mask >> 32}')
    a(f's_mov_b32 s43, {-(period-1)*step & 0xffffffff}')
    a('s_mov_b32 s41, 0')
    pre = ['s_bitcmp1_b64 s[44:45], s41', f's_cselect_b32 s42, s43, {step}', 's_add_u32 s41, s41, 1']
    adv = [f'v_add_u32 v{r}, s42, v{r}' for r in addr_regs]
    def weave(ms, fill, at=None):
        for i, m in enumerate(ms):
            for x in (at or {}).get(i, []): a(x)
            a(m)
            for x in (fill[i] if i < len(fill) else []): a(x)
    def spread(items, ngaps):
        out = [[] for _ in range(ngaps)]
        extra = max(0, len(items) - ngaps); k = 0
        for i in range(ngaps):
            cnt = 2 if i < extra else 1
            out[i] = items[k:k + cnt]; k += cnt
        assert k >= len(items)
        return out
    a('s_barrier')
    stamp(a, 1)
    for x in pre: a(x)
    for r in reads(0): a(r)
    for x in adv: a(x)
    nm = len(tiles) * nsub
    if not res:
        a('s_waitcnt lgkmcnt(0)')
        a(f'.p2align 6\n{n}_cloop:')
        weave(mfmas(0), spread(reads(1) + pre + adv, nm - 3), at={nm - 1: ['s_waitcnt lgkmcnt(0)', 's_barrier']})
        f = spread(reads(0) + pre + adv, nm - 4)
        f += [[f's_cmp_lt_u32 s41, {nsteps + 1}'], [], ['s_waitcnt lgkmcnt(0)'], [f's_cbranch_scc1 {n}_cloop']]
        weave(mfmas(1), f)
    else:
        a(f'.p2align 6\n{n}_cloop:')
        a('s_waitcnt lgkmcnt(0)')
        a('s_barrier')
        weave(mfmas(0), spread(reads(1) + pre + adv, nm))
        a('s_waitcnt lgkmcnt(0)')
        a(f's_cmp_lt_u32 s41, {nsteps}')
        a('s_barrier')
        a(f's_cbranch_scc0 {n}_clast')
        weave(mfmas(1), spread(reads(0) + pre + adv, nm))
        a(f's_branch {n}_cloop')
        a(f'{n}_clast:')
        weave(mfmas(1), [])
    stamp(a, 2)
    if res:
        for m in range(4):
            d = FR + 4 * m
            for e in range(2):
                s_ = acc(m, e)
                a(f'v_cvt_pk_bf16_f32 v{d+2*e}, v{s_}, v{s_+1}')
                a(f'v_cvt_pk_bf16_f32 v{d+2*e+1}, v{s_+2}, v{s_+3}')
        if c is C_W2:
            a('s_cmp_lg_u32 s10, 0')
            a(f's_cbranch_scc1 {n}_final')
        a(f's_add_u32 s36, s36, {c.ooff}')
        for m in range(4):
            a(f'buffer_store_dwordx4 v[{FR+4*m}:{FR+4*m+3}], v8, s[16:19], s36 offen offset:{m*1024}{SC}')
        SQ = FR + 16
        a('v_mov_b32 v3, 0x3f803f80')
        for r in range(8): a(f'v_mov_b32 v{SQ+r}, 0')
        for r in range(4):
            for m in range(4):
                a(f'v_dot2c_f32_bf16 v{SQ+m}, v{FR+4*m+r}, v3')
                a(f'v_dot2c_f32_bf16 v{SQ+4+m}, v{FR+4*m+r}, v{FR+4*m+r}')
        for b in (0, 4):
            a(f'v_permlane32_swap_b32 v{SQ+b}, v{SQ+b+1}')
            a(f'v_permlane32_swap_b32 v{SQ+b+2}, v{SQ+b+3}')
        for b in (0, 4):
            a(f'v_add_f32 v{SQ+b}, v{SQ+b}, v{SQ+b+1}')
            a(f'v_add_f32 v{SQ+b+2}, v{SQ+b+2}, v{SQ+b+3}')
        for b in (0, 4): a(f'v_permlane16_swap_b32 v{SQ+b}, v{SQ+b+2}')
        a(f'v_add_f32 v{SQ}, v{SQ}, v{SQ+2}')
        a(f'v_add_f32 v{SQ+1}, v{SQ+4}, v{SQ+6}')
        a('v_and_b32 v13, 1, v2')
        a('v_lshrrev_b32 v14, 1, v2')
        a('v_lshl_add_u32 v13, v13, 1, v14')
        a('v_lshl_add_u32 v13, v13, 4, v1')
        a('v_lshlrev_b32 v13, 3, v13')
        a('s_lshl_b32 s37, s26, 5')
        a('s_lshl_b32 s38, s27, 1')
        a('s_add_u32 s37, s37, s38')
        a('s_add_u32 s37, s37, s33')
        a('s_lshl_b32 s37, s37, 10')
        a('s_lshl_b32 s38, s32, 9')
        a('s_add_u32 s37, s37, s38')
        a('s_add_u32 s37, s37, s10')
        a(f's_add_u32 s37, s37, {c.spoff}')
        a(f'buffer_store_dwordx2 v[{SQ}:{SQ+1}], v13, s[16:19], s37 offen{SC}')
        signal(a, c.ph, 's26', 's27')
        prof_flush(a, c.ph, 1)
        if c is C_W2:
            c.final = lambda: final_store(a, c, FR)
        return
    a('s_lshl_b32 s34, s32, 8')
    a(f's_add_u32 s34, s34, {S}')
    a('v_lshlrev_b32 v3, 2, v1')
    if c.kind == 'w1':
        a('s_lshl_b32 s35, s33, 7')
        a('s_add_u32 s35, s35, s34')
        a('v_add_u32 v3, s35, v3')
        a('v_xor_b32 v14, 128, v3')
        msrc = lambda m: (3 if m < 2 else 14, (m & 1) * 64)
    else:
        a('v_add_u32 v3, s34, v3')
        msrc = lambda m: (3, m * 64)
    for m in range(4):
        r, o = msrc(m)
        a(f'ds_read_b32 v{FR+2*m}, v{r} offset:{o}')
        a(f'ds_read_b32 v{FR+2*m+1}, v{r} offset:{512 + o}')
    CS = FR + 8
    a('v_lshlrev_b32 v13, 4, v2')
    a(f'v_add_u32 v13, {S + 1024}, v13')
    a('s_lshl_b32 s35, s33, 7')
    a('v_add_u32 v15, s35, v13')
    def fold(d, cs, st, tmp):
        for h in range(2):
            a(f'v_pk_fma_f32 v[{d+2*h}:{d+2*h+1}], v[{cs+2*h}:{cs+2*h+1}], v[{st}:{st+1}], v[{d+2*h}:{d+2*h+1}] op_sel:[0,0,0] op_sel_hi:[1,0,1]')
        for h in range(2):
            a(f'v_pk_mul_f32 v[{d+2*h}:{d+2*h+1}], v[{d+2*h}:{d+2*h+1}], v[{st}:{st+1}] op_sel:[0,1] op_sel_hi:[1,1]')
        a(f'v_cvt_pk_bf16_f32 v{tmp}, v{d}, v{d+1}')
        a(f'v_cvt_pk_bf16_f32 v{tmp+1}, v{d+2}, v{d+3}')
    if c.kind == 'w1':
        for t in range(6): a(f'ds_read_b128 v[{CS+4*t}:{CS+4*t+3}], v15 offset:{(t>>1)*256 + (t&1)*64}')
        for t in (6, 7): a(f'ds_read_b128 v[{CS+4*t}:{CS+4*t+3}], v13 offset:{768 + (t&1)*64}')
        a('s_mul_i32 s36, s26, 112')
        a('s_mul_i32 s37, s27, 7')
        a('s_add_u32 s36, s36, s37')
        a('s_add_u32 s37, s36, s33')
        a('s_add_u32 s38, s36, 6')
        a('s_lshl_b32 s37, s37, 13')
        a('s_lshl_b32 s38, s38, 13')
        a('s_lshl_b32 s36, s32, 12')
        a('s_add_u32 s36, s36, s10')
        a(f's_add_u32 s36, s36, {c.ooff}')
        a('s_add_u32 s37, s37, s36')
        a('s_add_u32 s38, s38, s36')
        a('s_lshl_b32 s35, s33, 11')
        a('v_add_u32 v3, s35, v8')
        a('v_xor_b32 v14, 2048, v3')
        a('s_waitcnt lgkmcnt(0)')
        TM = CS + 32
        k = 0
        for p in range(4):
            for m in range(4 if p < 3 else 2):
                d = TM + 4 * (k % 4); k += 1
                for e in range(2): fold(acc(m, 2 * p + e), CS + 4 * (2 * p + e), FR + 2 * m, d + 2 * e)
                for r in range(4): a(f'v_pk_max_i16 v{d+r}, v{d+r}, 0')
                a(f'buffer_store_dwordx4 v[{d}:{d+3}], v{3 if m < 2 else 14}, s[16:19], {"s37" if p < 3 else "s38"} offen offset:{(m&1)*1024}{SC}')
            if p < 2: a(f's_add_u32 s37, s37, {2*8192}')
        signal(a, c.ph, 's26', 's27')
        prof_flush(a, c.ph, 1)
        return
    for t in range(4): a(f'ds_read_b128 v[{CS+4*t}:{CS+4*t+3}], v15 offset:{(t>>1)*256 + (t&1)*64}')
    a('v_lshlrev_b32 v14, 2, v1')
    a('v_add_u32 v14, s35, v14')
    a(f'v_add_u32 v14, {S + 1024 + 512}, v14')
    CV = CS + 16
    a(f'ds_read_b32 v{CV}, v14')
    a(f'ds_read_b32 v{CV+1}, v14 offset:64')
    a('v_lshlrev_b32 v14, 4, v2')
    a('v_add_u32 v14, s34, v14')
    MV = CV + 4
    a('s_waitcnt lgkmcnt(6)')
    for m in range(4):
        a(f'ds_read_b128 v[{MV+8*m}:{MV+8*m+3}], v14 offset:{m*64}')
        a(f'ds_read_b128 v[{MV+8*m+4}:{MV+8*m+7}], v14 offset:{512 + m*64}')
    TM = MV + 32
    assert TM + 16 <= ACC
    a('v_lshlrev_b32 v3, 4, v1')
    a('v_lshl_add_u32 v3, v2, 9, v3')
    a('v_and_b32 v13, 8, v1')
    a('v_lshl_add_u32 v15, v13, 4, v3')
    a('s_lshl_b32 s34, s27, 1')
    a('s_add_u32 s34, s34, s33')
    a('s_lshl_b32 s35, s26, 2')
    a('s_lshl_b32 s36, s32, 1')
    a('s_add_u32 s35, s35, s36')
    a('s_lshl_b32 s36, s34, 17')
    a('s_lshl_b32 s37, s35, 11')
    a('s_add_u32 s36, s36, s37')
    a('s_lshl_b32 s37, s36, 1')
    a('s_add_u32 s37, s37, s10')
    a(f's_add_u32 s37, s37, {L_KVF}')
    a('s_add_u32 s38, s37, 4096')
    a('s_add_u32 s36, s36, s10')
    assert L_QF == 0
    a(f's_mov_b32 s39, {f32bits(QSCALE)}')
    a('s_waitcnt lgkmcnt(0)')
    k = 0
    for m in range(4):
        d = TM + 4 * (k % 4); k += 1
        for e in range(2): fold(acc(m, 2 + e), CS + 4 * (2 + e), FR + 2 * m, d + 2 * e)
        a(f'buffer_store_dwordx4 v[{d}:{d+3}], v15, s[16:19], {"s37" if m < 2 else "s38"} offen offset:{(m&1)*128}{SC}')
    for tp in range(2):
        for e in range(2):
            d = TM + 4 * (k % 4); k += 1
            for mm in range(2):
                m = 2 * tp + mm; s_ = acc(m, 4 + e)
                for h in range(2):
                    a(f'v_pk_fma_f32 v[{s_+2*h}:{s_+2*h+1}], v[{MV+8*m+2*h}:{MV+8*m+2*h+1}], v[{CV}:{CV+1}], v[{s_+2*h}:{s_+2*h+1}] op_sel:[0,{e},0] op_sel_hi:[1,{e},1]')
                for h in range(2):
                    a(f'v_pk_mul_f32 v[{s_+2*h}:{s_+2*h+1}], v[{s_+2*h}:{s_+2*h+1}], v[{MV+8*m+4+2*h}:{MV+8*m+5+2*h}]')
                a(f'v_cvt_pk_bf16_f32 v{d+2*mm}, v{s_}, v{s_+1}')
                a(f'v_cvt_pk_bf16_f32 v{d+2*mm+1}, v{s_+2}, v{s_+3}')
            a(f'buffer_store_dwordx4 v[{d}:{d+3}], v3, s[16:19], {"s37" if tp == 0 else "s38"} offen offset:{2048 + e*256}{SC}')
    for m in range(4): a(f'v_mul_f32 v{FR+2*m+1}, s39, v{FR+2*m+1}')
    for m in range(4):
        d = TM + 4 * (k % 4); k += 1
        for e in range(2): fold(acc(m, e), CS + 4 * e, FR + 2 * m, d + 2 * e)
        a(f'buffer_store_dwordx4 v[{d}:{d+3}], v3, s[16:19], s36 offen offset:{(m>>1)*2048 + (m&1)*256}{SC}')
    signal(a, c.ph, 's27', 's26')
    prof_flush(a, c.ph, 1)

def final_store(a, c, FR):
    a(f'{c.name}_final:')
    a('s_mov_b32 s20, s8')
    a('s_mov_b32 s21, s9')
    a(f's_mov_b32 s22, {2048*2048}')
    a('s_mov_b32 s23, 0x20000')
    a('v_and_b32 v3, 1, v2')
    a('v_lshlrev_b32 v3, 5, v3')
    a('v_lshrrev_b32 v13, 1, v2')
    a('v_lshl_add_u32 v3, v13, 4, v3')
    a('v_lshl_add_u32 v3, v1, 11, v3')
    a('s_lshl_b32 s36, s26, 18')
    a('s_lshl_b32 s37, s32, 17')
    a('s_add_u32 s36, s36, s37')
    a('s_lshl_b32 s37, s27, 7')
    a('s_add_u32 s36, s36, s37')
    a('s_lshl_b32 s37, s33, 6')
    a('s_add_u32 s36, s36, s37')
    for m in range(4):
        d = FR + 4 * m
        a(f'v_permlane16_swap_b32 v{d}, v{d+2}')
        a(f'v_permlane16_swap_b32 v{d+1}, v{d+3}')
        if m: a('s_add_u32 s36, s36, 32768')
        a(f'buffer_store_dwordx4 v[{d}:{d+3}], v3, s[20:23], s36 offen{SC}')
    stamp(a, 3)
    if dsl.PROF: a('s_waitcnt vmcnt(0)')
    stamp(a, 4)
    prof_flush(a, c.ph, 1)
    a('s_endpgm')

import pack
pack.WS_PQ, pack.WS_PO, pack.WS_P1, pack.WS_P2, pack.WS_CSQ, pack.WS_CS1 = WS_PQ, WS_PO, WS_P1, WS_P2, WS_CSQ, WS_CS1
RING = 4 * 32768
Q, KB, VB, P, ONES, L, IDX, O, CI, S_ = (8, 16), (24, 32), (40, 48), 56, 64, (68, 72), 76, (80, 96), (112, 128), (144, 160)
VA, VBASE = 4, 5
def m32(d, x, y, c): return f'v_mfma_f32_32x32x16_bf16 v[{d}:{d+15}], v[{x}:{x+3}], v[{y}:{y+3}], ' + (f'v[{c}:{c+15}]' if c is not None else '0')
def sm(d): return f'v_smfmac_f32_16x16x64_bf16 v[{d}:{d+3}], v[{ONES}:{ONES+3}], v[{P}:{P+7}], v{IDX}'

def attn_loader(a):
    n = 'at'
    stamp(a, 0)
    a('v_lshlrev_b32 v2, 4, v0')
    a('s_lshr_b32 s28, s3, 1')
    a('s_and_b32 s29, s3, 1')
    a('s_lshl_b32 s12, s27, 1')
    a('s_add_u32 s12, s12, s28')
    a('s_lshl_b32 s12, s12, 18')
    a('s_lshl_b32 s13, s29, 13')
    a('s_add_u32 s12, s12, s13')
    a('s_add_u32 s12, s12, s10')
    a(f's_add_u32 s12, s12, {L_KVF}')
    a('s_lshl_b32 s15, s3, 13')
    def issue_chunk():
        a('s_mov_b32 m0, s15')
        a('s_add_u32 s14, s12, 4096')
        for i in range(4): a(f'buffer_load_dwordx4 v2, s[16:19], s12 offen offset:{i*1024}{SC} lds')
        a('s_add_u32 m0, s15, 4096')
        a('s_add_u32 s12, s12, 16384')
        for i in range(4): a(f'buffer_load_dwordx4 v2, s[16:19], s14 offen offset:{i*1024}{SC} lds')
        a('s_add_u32 s15, s15, 32768')
        a(f's_and_b32 s15, s15, {RING-1}')
    stamp(a, 1)
    handoff(a, n, 0, 's27', 's26', 's27')
    stamp(a, 2)
    issue_chunk(); issue_chunk()
    a('s_waitcnt vmcnt(8)')
    a('s_barrier')
    stamp(a, 3)
    issue_chunk()
    a('s_cmp_eq_u32 s10, 0')
    a(f's_cbranch_scc1 {n}_ldpack')
    a('s_mov_b32 s20, 13')
    a(f'{n}_lloop:')
    issue_chunk()
    a('s_waitcnt vmcnt(16)')
    a('s_barrier')
    a('s_sub_u32 s20, s20, 1')
    a('s_cmp_lg_u32 s20, 0')
    a(f's_cbranch_scc1 {n}_lloop')
    a('s_waitcnt vmcnt(8)')
    a('s_barrier')
    a('s_waitcnt vmcnt(0)')
    a('s_barrier')
    a(f's_branch {n}_lend')
    a(f'{n}_ldpack:')
    PK = 8
    a('s_mov_b32 s35, 0x20000')
    a('s_lshl_b32 s45, s3, 12')
    a(f's_add_u32 s45, s45, {RING}')
    a('s_cmp_lt_u32 s2, 32')
    a(f's_cbranch_scc1 {n}_pk_wo')
    a('s_cmp_lt_u32 s2, 144')
    a(f's_cbranch_scc1 {n}_pk_w1')
    a('s_sub_u32 s46, s2, 144')
    a('s_lshr_b32 s47, s46, 4')
    a('s_and_b32 s46, s46, 15')
    pack.decode(a, 32, 'w2', 's46', 's47', 's3', ('s62', 's63'), 4)
    a(f's_branch {n}_pk1')
    a(f'{n}_pk_wo:')
    a('s_lshr_b32 s47, s2, 4')
    a('s_and_b32 s46, s2, 15')
    pack.decode(a, 32, 'wo', 's46', 's47', 's3', ('s56', 's57'), 4)
    a(f's_branch {n}_pk1')
    a(f'{n}_pk_w1:')
    a('s_cmp_ge_u32 s2, 88')
    a('s_cselect_b32 s47, 1, 0')
    a('s_cselect_b32 s46, 88, 32')
    a('s_sub_u32 s46, s2, s46')
    pack.decode(a, 32, 'w1', 's46', 's47', 's3', ('s60', 's61'), 4)
    a(f'{n}_pk1:')
    pack.setup(a, 32, 0, PK, 's45')
    q = [('c', 1)] * 8 + [('c', 2)] * 8
    def need(tag):
        last = max([i for i, t in enumerate(q) if t == tag], default=-1)
        a(f's_waitcnt vmcnt({len(q) - 1 - last})')
        del q[:last + 1]
    LOADS = {0: 0, 3: 1, 6: 2, 9: 3}
    FINS = {3: 0, 6: 1, 9: 2, 12: 3}
    for e in range(15):
        if e + 3 < 16: issue_chunk(); q += [('c', e + 3)] * 8
        if e in FINS:
            u = FINS[e]
            need(('p', u))
            pack.finish1(a, 32, 2, PK, 's[16:19]', st=SC, flip=None); q += [('s', u)] * 4
        if e in LOADS:
            pack.issue1(a, 32, PK, wrap=('s45', True)); q += [('p', LOADS[e])] * 4
        if e == 13:
            a('s_cmp_eq_u32 s41, 0')
            a(f's_cbranch_scc1 {n}_nocs')
            pack.colsum1(a, 32, 0, PK, 's[16:19]', st=SC)
            a(f'{n}_nocs:')
        if e == 14:
            a('s_lshl_b32 s46, s2, 4')
            a('s_lshl_b32 s47, s3, 2')
            a('s_add_u32 s46, s46, s47')
            a(f's_add_u32 s46, s46, {WS_PKF}')
            a('v_mov_b32 v3, 0')
            a('v_mov_b32 v1, 1')
            a('s_waitcnt vmcnt(0)'); q.clear()
            a('s_mov_b64 exec, 1')
            a(f'buffer_store_dword v1, v3, s[16:19], s46 offen{SC}')
            a('s_mov_b64 exec, -1')
        else:
            need(('c', e + 1))
        a('s_barrier')
    a(f'{n}_lend:')
    a('s_barrier')
    stamp(a, 4)
    prof_flush(a, 1, 0)

def attn_consumer(a):
    n = 'at'; S = S_
    stamp(a, 0)
    a('v_lshlrev_b32 v2, 4, v0')
    a('s_lshl_b32 s28, s27, 1')
    a('s_add_u32 s28, s28, s33')
    a('s_lshl_b32 s12, s26, 2')
    a('s_lshl_b32 s13, s32, 1')
    a('s_add_u32 s12, s12, s13')
    a('s_lshl_b32 s13, s28, 17')
    a('s_lshl_b32 s14, s12, 11')
    a('s_add_u32 s13, s13, s14')
    a('s_add_u32 s13, s13, s10')
    for i in range(4): a(f'buffer_load_dwordx4 v[{Q[0]+4*i}:{Q[0]+4*i+3}], v2, s[16:19], s13 offen offset:{i*1024}{SC}')
    a('v_lshrrev_b32 v3, 2, v0')
    a('v_mov_b32 v6, 0x3f803f80')
    a('v_and_b32 v1, 1, v3')
    a('v_cmp_eq_u32 vcc, 0, v1')
    a(f'v_cndmask_b32 v{ONES}, 0, v6, vcc')
    a(f'v_mov_b32 v{ONES+1}, v{ONES}')
    a(f'v_xor_b32 v{ONES+2}, v6, v{ONES}')
    a(f'v_mov_b32 v{ONES+3}, v{ONES+2}')
    a('v_and_b32 v1, 1, v0')
    a('v_cmp_eq_u32 vcc, 0, v1')
    a('v_mov_b32 v6, 0x44444444')
    a('v_mov_b32 v7, 0xeeeeeeee')
    a(f'v_cndmask_b32 v{IDX}, v7, v6, vcc')
    for r in list(range(L[0], L[0] + 8)) + list(range(O[0], O[0] + 32)) + list(range(P, P + 8)) + list(range(VB[1] + 4, VB[1] + 8)):
        a(f'v_mov_b32 v{r}, 0')
    a('s_lshl_b32 s14, s33, 14')
    a(f'v_add_u32 v{VBASE}, s14, v2')
    a(f'v_mov_b32 v{VA}, v{VBASE}')
    a('s_mov_b32 s20, 0')
    a('s_mov_b32 s21, 0')
    a('s_waitcnt vmcnt(0)')
    a('s_barrier')
    stamp(a, 1)
    def rd(dst, off): a(f'ds_read_b128 v[{dst}:{dst+3}], v{VA} offset:{off}')
    rd(KB[0], 0); rd(KB[0] + 4, 1024); rd(VB[0], 2048); rd(VB[0] + 4, 3072)
    a('s_waitcnt lgkmcnt(2)')
    for qi in range(2):
        a(m32(S[qi], KB[0], Q[qi], None))
        a(m32(S[qi], KB[0] + 4, Q[qi] + 4, S[qi]))
    for qi in range(2):
        s_, t_ = S[qi], 6 + qi
        a(f'v_max3_f32 v{t_}, v{s_}, v{s_+1}, v{s_+2}')
        for r in range(3, 15, 2): a(f'v_max3_f32 v{t_}, v{t_}, v{s_+r}, v{s_+r+1}')
        a(f'v_max_f32 v{t_}, v{t_}, v{s_+15}')
    a('v_mov_b32 v1, v6')
    a('v_mov_b32 v3, v7')
    a('v_permlane32_swap_b32 v6, v1')
    a('v_permlane32_swap_b32 v7, v3')
    a('v_max_f32 v6, v6, v1')
    a('v_max_f32 v7, v7, v3')
    for r in range(16): a(f'v_sub_f32 v{CI[0]+r}, 0, v6')
    a(m32(S[0], KB[0], Q[0], CI[0]))
    a(m32(S[0], KB[0] + 4, Q[0] + 4, S[0]))
    for r in range(16): a(f'v_sub_f32 v{CI[1]+r}, 0, v7')
    a('s_waitcnt lgkmcnt(0)')
    a('s_nop 0')
    a(f'.p2align 6\n{n}_loop:')
    for kt in range(4):
        for qi in range(2):
            sa, sb = S[qi], S[1 - qi]
            E = lambda *r: [a(f'v_exp_f32 v{sa+i}, v{sa+i}') for i in r]
            C = lambda *r: [a(f'v_cvt_pk_bf16_f32 v{P+i}, v{sa+2*i}, v{sa+2*i+1}') for i in r]
            kn = KB[kt % 2] if qi == 0 else KB[(kt + 1) % 2]
            vp = VB[(kt + 1) % 2] if qi == 0 else VB[kt % 2]
            nb = (kt + 1) % 2; off = ((kt + 1) % 4) * 4096
            f = [[] for _ in range(5)]
            if qi == 0:
                f[0] = [('rd', KB[nb], off)]; f[1] = [('rd', KB[nb] + 4, off + 1024)]
                f[2] = [('rd', VB[nb] + 4, off + 3072)]; f[3] = [('rd', VB[nb], off + 2048)]
                f[4] = ['s_waitcnt lgkmcnt(2)']
            else:
                f[1] = ['s_waitcnt lgkmcnt(0)']
                if kt == 1:
                    f[0] = ['s_add_u32 s21, s21, 32768']; f[2] = [f's_and_b32 s21, s21, {RING-1}']
                    f[3] = ['s_add_u32 s20, s20, 1']
                if kt == 2: f[3] = ['s_barrier', f'v_add_u32 v{VA}, s21, v{VBASE}']
                if kt == 3: f[0] = ['s_cmp_lg_u32 s20, 16']
            def F(i):
                for x in f[i]:
                    if isinstance(x, tuple): rd(x[1], x[2])
                    else: a(x)
            a(m32(sb, kn, Q[1 - qi], CI[1 - qi])); F(0); E(0, 1, 2)
            a(sm(L[1 - qi])); F(1); E(3, 4, 5)
            a(m32(O[1 - qi], vp + 4, P + 4, O[1 - qi])); F(2); E(6, 7); C(0, 1)
            a(m32(sb, kn + 4, Q[1 - qi] + 4, sb)); F(3); C(2, 3); E(8, 9)
            a(m32(O[qi], VB[kt % 2], P, O[qi])); F(4); E(10, 11, 12, 13, 14, 15); C(4, 5, 6, 7)
    a(f's_cbranch_scc1 {n}_loop')
    stamp(a, 2)
    a(sm(L[1]))
    a(m32(O[1], VB[1] + 4, P + 4, O[1]))
    for qi in range(2): a(f'v_add_f32 v{L[qi]}, v{L[qi]}, v{L[qi]+1}')
    a(f'v_add_f32 v1, v{L[0]}, v{L[1]}')
    for r in range(0, 32, 2): a(f'v_pk_fma_f32 v[6:7], v[{O[0]+r}:{O[0]+r+1}], 0, v[6:7]' if r else f'v_pk_mul_f32 v[6:7], v[{O[0]}:{O[0]+1}], 0')
    a('v_add_f32 v1, v1, v6')
    a('v_add_f32 v1, v1, v7')
    a(f's_mov_b32 s23, {f32bits(2.0**100)}')
    a('v_cmp_ngt_f32 vcc, s23, v1')
    a(f's_cbranch_vccnz {n}_slow')
    a(f'{n}_fin:')
    a(f'v_rcp_f32 v6, v{L[0]}')
    a(f'v_rcp_f32 v7, v{L[1]}')
    a('v_and_b32 v3, 15, v0')
    a('v_lshlrev_b32 v3, 4, v3')
    a('v_lshrrev_b32 v1, 5, v0')
    a('v_lshl_add_u32 v3, v1, 8, v3')
    a('v_bfe_u32 v1, v0, 4, 1')
    a('v_lshl_add_u32 v3, v1, 10, v3')
    a('s_lshl_b32 s24, s26, 5')
    a('s_add_u32 s24, s24, s28')
    a('s_lshl_b32 s24, s24, 13')
    a('s_lshl_b32 s25, s32, 12')
    a('s_add_u32 s24, s24, s25')
    a('s_add_u32 s24, s24, s10')
    a(f's_add_u32 s24, s24, {L_O}')
    for qi in range(2):
        for r in range(0, 16, 2):
            a(f'v_pk_mul_f32 v[{O[qi]+r}:{O[qi]+r+1}], v[{O[qi]+r}:{O[qi]+r+1}], v[6:7] op_sel:[0,{qi}] op_sel_hi:[1,{qi}]')
        for c in range(2):
            d = S[0] + 8 * qi + 4 * c
            for k, r in enumerate((4*c, 4*c + 2, 8 + 4*c, 8 + 4*c + 2)):
                a(f'v_cvt_pk_bf16_f32 v{d+k}, v{O[qi]+r}, v{O[qi]+r+1}')
            a(f'buffer_store_dwordx4 v[{d}:{d+3}], v3, s[16:19], s24 offen offset:{qi*2048 + c*512}{SC}')
    signal(a, 1, 's26', 's27')
    prof_flush(a, 1, 1)

def attn_slow(a):
    n = 'at'; S = S_
    a(f'{n}_slow:')
    M, LS, SA, KF, VF, OT = 6, 7, S[0], KB[0], VB[0], S[1]
    a('s_lshl_b32 s29, s28, 18')
    a('s_add_u32 s29, s29, s10')
    a(f's_add_u32 s29, s29, {L_KVF}')
    a('s_mov_b32 s21, 0')
    a(f'{n}_sq:')
    a(f'v_mov_b32 v{M}, {f32bits(-3.0e38)}')
    a(f'v_mov_b32 v{LS}, 0')
    for r in range(16): a(f'v_mov_b32 v{OT+r}, 0')
    a('s_mov_b32 s20, 0')
    a('s_mov_b32 s12, s29')
    a(f'{n}_sloop:')
    for i, d in enumerate((KF, KF + 4, VF, VF + 4)):
        a(f'buffer_load_dwordx4 v[{d}:{d+3}], v2, s[16:19], s12 offen offset:{i*1024}{SC}')
    a('s_add_u32 s12, s12, 4096')
    a('s_waitcnt vmcnt(0)')
    a(m32(SA, KF, Q[0], None))
    a(m32(SA, KF + 4, Q[0] + 4, SA))
    a(f'v_max3_f32 v1, v{SA}, v{SA+1}, v{SA+2}')
    for r in range(3, 15, 2): a(f'v_max3_f32 v1, v1, v{SA+r}, v{SA+r+1}')
    a(f'v_max3_f32 v1, v1, v{SA+15}, v{M}')
    a('v_mov_b32 v3, v1')
    a('v_permlane32_swap_b32 v1, v3')
    a('v_max_f32 v1, v1, v3')
    a(f'v_sub_f32 v3, v{M}, v1')
    a('v_exp_f32 v3, v3')
    a(f'v_mov_b32 v{M}, v1')
    for r in range(16): a(f'v_sub_f32 v{SA+r}, v{SA+r}, v1')
    for r in range(16): a(f'v_exp_f32 v{SA+r}, v{SA+r}')
    for r in range(16): a(f'v_mul_f32 v{OT+r}, v{OT+r}, v3')
    a(f'v_mul_f32 v{LS}, v{LS}, v3')
    for r in range(8): a(f'v_cvt_pk_bf16_f32 v{P+r}, v{SA+2*r}, v{SA+2*r+1}')
    for r in range(16): a(f'v_add_f32 v{LS}, v{LS}, v{SA+r}')
    a(m32(OT, VF, P, OT))
    a(m32(OT, VF + 4, P + 4, OT))
    a('s_add_u32 s20, s20, 1')
    a('s_cmp_lg_u32 s20, 64')
    a('s_nop 7')
    a(f's_cbranch_scc1 {n}_sloop')
    a(f'v_mov_b32 v3, v{LS}')
    a(f'v_permlane32_swap_b32 v{LS}, v3')
    a(f'v_add_f32 v{L[1]}, v{LS}, v3')
    for r in range(16): a(f'v_mov_b32 v{O[1]+r}, v{OT+r}')
    a('s_cmp_lg_u32 s21, 0')
    a(f's_cbranch_scc1 {n}_fin')
    a('s_mov_b32 s21, 1')
    a(f'v_mov_b32 v{L[0]}, v{L[1]}')
    for r in range(16): a(f'v_mov_b32 v{O[0]+r}, v{OT+r}')
    for r in range(8): a(f'v_mov_b32 v{Q[0]+r}, v{Q[1]+r}')
    a(f's_branch {n}_sq')

def main_kernel(a):
    label = 'main_kernel'
    a(f'.p2align 8\n.globl {label}\n.type {label},@function\n{label}:')
    a(f's_load_dwordx2 s[4:5], s[0:1], {KA["ws"]}')
    a(f's_load_dwordx2 s[8:9], s[0:1], {KA["out"]}')
    a(f's_load_dwordx2 s[56:57], s[0:1], {KA["wo"]}')
    a(f's_load_dwordx4 s[60:63], s[0:1], {KA["w1"]}')
    a('s_cmp_ge_u32 s2, 256')
    a('s_cbranch_scc1 main_exit')
    if dsl.PROF:
        for i in range(64, 80): a(f's_mov_b32 s{i}, 0')
    a('v_lshrrev_b32 v1, 6, v0')
    a('v_and_b32 v0, 63, v0')
    a('v_readfirstlane_b32 s3, v1')
    a('s_and_b32 s24, s2, 7')
    a('s_lshr_b32 s25, s2, 3')
    XN = 16 // NBK
    a(f's_lshr_b32 s26, s24, {log2(XN)}')
    a(f's_and_b32 s27, s24, {XN-1}')
    a(f's_lshl_b32 s26, s26, {log2(MBK)}')
    a(f's_lshl_b32 s27, s27, {log2(NBK)}')
    a(f's_and_b32 s28, s25, {MBK-1}')
    a(f's_lshr_b32 s29, s25, {log2(MBK)}')
    a('s_add_u32 s26, s26, s28')
    a('s_add_u32 s27, s27, s29')
    a(f's_mov_b32 s18, {WS_USED}')
    a('s_mov_b32 s19, 0x20000')
    a('s_mov_b32 s10, 0')
    a(f's_mov_b32 s11, {WS_FLG}')
    a('s_waitcnt lgkmcnt(0)')
    a('s_mov_b32 s16, s4')
    a('s_mov_b32 s17, s5')
    a('s_cmp_ge_u32 s3, 4')
    a('s_cbranch_scc1 main_cons')
    a('s_mov_b32 s58, 0')
    a(f'v_mov_b32 v11, {RDY}')
    a('v_mov_b32 v10, 0')
    a('ds_write_b32 v11, v10')
    a('main_lay_l:')
    gemm_loader(a, C_QKV); attn_loader(a); gemm_loader(a, C_WO); gemm_loader(a, C_W1); gemm_loader(a, C_W2)
    a('s_cmp_lg_u32 s10, 0')
    a('s_cbranch_scc1 main_exit')
    a(f's_mov_b32 s10, {LSTR}')
    a(f's_mov_b32 s11, {WS_FLG + 5*PSTR}')
    a('s_branch main_lay_l')
    a('main_exit:')
    a('s_endpgm')
    a('.p2align 6\nmain_cons:')
    a('s_setprio 2')
    a('s_sub_u32 s3, s3, 4')
    a('s_lshr_b32 s32, s3, 1')
    a('s_and_b32 s33, s3, 1')
    a('main_lay_c:')
    gemm_consumer(a, C_QKV); attn_consumer(a); gemm_consumer(a, C_WO); gemm_consumer(a, C_W1); gemm_consumer(a, C_W2)
    a(f's_mov_b32 s10, {LSTR}')
    a(f's_mov_b32 s11, {WS_FLG + 5*PSTR}')
    a('s_branch main_lay_c')
    C_W2.final()
    attn_slow(a)

GRID_PRE = 235
def pre_kernel(a):
    n = 'pre'; label = 'pre_kernel'
    a(f'.p2align 8\n.globl {label}\n.type {label},@function\n{label}:')
    a(f's_load_dwordx2 s[4:5], s[0:1], {KA["ws"]}')
    a(f's_load_dwordx2 s[6:7], s[0:1], {KA["x"]}')
    a(f's_load_dwordx2 s[8:9], s[0:1], {KA["wqkv"]}')
    a(f's_cmp_ge_u32 s2, {GRID_PRE}')
    a(f's_cbranch_scc1 {n}_exit')
    a('v_lshrrev_b32 v1, 6, v0')
    a('v_mov_b32 v30, v0')
    a('v_and_b32 v0, 63, v0')
    a('v_readfirstlane_b32 s3, v1')
    a(f's_mov_b32 s18, {WS_USED}')
    a('s_mov_b32 s19, 0x20000')
    a('s_mov_b32 s23, 0x20000')
    a('s_cmp_lt_u32 s2, 96')
    a(f's_cbranch_scc1 {n}_cs')
    a('s_cmp_ge_u32 s2, 224')
    a(f's_cbranch_scc1 {n}_fl')
    a('s_sub_u32 s24, s2, 96')
    a('v_and_b32 v1, 15, v0')
    a('v_lshrrev_b32 v2, 4, v0')
    a('v_lshlrev_b32 v3, 3, v2')
    a('v_lshl_add_u32 v3, v1, 11, v3')
    a('v_lshlrev_b32 v4, 4, v0')
    a('s_lshl_b32 s25, s24, 15')
    a('s_lshl_b32 s26, s3, 8')
    a('s_add_u32 s25, s25, s26')
    a(f's_mov_b32 s22, {2048*2048}')
    a('s_waitcnt lgkmcnt(0)')
    a('s_mov_b32 s16, s4\ns_mov_b32 s17, s5\ns_mov_b32 s20, s6\ns_mov_b32 s21, s7')
    for k in range(4):
        for u in range(2):
            a(f'buffer_load_dwordx2 v[{8+4*k+2*u}:{9+4*k+2*u}], v3, s[20:23], s25 offen offset:{k*64 + u*32}')
    a('s_lshr_b32 s26, s24, 3')
    a('s_and_b32 s27, s24, 7')
    a('s_lshl_b32 s28, s26, 5')
    a('s_lshl_b32 s29, s3, 2')
    a('s_add_u32 s29, s28, s29')
    a('s_lshl_b32 s28, s29, 3')
    a('s_add_u32 s28, s28, s27')
    a('s_lshl_b32 s28, s28, 10')
    a(f's_add_u32 s28, s28, {L_XA}')
    a('v_mov_b32 v5, 0x3f803f80')
    for r in range(8): a(f'v_mov_b32 v{32+r}, 0')
    for k in range(4):
        a(f's_waitcnt vmcnt({6 - k})')
        a(f'buffer_store_dwordx4 v[{8+4*k}:{11+4*k}], v4, s[16:19], s28 offen{SC}')
        a('s_add_u32 s28, s28, 8192')
        for r in range(4):
            a(f'v_dot2c_f32_bf16 v{32+k}, v{8+4*k+r}, v5')
            a(f'v_dot2c_f32_bf16 v{36+k}, v{8+4*k+r}, v{8+4*k+r}')
    for b in (32, 36):
        a(f'v_permlane32_swap_b32 v{b}, v{b+1}')
        a(f'v_permlane32_swap_b32 v{b+2}, v{b+3}')
    for b in (32, 36):
        a(f'v_add_f32 v{b}, v{b}, v{b+1}')
        a(f'v_add_f32 v{b+2}, v{b+2}, v{b+3}')
    for b in (32, 36): a(f'v_permlane16_swap_b32 v{b}, v{b+2}')
    a('v_add_f32 v32, v32, v34')
    a('v_add_f32 v33, v36, v38')
    a('v_and_b32 v3, 1, v2')
    a('v_lshrrev_b32 v2, 1, v2')
    a('v_lshl_add_u32 v3, v3, 1, v2')
    a('v_lshlrev_b32 v3, 10, v3')
    a('v_lshl_add_u32 v3, v1, 3, v3')
    a('s_lshl_b32 s28, s29, 10')
    a('s_lshl_b32 s29, s27, 7')
    a('s_add_u32 s28, s28, s29')
    a(f's_add_u32 s28, s28, {L_SPA}')
    a(f'buffer_store_dwordx2 v[32:33], v3, s[16:19], s28 offen{SC}')
    a(f'{n}_exit:')
    a('s_endpgm')
    a(f'{n}_fl:')
    a('s_sub_u32 s24, s2, 224')
    a('s_lshl_b32 s24, s24, 14')
    a(f's_add_u32 s24, s24, {WS_FLG}')
    a('v_lshlrev_b32 v1, 5, v30')
    for r in range(4): a(f'v_mov_b32 v{4+r}, 0')
    a('s_waitcnt lgkmcnt(0)')
    a('s_mov_b32 s16, s4\ns_mov_b32 s17, s5')
    a(f'buffer_store_dwordx4 v[4:7], v1, s[16:19], s24 offen{SC}')
    a(f'buffer_store_dwordx4 v[4:7], v1, s[16:19], s24 offen offset:16{SC}')
    a('s_endpgm')
    a(f'{n}_cs:')
    a('s_cmp_ge_u32 s2, 48')
    a('s_cselect_b32 s13, 1, 0')
    a('s_cselect_b32 s12, 48, 0')
    a('s_sub_u32 s12, s2, s12')
    a('s_lshl_b32 s14, s3, 13')
    a('v_lshlrev_b32 v4, 4, v0')
    a('s_waitcnt lgkmcnt(0)')
    a('s_mov_b32 s16, s4\ns_mov_b32 s17, s5')
    pack.decode(a, 20, 'qkv', 's12', 's13', 's3', ('s8', 's9'), 2)
    pack.issue(a, 20, 0, 1, 's14', 2)
    pack.finish(a, 20, 0, 4, 8, 's14', 's[16:19]', n, 2, st=SC, wait=lambda u: a('s_waitcnt vmcnt(4)'))
    a('s_endpgm')

def build(path):
    a = Asm()
    a('.amdgcn_target "amdgcn-amd-amdhsa--gfx950"\n.text')
    pre_kernel(a)
    main_kernel(a)
    a.finalize()
    txt = a.text() + kd('pre_kernel', 64, 64) + kd('main_kernel', 224, 102 if dsl.PROF else 64)
    hdr = open('interleave_layers__softmax_full_mha__dense_activation_relu__prompt.s.ref').read().split('; Override launch')[0]
    hdr += '; Generated by my own generator scripts (gen/mega.py).\n'
    hdr += f'; @launch kernel=pre_kernel grid=({GRID_PRE},1,1) block=(512,1,1) lds=65536\n'
    hdr += '; @launch kernel=main_kernel grid=(256,1,1) block=(512,1,1) lds=163840\n'
    open(path, 'w').write(hdr + txt)

if __name__ == '__main__':
    if len(sys.argv) > 2 and sys.argv[2] == 'prof': dsl.PROF = True
    build(sys.argv[1])
```

```python
import sys, struct
import dsl
from dsl import Asm, kd

MB_ = 1 << 20
LSTR  = 40 * MB_
L_QF, L_KVF, L_O, L_XA, L_XB, L_H, L_SPA, L_SPB = 0, 4*MB_, 12*MB_, 16*MB_, 20*MB_, 24*MB_, 38*MB_, 38*MB_ + 524288
WS_CSQ, WS_CS1 = 80*MB_, 80*MB_ + 262144
WS_FLG = 81*MB_
WS_PKF = WS_FLG - 4096
WS_PQ, WS_PO, WS_P1, WS_P2 = 82*MB_, 88*MB_, 90*MB_, 97*MB_
WS_EX = 104 * MB_
WS_USED = 120 * MB_
KA = dict(x=0, wqkv=8, wo=16, bx=24, w1=32, w2=40, out=48, dbg=56, ws=64)
QSCALE = (32 ** -0.5) * 1.4426950408889634
STAT = 163840 - 2048
SC = ' sc1'
MBK, NBK = (4, 8) if 'm48' in sys.argv else ((2, 16) if 'm216' in sys.argv else (8, 4))
TIMEOUT = 200000
SLEEP = 2
DBGQ = False
OPT = set()
RING = 4 * 32768

def f32bits(x): return struct.unpack('<I', struct.pack('<f', x))[0]
def log2(x):
    assert x & (x - 1) == 0
    return x.bit_length() - 1

def stamp(a, i):
    if not dsl.PROF: return
    a(f's_memrealtime s[{64+2*i}:{65+2*i}]')
    a('s_waitcnt lgkmcnt(0)')
def prof_flush(a, ph, role):
    if not dsl.PROF: return
    a('s_cmp_eq_u32 s10, 0')
    a(f's_cselect_b32 s97, {ph}, {ph + 5}')
    a('s_lshl_b32 s97, s97, 8')
    a('s_add_u32 s97, s97, s2')
    a('s_lshl_b32 s97, s97, 3')
    a('s_add_u32 s97, s97, s3')
    if role: a('s_add_u32 s97, s97, 4')
    a('s_lshl_b32 s97, s97, 5')
    a(f's_add_u32 s97, s97, {dsl.PROF_OFF}')
    a('s_mov_b32 s88, s4\ns_mov_b32 s89, s5\ns_mov_b32 s90, 0x10000000\ns_mov_b32 s91, 0x20000')
    a('v_mov_b32 v1, 0')
    for i in range(8):
        a(f'v_mov_b32 v3, s{64+2*i}')
        a(f'buffer_store_dword v3, v1, s[88:91], s97 offen offset:{4*i}')

FSTR = int(([x[4:] for x in sys.argv if x.startswith('fstr')] or [64])[0])
GSTR = max(16 * FSTR, 256)
PSTR = 16 * GSTR
RDY = STAT - 64
def spin_global(a, tag, soff, shift, lanes=-1, n4=0):
    a(f's_mov_b32 s55, {TIMEOUT}')
    a(f'v_lshlrev_b32 v9, {shift}, v0')
    if lanes != -1: a(f's_mov_b64 exec, {lanes}')
    a(f'{tag}_poll:')
    if n4:
        for i in range(n4): a(f'buffer_load_dwordx4 v[{12+4*i}:{15+4*i}], v9, s[16:19], {soff} offen offset:{i*1024}{SC}')
        a('s_waitcnt vmcnt(0)')
        a('v_and_b32 v10, v12, v13')
        for r in range(14, 12 + 4 * n4): a(f'v_and_b32 v10, v10, v{r}')
    else:
        a(f'buffer_load_dword v10, v9, s[16:19], {soff} offen{SC}')
        a('s_waitcnt vmcnt(0)')
    a('v_cmp_eq_u32 vcc, 0, v10')
    a(f's_cbranch_vccz {tag}_ok')
    a(f's_sleep {SLEEP}')
    a('s_sub_u32 s55, s55, 1')
    a('s_cmp_lg_u32 s55, 0')
    a(f's_cbranch_scc1 {tag}_poll')
    a(f'{tag}_ok:')
    if lanes != -1: a('s_mov_b64 exec, -1')

def handoff(a, tag, ph, pgroup, pidx, cgroup, mid=None):
    a('s_barrier')
    a('s_add_u32 s58, s58, 1')
    a(f'v_mov_b32 v11, {RDY}')
    a('s_cmp_lg_u32 s3, 0')
    a(f's_cbranch_scc1 {tag}_nf')
    a(f's_mul_i32 s54, {pgroup}, {GSTR}')
    a(f's_mul_i32 s55, {pidx}, {FSTR}')
    a('s_add_u32 s54, s54, s55')
    a('s_add_u32 s54, s54, s11')
    a(f's_add_u32 s54, s54, {ph*PSTR & 0xffffffff}')
    a('v_mov_b32 v9, 0')
    a('v_mov_b32 v10, 1')
    a('s_mov_b64 exec, 1')
    a(f'buffer_store_dword v10, v9, s[16:19], s54 offen{SC}')
    a('s_mov_b64 exec, -1')
    a(f'{tag}_nf:')
    if mid: mid()
    a('s_cmp_lg_u32 s3, 0')
    a(f's_cbranch_scc1 {tag}_wait')
    a(f's_mul_i32 s54, {cgroup}, {GSTR}')
    a('s_add_u32 s54, s54, s11')
    a(f's_add_u32 s54, s54, {ph*PSTR & 0xffffffff}')
    spin_global(a, tag, 's54', log2(FSTR), lanes=0xffff)
    a('v_mov_b32 v10, s58')
    a('ds_write_b32 v11, v10')
    a(f's_branch {tag}_go')
    a(f'{tag}_wait:')
    a(f's_mov_b32 s55, {TIMEOUT * 16}')
    a(f'{tag}_w2:')
    a('ds_read_b32 v10, v11')
    a('s_waitcnt lgkmcnt(0)')
    a('v_cmp_ne_u32 vcc, s58, v10')
    a(f's_cbranch_vccz {tag}_go')
    a('s_sleep 1')
    a('s_sub_u32 s55, s55, 1')
    a('s_cmp_lg_u32 s55, 0')
    a(f's_cbranch_scc1 {tag}_w2')
    a(f'{tag}_go:')

def signal(a, ph, group, idx):
    stamp(a, 3)
    a('s_waitcnt vmcnt(0)')
    stamp(a, 4)
    a('s_barrier')

class Cfg:
    def __init__(s, name, kind, ph, K, woff, R, lead, xoff, ooff, roff=0, spoff=0):
        s.name, s.kind, s.ph, s.K, s.woff, s.R, s.lead = name, kind, ph, K, woff, R, lead
        s.xoff, s.ooff, s.roff, s.spoff = xoff, ooff, roff, spoff
        s.npanel = 1 if kind == 'res' else 3
        s.half = kind == 'w1'
        s.NF = 4 * s.npanel + (2 if s.half else 0)
        s.UB = 8192 + s.NF * 1024
        s.U = K // 32
        s.T = s.U // 2
        s.nw = s.npanel + (1 if s.half else 0)
        s.nload = 2 + s.nw
        assert lead <= R - 2 and lead % 2 == 0 and s.UB * R <= STAT - 64 and s.nload * R <= 63

C_QKV = Cfg('qkv', 'qkv', 0, 1024, WS_PQ, 7, 4, L_XA, 0, spoff=L_SPA)
C_WO  = Cfg('wo',  'res', 2, 1024, WS_PO, 12, 6, L_O, L_XB, roff=L_XA, spoff=L_SPB)
C_W1  = Cfg('w1',  'w1',  3, 1024, WS_P1, 7, 4, L_XB, L_H, spoff=L_SPB)
C_W2  = Cfg('w2',  'res', 4, 3584, WS_P2, 12, 6, L_H, L_XA + LSTR, roff=L_XB, spoff=L_SPA + LSTR)

def stats_issue(a, c):
    FR = 16
    a('v_and_b32 v1, 15, v0')
    a('v_lshrrev_b32 v2, 4, v0')
    a('v_lshlrev_b32 v3, 4, v1')
    a('v_lshl_add_u32 v3, v2, 10, v3')
    a('s_lshl_b32 s36, s26, 15')
    a('s_lshl_b32 s37, s3, 8')
    a('s_add_u32 s36, s36, s37')
    a('s_add_u32 s36, s36, s10')
    a(f's_add_u32 s36, s36, {c.spoff}')
    for i in range(8):
        if i: a('s_add_u32 s36, s36, 4096')
        a(f'buffer_load_dwordx4 v[{FR+4*i}:{FR+4*i+3}], v3, s[16:19], s36 offen{SC}')
    csoff, csld = (WS_CSQ, 3072 * 4) if c.kind == 'qkv' else (WS_CS1, 3584 * 4)
    if c.kind == 'qkv':
        a('s_min_u32 s37, s3, 2')
        a('s_lshl_b32 s37, s37, 12')
        a('s_lshl_b32 s38, s27, 8')
    else:
        a('s_lshl_b32 s37, s3, 8')
        a('s_mul_i32 s38, s27, 896')
    a('s_add_u32 s37, s37, s38')
    a(f's_add_u32 s37, s37, {csoff}')
    a('v_lshlrev_b32 v13, 2, v0')
    ncs = 16 if c.kind == 'qkv' else 8
    for i in range(ncs):
        a(f'buffer_load_dword v{FR+32+i}, v13, s[16:19], s37 offen{SC}')
        if i < ncs - 1: a(f's_add_u32 s37, s37, {csld}')
    return 8 + ncs

def stats_finish(a, c):
    FR = 16; S = STAT; CSR = FR + 32
    ncs = 16 if c.kind == 'qkv' else 8
    a('s_lshl_b32 s38, s3, 8')
    a(f's_add_u32 s38, s38, {S + 1024}')
    a('v_add_u32 v13, s38, v13')
    a('s_waitcnt vmcnt(0)')
    for i in range(1, ncs // 2): a(f'v_pk_add_f32 v[{CSR}:{CSR+1}], v[{CSR}:{CSR+1}], v[{CSR+2*i}:{CSR+1+2*i}]')
    a(f'v_add_f32 v{CSR}, v{CSR}, v{CSR+1}')
    a(f'ds_write_b32 v13, v{CSR}')
    for i in range(1, 8):
        for h in range(2):
            a(f'v_pk_add_f32 v[{FR+2*h}:{FR+2*h+1}], v[{FR+2*h}:{FR+2*h+1}], v[{FR+4*i+2*h}:{FR+4*i+2*h+1}]')
    for sw in ('v_permlane32_swap_b32', 'v_permlane16_swap_b32'):
        for r in range(4): a(f'v_mov_b32 v{FR+4+r}, v{FR+r}')
        for r in range(4): a(f'{sw} v{FR+r}, v{FR+4+r}')
        for r in range(4): a(f'v_add_f32 v{FR+r}, v{FR+r}, v{FR+4+r}')
    a(f's_mov_b32 s36, {f32bits(1.0/1024)}')
    a(f's_mov_b32 s37, {f32bits(1e-5)}')
    for r in range(4): a(f'v_mul_f32 v{FR+r}, s36, v{FR+r}')
    for q in (0, 2): a(f'v_fma_f32 v{FR+q+1}, -v{FR+q}, v{FR+q}, v{FR+q+1}')
    for q in (0, 2): a(f'v_max_f32 v{FR+q+1}, 0, v{FR+q+1}')
    for q in (0, 2): a(f'v_add_f32 v{FR+q+1}, s37, v{FR+q+1}')
    a(f'v_rsq_f32 v{FR+6}, v{FR+1}')
    a(f'v_rsq_f32 v{FR+7}, v{FR+3}')
    a(f'v_sub_f32 v{FR+4}, 0, v{FR}')
    a(f'v_sub_f32 v{FR+5}, 0, v{FR+2}')
    a('s_lshl_b32 s36, s3, 7')
    a(f's_add_u32 s36, s36, {S}')
    a('v_lshlrev_b32 v3, 3, v1')
    a('v_add_u32 v3, s36, v3')
    a(f'ds_write_b64 v3, v[{FR+4}:{FR+5}]')
    a(f'ds_write_b64 v3, v[{FR+6}:{FR+7}] offset:512')
    a('s_waitcnt lgkmcnt(0)')

def gemm_loader(a, c):
    n = c.name; R, U, T, lead, npw = c.R, c.U, c.T, c.lead, c.npanel
    stamp(a, 0)
    a('v_lshlrev_b32 v8, 4, v0')
    a('s_lshl_b32 s44, s3, 11')
    a(f's_mul_i32 s40, s26, {U * 8192}')
    a('s_add_u32 s40, s40, s10')
    a(f's_add_u32 s40, s40, {c.xoff}')
    a('s_add_u32 s40, s40, s44')
    a(f's_mul_i32 s45, s3, {npw * 1024}')
    a(f's_mul_i32 s41, s27, {U * c.NF * 1024}')
    a(f's_add_u32 s41, s41, {c.woff}')
    if c.half:
        a('s_lshl_b32 s46, s3, 9')
        a(f's_add_u32 s46, s46, {12 * 1024}')
        a('s_add_u32 s42, s41, s46')
        a('s_add_u32 s46, s46, 8192')
    a('s_add_u32 s41, s41, s45')
    a('s_add_u32 s45, s45, 8192')
    def issue_w(slot, first=False):
        if not first:
            a(f's_add_u32 m0, {slot}, s45')
            a('s_nop 0')
        for p in range(npw): a(f'buffer_load_dwordx4 v8, s[16:19], s41 offen offset:{p*1024}{SC} lds')
        if c.half:
            a(f's_add_u32 m0, {slot}, s46')
            a('s_mov_b32 exec_hi, 0')
            a(f'buffer_load_dwordx4 v8, s[16:19], s42 offen{SC} lds')
            a('s_mov_b32 exec_hi, -1')
            a(f's_add_u32 s42, s42, {c.NF*1024}')
        a(f's_add_u32 s41, s41, {c.NF*1024}')
    def issue_x(slot):
        a(f's_add_u32 m0, {slot}, s44')
        a('s_nop 0')
        a(f'buffer_load_dwordx4 v8, s[16:19], s40 offen{SC} lds')
        a(f'buffer_load_dwordx4 v8, s[16:19], s40 offen offset:1024{SC} lds')
        a('s_add_u32 s40, s40, 8192')
    def issue(first=False):
        issue_w('s43', first); issue_x('s43')
        a(f's_add_u32 s43, s43, {c.UB}')
        a(f's_cmp_eq_u32 s43, {c.UB*R}')
        a('s_cselect_b32 s43, 0, s43')
    if c is C_WO:
        a('s_cmp_lg_u32 s10, 0')
        a(f's_cbranch_scc1 {n}_pk_ok')
        a(f's_mov_b32 s47, {WS_PKF}')
        spin_global(a, n + '_pk', 's47', 4, n4=4)
    def wpre():
        for u in range(lead): issue_w(u * c.UB)
        stamp(a, 1)
    if 'earlyw' not in OPT:
        if c is C_QKV:
            a('s_cmp_eq_u32 s10, 0')
            a(f's_cbranch_scc1 {n}_nf')
        def mid():
            wpre()
            if c is C_QKV:
                a('s_cmp_eq_u32 s10, 0')
                a(f's_cbranch_scc1 {n}_go')
        handoff(a, n, c.ph - 1, 's26', 's27', 's26', mid=mid)
    else:
        wpre()
        if c is C_QKV:
            a('s_cmp_eq_u32 s10, 0')
            a(f's_cbranch_scc1 {n}_go')
        handoff(a, n, c.ph - 1, 's26', 's27', 's26')
    stamp(a, 2)
    for u in range(lead): issue_x(u * c.UB)
    a(f's_mov_b32 s43, {lead * c.UB}')
    nl = c.nload
    q = [u for u in range(lead) for _ in range(2)]
    def wait_units(last, extra=0):
        k = max([i for i, t in enumerate(q) if t <= last], default=-1)
        a(f's_waitcnt vmcnt({len(q) - 1 - k + extra})')
        del q[:k + 1]
    wait_units(1)
    a('s_barrier')
    stamp(a, 3)
    issued = lead; t = 0
    while 2 * t + 4 < lead + 0:
        for _ in range(2): issue(); q += [issued] * nl; issued += 1
        wait_units(2 * t + 3); a('s_barrier'); t += 1
    nfull = (U - issued) // 2
    a(f's_mov_b32 s50, {nfull}')
    a('s_add_u32 m0, s43, s45')
    a(f's_branch {n}_lbody')
    a(f'{n}_lhead:')
    a(f's_waitcnt vmcnt({(lead-2)*nl})')
    a('s_barrier')
    a(f'{n}_lbody:')
    issue(first=True); issue()
    a('s_add_u32 m0, s43, s45')
    a('s_sub_u32 s50, s50, 1')
    a('s_cmp_lg_u32 s50, 0')
    a(f's_cbranch_scc1 {n}_lhead')
    issued += 2 * nfull; t += nfull - 1
    assert issued == U
    extra = stats_issue(a, c) if c.kind != 'res' else 0
    while t < T:
        if t == T - 1 and c.kind != 'res': stats_finish(a, c)
        else: a(f's_waitcnt vmcnt({max(0, issued - (2*t+4))*nl + extra})')
        a('s_barrier'); t += 1
    stamp(a, 4)
    prof_flush(a, c.ph, 0)

def mfma(d, x, y): return f'v_mfma_f32_16x16x32_bf16 v[{d}:{d+3}], v[{x}:{x+3}], v[{y}:{y+3}], v[{d}:{d+3}]'
def wrapmask(nsteps, period):
    m = 0
    for i in range(nsteps):
        if (i + 1) % period == 0: m |= 1 << i
    return m

def res_epilogue(a, c, acc, FR):
    n = c.name
    for m in range(4):
        d = FR + 4 * m
        for e in range(2):
            s_ = acc(m, e)
            a(f'v_cvt_pk_bf16_f32 v{d+2*e}, v{s_}, v{s_+1}')
            a(f'v_cvt_pk_bf16_f32 v{d+2*e+1}, v{s_+2}, v{s_+3}')
    if c is C_W2:
        a('s_cmp_lg_u32 s10, 0')
        a(f's_cbranch_scc1 {n}_final')
    a(f's_add_u32 s36, s36, {c.ooff}')
    for m in range(4):
        a(f'buffer_store_dwordx4 v[{FR+4*m}:{FR+4*m+3}], v8, s[16:19], s36 offen offset:{m*1024}{SC}')
    SQ = FR + 16
    a('v_mov_b32 v3, 0x3f803f80')
    for r in range(8): a(f'v_mov_b32 v{SQ+r}, 0')
    for r in range(4):
        for m in range(4):
            a(f'v_dot2c_f32_bf16 v{SQ+m}, v{FR+4*m+r}, v3')
            a(f'v_dot2c_f32_bf16 v{SQ+4+m}, v{FR+4*m+r}, v{FR+4*m+r}')
    for b in (0, 4):
        a(f'v_permlane32_swap_b32 v{SQ+b}, v{SQ+b+1}')
        a(f'v_permlane32_swap_b32 v{SQ+b+2}, v{SQ+b+3}')
    for b in (0, 4):
        a(f'v_add_f32 v{SQ+b}, v{SQ+b}, v{SQ+b+1}')
        a(f'v_add_f32 v{SQ+b+2}, v{SQ+b+2}, v{SQ+b+3}')
    for b in (0, 4): a(f'v_permlane16_swap_b32 v{SQ+b}, v{SQ+b+2}')
    a(f'v_add_f32 v{SQ}, v{SQ}, v{SQ+2}')
    a(f'v_add_f32 v{SQ+1}, v{SQ+4}, v{SQ+6}')
    a('v_and_b32 v13, 1, v2')
    a('v_lshrrev_b32 v14, 1, v2')
    a('v_lshl_add_u32 v13, v13, 1, v14')
    a('v_lshl_add_u32 v13, v13, 4, v1')
    a('v_lshlrev_b32 v13, 3, v13')
    a('s_lshl_b32 s37, s26, 5')
    a('s_lshl_b32 s38, s27, 1')
    a('s_add_u32 s37, s37, s38')
    a('s_add_u32 s37, s37, s33')
    a('s_lshl_b32 s37, s37, 10')
    a('s_lshl_b32 s38, s32, 9')
    a('s_add_u32 s37, s37, s38')
    a('s_add_u32 s37, s37, s10')
    a(f's_add_u32 s37, s37, {c.spoff}')
    a(f'buffer_store_dwordx2 v[{SQ}:{SQ+1}], v13, s[16:19], s37 offen{SC}')
    signal(a, c.ph, 's26', 's27')
    prof_flush(a, c.ph, 1)
    if c is C_W2:
        c.final = lambda: final_store(a, c, FR)

def gemm_consumer(a, c):
    n = c.name; R, U, T = c.R, c.U, c.T
    res = c.kind == 'res'
    NW = {'qkv': 6, 'w1': 8, 'res': 2}[c.kind]
    tiles = [(m, t) for t in range(min(NW, 6)) for m in range(4)]
    if c.kind == 'w1': tiles += [(m, t) for t in (6, 7) for m in range(2)]
    nsub = 2 if res else 1
    VX, VW = 4, 6
    FR = 16
    fset = nsub * (4 + NW) * 4
    ACC = FR + 2 * fset
    accmap = {mt: ACC + 4 * i for i, mt in enumerate(sorted(tiles))}
    c.vgpr = ACC + 4 * len(tiles)
    acc = lambda m, t: accmap[(m, t)]
    xf = lambda st, si, m: FR + st * fset + (si * (4 + NW) + m) * 4
    wf = lambda st, si, t: FR + st * fset + (si * (4 + NW) + 4 + t) * 4
    S = STAT
    stamp(a, 0)
    a('v_lshlrev_b32 v8, 4, v0')
    a('v_and_b32 v1, 15, v0')
    a('v_lshrrev_b32 v2, 4, v0')
    a('s_lshl_b32 s34, s32, 12')
    if c.kind == 'w1':
        a('s_lshl_b32 s35, s33, 11')
        a('s_add_u32 s34, s34, s35')
        a(f'v_add_u32 v{VX}, s34, v8')
        a(f'v_xor_b32 v{VX+1}, 2048, v{VX}')
        xsrc = lambda m: (VX + (m >> 1), (m & 1) * 1024)
        addr_regs = [VX, VX + 1, VW, VW + 1]
    else:
        a(f'v_add_u32 v{VX}, s34, v8')
        xsrc = lambda m: (VX, m * 1024)
        addr_regs = [VX, VW]
    a('s_lshl_b32 s34, s33, 11')
    a('s_add_u32 s34, s34, 8192')
    a(f'v_add_u32 v{VW}, s34, v8')
    if c.half: a(f'v_add_u32 v{VW+1}, {8192 + 12*1024}, v8')
    wsrc = lambda t: (VW, (t >> 1) * 4096 + (t & 1) * 1024) if t < 6 else (VW + 1, (t & 1) * 1024)
    if res:
        a('s_lshl_b32 s36, s26, 5')
        a('s_lshl_b32 s37, s27, 1')
        a('s_add_u32 s36, s36, s37')
        a('s_add_u32 s36, s36, s33')
        a('s_lshl_b32 s36, s36, 13')
        a('s_lshl_b32 s37, s32, 12')
        a('s_add_u32 s36, s36, s37')
        a('s_add_u32 s36, s36, s10')
        a(f's_add_u32 s37, s36, {c.roff}')
        for m in range(4):
            a(f'buffer_load_dwordx4 v[{FR+4*m}:{FR+4*m+3}], v8, s[16:19], s37 offen offset:{m*1024}{SC}')
        for m in range(4):
            a(f's_waitcnt vmcnt({3-m})')
            for e in range(2):
                d = acc(m, e); r = FR + 4 * m + 2 * e
                a(f'v_lshlrev_b32 v{d}, 16, v{r}')
                a(f'v_and_b32 v{d+1}, 0xffff0000, v{r}')
                a(f'v_lshlrev_b32 v{d+2}, 16, v{r+1}')
                a(f'v_and_b32 v{d+3}, 0xffff0000, v{r+1}')
    else:
        for r in range(ACC, c.vgpr): a(f'v_mov_b32 v{r}, 0')
    def reads(st):
        out = []
        for si in range(nsub):
            ub = si * c.UB
            for m in range(4):
                reg, off = xsrc(m)
                out.append(f'ds_read_b128 v[{xf(st,si,m)}:{xf(st,si,m)+3}], v{reg} offset:{ub + off}')
            for t in range(NW):
                reg, off = wsrc(t); d = wf(st, si, t)
                out.append(f'ds_read_b128 v[{d}:{d+3}], v{reg} offset:{ub + off}')
        return out
    def mfmas(st):
        out = []
        for si in range(nsub):
            for m, t in tiles:
                if c.kind == 'qkv' and t >= 4: out.append(mfma(acc(m, t), xf(st, si, m), wf(st, si, t)))
                else: out.append(mfma(acc(m, t), wf(st, si, t), xf(st, si, m)))
        return out
    step = c.UB * nsub; period = R // nsub; nsteps = U // nsub
    mask = wrapmask(nsteps + 1, period)
    a(f's_mov_b32 s44, {mask & 0xffffffff}')
    a(f's_mov_b32 s45, {mask >> 32}')
    a(f's_mov_b32 s43, {-(period-1)*step & 0xffffffff}')
    a('s_mov_b32 s41, 0')
    pre = ['s_bitcmp1_b64 s[44:45], s41', f's_cselect_b32 s42, s43, {step}', 's_add_u32 s41, s41, 1']
    adv = [f'v_add_u32 v{r}, s42, v{r}' for r in addr_regs]
    def weave(ms, fill, at=None):
        for i, m in enumerate(ms):
            for x in (at or {}).get(i, []): a(x)
            a(m)
            for x in (fill[i] if i < len(fill) else []): a(x)
    def spread(items, ngaps):
        out = [[] for _ in range(ngaps)]
        extra = max(0, len(items) - ngaps); k = 0
        for i in range(ngaps):
            cnt = 2 if i < extra else 1
            out[i] = items[k:k + cnt]; k += cnt
        assert k >= len(items)
        return out
    a('s_barrier')
    stamp(a, 1)
    for x in pre: a(x)
    for r in reads(0): a(r)
    for x in adv: a(x)
    nm = len(tiles) * nsub
    if not res:
        a('s_waitcnt lgkmcnt(0)')
        a(f'.p2align 6\n{n}_cloop:')
        weave(mfmas(0), spread(reads(1) + pre + adv, nm - 3), at={nm - 1: ['s_waitcnt lgkmcnt(0)', 's_barrier']})
        f = spread(reads(0) + pre + adv, nm - 4)
        f += [[f's_cmp_lt_u32 s41, {nsteps + 1}'], [], ['s_waitcnt lgkmcnt(0)'], [f's_cbranch_scc1 {n}_cloop']]
        weave(mfmas(1), f)
    else:
        a(f'.p2align 6\n{n}_cloop:')
        a('s_waitcnt lgkmcnt(0)')
        a('s_barrier')
        weave(mfmas(0), spread(reads(1) + pre + adv, nm))
        a('s_waitcnt lgkmcnt(0)')
        a(f's_cmp_lt_u32 s41, {nsteps}')
        a('s_barrier')
        a(f's_cbranch_scc0 {n}_clast')
        weave(mfmas(1), spread(reads(0) + pre + adv, nm))
        a(f's_branch {n}_cloop')
        a(f'{n}_clast:')
        weave(mfmas(1), [])
    stamp(a, 2)
    if res:
        res_epilogue(a, c, acc, FR)
        return
    a('s_lshl_b32 s34, s32, 8')
    a(f's_add_u32 s34, s34, {S}')
    a('v_lshlrev_b32 v3, 2, v1')
    if c.kind == 'w1':
        a('s_lshl_b32 s35, s33, 7')
        a('s_add_u32 s35, s35, s34')
        a('v_add_u32 v3, s35, v3')
        a('v_xor_b32 v14, 128, v3')
        msrc = lambda m: (3 if m < 2 else 14, (m & 1) * 64)
    else:
        a('v_add_u32 v3, s34, v3')
        msrc = lambda m: (3, m * 64)
    for m in range(4):
        r, o = msrc(m)
        a(f'ds_read_b32 v{FR+2*m}, v{r} offset:{o}')
        a(f'ds_read_b32 v{FR+2*m+1}, v{r} offset:{512 + o}')
    CS = FR + 8
    a('v_lshlrev_b32 v13, 4, v2')
    a(f'v_add_u32 v13, {S + 1024}, v13')
    a('s_lshl_b32 s35, s33, 7')
    a('v_add_u32 v15, s35, v13')
    def fold(d, cs, st, tmp):
        for h in range(2):
            a(f'v_pk_fma_f32 v[{d+2*h}:{d+2*h+1}], v[{cs+2*h}:{cs+2*h+1}], v[{st}:{st+1}], v[{d+2*h}:{d+2*h+1}] op_sel:[0,0,0] op_sel_hi:[1,0,1]')
        for h in range(2):
            a(f'v_pk_mul_f32 v[{d+2*h}:{d+2*h+1}], v[{d+2*h}:{d+2*h+1}], v[{st}:{st+1}] op_sel:[0,1] op_sel_hi:[1,1]')
        a(f'v_cvt_pk_bf16_f32 v{tmp}, v{d}, v{d+1}')
        a(f'v_cvt_pk_bf16_f32 v{tmp+1}, v{d+2}, v{d+3}')
    if c.kind == 'w1':
        for t in range(6): a(f'ds_read_b128 v[{CS+4*t}:{CS+4*t+3}], v15 offset:{(t>>1)*256 + (t&1)*64}')
        for t in (6, 7): a(f'ds_read_b128 v[{CS+4*t}:{CS+4*t+3}], v13 offset:{768 + (t&1)*64}')
        a('s_mul_i32 s36, s26, 112')
        a('s_mul_i32 s37, s27, 7')
        a('s_add_u32 s36, s36, s37')
        a('s_add_u32 s37, s36, s33')
        a('s_add_u32 s38, s36, 6')
        a('s_lshl_b32 s37, s37, 13')
        a('s_lshl_b32 s38, s38, 13')
        a('s_lshl_b32 s36, s32, 12')
        a('s_add_u32 s36, s36, s10')
        a(f's_add_u32 s36, s36, {c.ooff}')
        a('s_add_u32 s37, s37, s36')
        a('s_add_u32 s38, s38, s36')
        a('s_lshl_b32 s35, s33, 11')
        a('v_add_u32 v3, s35, v8')
        a('v_xor_b32 v14, 2048, v3')
        a('s_waitcnt lgkmcnt(0)')
        TM = CS + 32
        k = 0
        for p in range(4):
            for m in range(4 if p < 3 else 2):
                d = TM + 4 * (k % 4); k += 1
                for e in range(2): fold(acc(m, 2 * p + e), CS + 4 * (2 * p + e), FR + 2 * m, d + 2 * e)
                for r in range(4): a(f'v_pk_max_i16 v{d+r}, v{d+r}, 0')
                a(f'buffer_store_dwordx4 v[{d}:{d+3}], v{3 if m < 2 else 14}, s[16:19], {"s37" if p < 3 else "s38"} offen offset:{(m&1)*1024}{SC}')
            if p < 2: a(f's_add_u32 s37, s37, {2*8192}')
        signal(a, c.ph, 's26', 's27')
        prof_flush(a, c.ph, 1)
        return
    for t in range(4): a(f'ds_read_b128 v[{CS+4*t}:{CS+4*t+3}], v15 offset:{(t>>1)*256 + (t&1)*64}')
    a('v_lshlrev_b32 v14, 2, v1')
    a('v_add_u32 v14, s35, v14')
    a(f'v_add_u32 v14, {S + 1024 + 512}, v14')
    CV = CS + 16
    a(f'ds_read_b32 v{CV}, v14')
    a(f'ds_read_b32 v{CV+1}, v14 offset:64')
    a('v_lshlrev_b32 v14, 4, v2')
    a('v_add_u32 v14, s34, v14')
    MV = CV + 4
    a('s_waitcnt lgkmcnt(6)')
    for m in range(4):
        a(f'ds_read_b128 v[{MV+8*m}:{MV+8*m+3}], v14 offset:{m*64}')
        a(f'ds_read_b128 v[{MV+8*m+4}:{MV+8*m+7}], v14 offset:{512 + m*64}')
    TM = MV + 32
    assert TM + 16 <= ACC
    a('v_lshlrev_b32 v3, 4, v1')
    a('v_lshl_add_u32 v3, v2, 9, v3')
    a('v_and_b32 v13, 8, v1')
    a('v_lshl_add_u32 v15, v13, 4, v3')
    a('s_lshl_b32 s34, s27, 1')
    a('s_add_u32 s34, s34, s33')
    a('s_lshl_b32 s35, s26, 2')
    a('s_lshl_b32 s36, s32, 1')
    a('s_add_u32 s35, s35, s36')
    a('s_lshl_b32 s36, s34, 17')
    a('s_lshl_b32 s37, s35, 11')
    a('s_add_u32 s36, s36, s37')
    a('s_lshl_b32 s37, s36, 1')
    a('s_add_u32 s37, s37, s10')
    a(f's_add_u32 s37, s37, {L_KVF}')
    a('s_add_u32 s38, s37, 4096')
    a('s_add_u32 s36, s36, s10')
    a('s_lshl_b32 s34, s33, 14')
    a('s_lshl_b32 s35, s32, 13')
    a('s_add_u32 s34, s34, s35')
    a('v_add_u32 v9, s34, v15')
    a('v_add_u32 v10, s34, v3')
    a('s_lshl_b32 s35, s3, 12')
    a(f's_add_u32 s35, s35, {RING}')
    a('v_add_u32 v11, s35, v3')
    a(f's_mov_b32 s39, {f32bits(QSCALE)}')
    a('s_waitcnt lgkmcnt(0)')
    k = 0
    for m in range(4):
        d = TM + 4 * (k % 4); k += 1
        for e in range(2): fold(acc(m, 2 + e), CS + 4 * (2 + e), FR + 2 * m, d + 2 * e)
        a(f'buffer_store_dwordx4 v[{d}:{d+3}], v15, s[16:19], {"s37" if m < 2 else "s38"} offen offset:{(m&1)*128}{SC}')
        a(f'ds_write_b128 v9, v[{d}:{d+3}] offset:{(m>>1)*4096 + (m&1)*128}')
    for tp in range(2):
        for e in range(2):
            d = TM + 4 * (k % 4); k += 1
            for mm in range(2):
                m = 2 * tp + mm; s_ = acc(m, 4 + e)
                for h in range(2):
                    a(f'v_pk_fma_f32 v[{s_+2*h}:{s_+2*h+1}], v[{MV+8*m+2*h}:{MV+8*m+2*h+1}], v[{CV}:{CV+1}], v[{s_+2*h}:{s_+2*h+1}] op_sel:[0,{e},0] op_sel_hi:[1,{e},1]')
                for h in range(2):
                    a(f'v_pk_mul_f32 v[{s_+2*h}:{s_+2*h+1}], v[{s_+2*h}:{s_+2*h+1}], v[{MV+8*m+4+2*h}:{MV+8*m+5+2*h}]')
                a(f'v_cvt_pk_bf16_f32 v{d+2*mm}, v{s_}, v{s_+1}')
                a(f'v_cvt_pk_bf16_f32 v{d+2*mm+1}, v{s_+2}, v{s_+3}')
            a(f'buffer_store_dwordx4 v[{d}:{d+3}], v3, s[16:19], {"s37" if tp == 0 else "s38"} offen offset:{2048 + e*256}{SC}')
            a(f'ds_write_b128 v10, v[{d}:{d+3}] offset:{tp*4096 + 2048 + e*256}')
    for m in range(4): a(f'v_mul_f32 v{FR+2*m+1}, s39, v{FR+2*m+1}')
    for m in range(4):
        d = TM + 4 * (k % 4); k += 1
        for e in range(2): fold(acc(m, e), CS + 4 * e, FR + 2 * m, d + 2 * e)
        a(f'ds_write_b128 v11, v[{d}:{d+3}] offset:{(m>>1)*2048 + (m&1)*256}')
        if DBGQ: a(f'buffer_store_dwordx4 v[{d}:{d+3}], v3, s[16:19], s36 offen offset:{(m>>1)*2048 + (m&1)*256}{SC}')
    stamp(a, 3); stamp(a, 4)
    prof_flush(a, c.ph, 1)

def final_store(a, c, FR):
    a(f'{c.name}_final:')
    a('s_mov_b32 s20, s8')
    a('s_mov_b32 s21, s9')
    a(f's_mov_b32 s22, {2048*2048}')
    a('s_mov_b32 s23, 0x20000')
    a('v_and_b32 v3, 1, v2')
    a('v_lshlrev_b32 v3, 5, v3')
    a('v_lshrrev_b32 v13, 1, v2')
    a('v_lshl_add_u32 v3, v13, 4, v3')
    a('v_lshl_add_u32 v3, v1, 11, v3')
    a('s_lshl_b32 s36, s26, 18')
    a('s_lshl_b32 s37, s32, 17')
    a('s_add_u32 s36, s36, s37')
    a('s_lshl_b32 s37, s27, 7')
    a('s_add_u32 s36, s36, s37')
    a('s_lshl_b32 s37, s33, 6')
    a('s_add_u32 s36, s36, s37')
    for m in range(4):
        d = FR + 4 * m
        a(f'v_permlane16_swap_b32 v{d}, v{d+2}')
        a(f'v_permlane16_swap_b32 v{d+1}, v{d+3}')
        if m: a('s_add_u32 s36, s36, 32768')
        a(f'buffer_store_dwordx4 v[{d}:{d+3}], v3, s[20:23], s36 offen{SC}')
    stamp(a, 3)
    if dsl.PROF: a('s_waitcnt vmcnt(0)')
    stamp(a, 4)
    prof_flush(a, c.ph, 1)
    a('s_endpgm')


N1 = int(([x[2:] for x in sys.argv if x.startswith('n1')] or [44])[0]); N2 = 112 - 2 * N1
UB2, R2, LEAD2 = 16384, 8, 6
EV_DRAIN, EV_LOAD = [int(x) for x in ([x[2:] for x in sys.argv if x.startswith('ev')] or ['24'])[0]]
def w2_loader(a):
    c = C_W2; n = 'w2'; lead = LEAD2; T1 = N1 // 2; T = (N1 + N2) // 2; U = N1 + N2
    stamp(a, 0)
    a('v_lshlrev_b32 v8, 4, v0')
    a('s_lshl_b32 s44, s3, 11')
    a('s_and_b32 s48, s27, 1')
    a(f's_mul_i32 s48, s48, {N1}')
    a(f's_mul_i32 s40, s26, 112')
    a('s_add_u32 s40, s40, s48')
    a('s_lshl_b32 s40, s40, 13')
    a('s_add_u32 s40, s40, s10')
    a(f's_add_u32 s40, s40, {c.xoff}')
    a('s_add_u32 s40, s40, s44')
    a('s_lshl_b32 s45, s3, 10')
    for r, x in (('s41', 0), ('s42', 1)):
        a(f's_xor_b32 {r}, s27, {x}')
        a(f's_mul_i32 {r}, {r}, 112')
        a(f's_add_u32 {r}, {r}, s48')
        a(f's_lshl_b32 {r}, {r}, 12')
        a(f's_add_u32 {r}, {r}, {c.woff - x*4096 + 0}')
        a(f's_add_u32 {r}, {r}, s45')
    a('s_add_u32 s42, s42, 4096')
    a('s_add_u32 s45, s45, 8192')
    a(f's_sub_u32 s48, {N1}, s48')
    def issue_w(slot, wide):
        a(f's_add_u32 m0, {slot}, s45')
        a('s_nop 0')
        a(f'buffer_load_dwordx4 v8, s[16:19], s41 offen{SC} lds')
        if wide:
            a('s_add_u32 m0, m0, 4096')
            a('s_add_u32 s41, s41, 4096')
            a(f'buffer_load_dwordx4 v8, s[16:19], s42 offen{SC} lds')
            a('s_add_u32 s42, s42, 4096')
        else:
            a('s_add_u32 s41, s41, 4096')
    def issue_x(slot):
        a(f's_add_u32 m0, {slot}, s44')
        a('s_nop 0')
        a(f'buffer_load_dwordx4 v8, s[16:19], s40 offen{SC} lds')
        a(f'buffer_load_dwordx4 v8, s[16:19], s40 offen offset:1024{SC} lds')
        a('s_add_u32 s40, s40, 8192')
    def issue(wide):
        issue_w('s43', wide); issue_x('s43')
        a(f's_add_u32 s43, s43, {UB2}')
        a(f's_and_b32 s43, s43, {UB2*R2 - 1}')
    def wpre():
        for u in range(lead): issue_w(u * UB2, True)
        stamp(a, 1)
    handoff(a, n, c.ph - 1, 's26', 's27', 's26', mid=wpre)
    stamp(a, 2)
    for u in range(lead): issue_x(u * UB2)
    a(f's_mov_b32 s43, {lead * UB2}')
    a('s_cmp_eq_u32 s10, 0')
    a(f's_cselect_b32 s46, 0, {PSTR}')
    a(f's_add_u32 s46, s46, {WS_FLG + 10*PSTR}')
    a(f's_mul_i32 s47, s26, {GSTR}')
    a('s_add_u32 s46, s46, s47')
    a('s_xor_b32 s47, s27, 1')
    a(f's_mul_i32 s47, s47, {FSTR}')
    a('s_add_u32 s47, s47, s46')
    a(f's_mul_i32 s49, s27, {FSTR}')
    a('s_add_u32 s46, s46, s49')
    a('v_mov_b32 v14, 0')
    a('v_mov_b32 v15, 1')
    cnt = lambda u: 2 if u < lead else (4 if u < N1 else 3)
    def allowed(t, issued): return sum(cnt(u) for u in range(2 * t + 4, issued))
    a(f's_waitcnt vmcnt({allowed(-1, lead)})')
    a('s_barrier')
    stamp(a, 3)
    BD = T1 + 2 * EV_DRAIN + 1; BL = T1 + 2 * EV_LOAD + 1
    def epoch_desc(t):
        us = [u for u in (lead + 2 * t, lead + 2 * t + 1) if u < U]
        issued = min(U, lead + 2 * t + 2)
        ev = []
        if us and us[0] == N1: ev.append('jump')
        if t == BD: ev.append('flag')
        if t == BL - 2: ev.append('poll')
        if t == BL - 1: ev.append('check')
        return (tuple(u < N1 for u in us), allowed(t, issued), tuple(ev))
    t = 0; seg = 0
    while t < T:
        d = epoch_desc(t); k = 1
        while not d[2] and t + k < T and epoch_desc(t + k) == d: k += 1
        if k > 1:
            a(f's_mov_b32 s50, {k}')
            a(f'{n}_l{seg}:')
        if 'jump' in d[2]:
            a('s_lshl_b32 s49, s48, 13')
            a('s_add_u32 s40, s40, s49')
            a('s_lshl_b32 s49, s48, 12')
            a('s_add_u32 s41, s41, s49')
        if 'flag' in d[2]:
            a('s_cmp_lg_u32 s3, 0')
            a(f's_cbranch_scc1 {n}_nf2')
            a('s_mov_b64 exec, 1')
            a(f'buffer_store_dword v15, v14, s[16:19], s46 offen{SC}')
            a('s_mov_b64 exec, -1')
            a(f'{n}_nf2:')
        for wide in d[0]: issue(wide)
        if 'poll' in d[2]: a(f'buffer_load_dword v16, v14, s[16:19], s47 offen{SC}')
        if 'check' in d[2]:
            a(f's_waitcnt vmcnt({3 * len(d[0])})')
            a('v_cmp_eq_u32 vcc, 0, v16')
            a(f's_cbranch_vccz {n}_x_ok')
            spin_global(a, n + '_x', 's47', 2, lanes=1)
        a(f's_waitcnt vmcnt({d[1]})')
        a('s_barrier')
        if k > 1:
            a('s_sub_u32 s50, s50, 1')
            a('s_cmp_lg_u32 s50, 0')
            a(f's_cbranch_scc1 {n}_l{seg}')
            seg += 1
        t += k
    stamp(a, 4)
    prof_flush(a, c.ph, 0)

def w2_consumer(a):
    c = C_W2; n = 'w2'
    VX, VW, FR, ACC, PAC = 4, 6, 16, 112, 144
    acc = lambda m, t: (ACC if t < 2 else PAC) + (m * 2 + (t & 1)) * 4
    stamp(a, 0)
    a('v_lshlrev_b32 v8, 4, v0')
    a('v_and_b32 v1, 15, v0')
    a('v_lshrrev_b32 v2, 4, v0')
    a('s_lshl_b32 s34, s32, 12')
    a('v_add_u32 v9, s34, v8')
    a('s_lshl_b32 s34, s33, 11')
    a('s_add_u32 s34, s34, 8192')
    a('v_add_u32 v10, s34, v8')
    a(f'v_mov_b32 v{VX}, v9')
    a(f'v_mov_b32 v{VW}, v10')
    a('s_lshl_b32 s36, s26, 5')
    a('s_lshl_b32 s37, s27, 1')
    a('s_add_u32 s36, s36, s37')
    a('s_add_u32 s36, s36, s33')
    a('s_lshl_b32 s36, s36, 13')
    a('s_lshl_b32 s37, s32, 12')
    a('s_add_u32 s36, s36, s37')
    a('s_add_u32 s36, s36, s10')
    a(f's_add_u32 s37, s36, {c.roff}')
    for m in range(4):
        a(f'buffer_load_dwordx4 v[{FR+4*m}:{FR+4*m+3}], v8, s[16:19], s37 offen offset:{m*1024}{SC}')
    for r in range(PAC, PAC + 32): a(f'v_mov_b32 v{r}, 0')
    a('s_cmp_eq_u32 s10, 0')
    a(f's_cselect_b32 s38, 0, {8*MB_}')
    a(f's_add_u32 s38, s38, {WS_EX}')
    a('s_lshl_b32 s39, s26, 19')
    a('s_add_u32 s38, s38, s39')
    a('s_lshl_b32 s39, s3, 13')
    a('s_add_u32 s38, s38, s39')
    a('s_lshl_b32 s39, s27, 15')
    a('s_add_u32 s39, s39, s38')
    a('s_xor_b32 s38, s39, 32768')
    for m in range(4):
        a(f's_waitcnt vmcnt({3-m})')
        for e in range(2):
            d = acc(m, e); r = FR + 4 * m + 2 * e
            a(f'v_lshlrev_b32 v{d}, 16, v{r}')
            a(f'v_and_b32 v{d+1}, 0xffff0000, v{r}')
            a(f'v_lshlrev_b32 v{d+2}, 16, v{r+1}')
            a(f'v_and_b32 v{d+3}, 0xffff0000, v{r+1}')
    def weave(ms, fill, at=None):
        for i, m in enumerate(ms):
            for x in (at or {}).get(i, []): a(x)
            a(m)
            for x in (fill[i] if i < len(fill) else []): a(x)
    def spread(items, ngaps):
        out = [[] for _ in range(ngaps)]
        extra = max(0, len(items) - ngaps); k = 0
        for i in range(ngaps):
            cnt = 2 if i < extra else 1
            out[i] = items[k:k + cnt]; k += cnt
        assert k >= len(items)
        return out
    def mk(nsub, NW):
        fs = nsub * (4 + NW) * 4
        xf = lambda st, si, m: FR + st * fs + (si * (4 + NW) + m) * 4
        wf = lambda st, si, t: FR + st * fs + (si * (4 + NW) + 4 + t) * 4
        def reads(st):
            out = []
            for si in range(nsub):
                out += [f'ds_read_b128 v[{xf(st,si,m)}:{xf(st,si,m)+3}], v{VX} offset:{si*UB2 + m*1024}' for m in range(4)]
                out += [f'ds_read_b128 v[{wf(st,si,t)}:{wf(st,si,t)+3}], v{VW} offset:{si*UB2 + (t>>1)*4096 + (t&1)*1024}' for t in range(NW)]
            return out
        def mfmas(st): return [mfma(acc(m, t), wf(st, si, t), xf(st, si, m)) for si in range(nsub) for t in range(NW) for m in range(4)]
        adv = [f's_add_u32 s42, s42, {nsub*UB2}', f's_and_b32 s42, s42, {UB2*R2 - 1}', 's_add_u32 s41, s41, 1',
               f'v_add_u32 v{VX}, s42, v9', f'v_add_u32 v{VW}, s42, v10']
        return reads, mfmas, adv
    a('s_mov_b32 s41, 0')
    a('s_mov_b32 s42, 0')
    a('s_barrier')
    stamp(a, 1)
    reads, mfmas, adv = mk(1, 4)
    for r in reads(0) + adv: a(r)
    a('s_waitcnt lgkmcnt(0)')
    a(f'.p2align 6\n{n}_c1:')
    weave(mfmas(0), spread(reads(1) + adv, 11), at={15: ['s_waitcnt lgkmcnt(0)', 's_barrier']})
    f = spread(reads(0) + adv, 11) + [[], [f's_cmp_lt_u32 s41, {N1 + 1}'], [], ['s_waitcnt lgkmcnt(0)'], [f's_cbranch_scc1 {n}_c1']]
    weave(mfmas(1), f)
    stamp(a, 5)
    reads, mfmas, adv = mk(2, 2)
    a(f's_mov_b32 s42, {(N1 % R2) * UB2}')
    a(f'v_add_u32 v{VX}, s42, v9')
    a(f'v_add_u32 v{VW}, s42, v10')
    a('s_mov_b32 s41, 0')
    for r in reads(0) + adv: a(r)
    a('s_add_u32 s40, s38, 4096')
    for i in range(8):
        a(f'buffer_store_dwordx4 v[{PAC+4*i}:{PAC+4*i+3}], v8, s[16:19], {"s38" if i < 4 else "s40"} offen offset:{(i&3)*1024}{SC}')
    a(f's_mov_b32 s44, {(1 << (2*EV_DRAIN + 1)) | (1 << (2*EV_LOAD + 1))}')
    a(f'.p2align 6\n{n}_c2:')
    a('s_waitcnt lgkmcnt(0)')
    a('s_barrier')
    a(f'{n}_c2b:')
    weave(mfmas(0), spread(reads(1) + adv, 16))
    a('s_waitcnt lgkmcnt(0)')
    a(f's_cmp_lt_u32 s41, {N2 // 2}')
    a('s_barrier')
    a(f's_cbranch_scc0 {n}_clast')
    weave(mfmas(1), spread(reads(0) + adv, 15) + [['s_bitcmp1_b32 s44, s41']])
    a(f's_cbranch_scc0 {n}_c2')
    a(f's_cmp_eq_u32 s41, {2*EV_DRAIN + 1}')
    a(f's_cbranch_scc0 {n}_ev2')
    a('s_waitcnt vmcnt(0)')
    a(f's_branch {n}_c2')
    a(f'{n}_ev2:')
    a('s_waitcnt lgkmcnt(0)')
    a('s_barrier')
    a('s_add_u32 s40, s39, 4096')
    for i in range(8):
        a(f'buffer_load_dwordx4 v[{PAC+4*i}:{PAC+4*i+3}], v8, s[16:19], {"s39" if i < 4 else "s40"} offen offset:{(i&3)*1024}{SC}')
    a(f's_branch {n}_c2b')
    a(f'{n}_clast:')
    weave(mfmas(1), [])
    stamp(a, 6)
    a('s_waitcnt vmcnt(0)')
    stamp(a, 2)
    for r in range(0, 32, 2): a(f'v_pk_add_f32 v[{ACC+r}:{ACC+r+1}], v[{ACC+r}:{ACC+r+1}], v[{PAC+r}:{PAC+r+1}]')
    res_epilogue(a, c, acc, FR)

import pack
pack.WS_PQ, pack.WS_PO, pack.WS_P1, pack.WS_P2, pack.WS_CSQ, pack.WS_CS1 = WS_PQ, WS_PO, WS_P1, WS_P2, WS_CSQ, WS_CS1
RING = 4 * 32768
Q, KB, VB, P, ONES, L, IDX, O, CI, S_ = (8, 16), (24, 32), (40, 48), 56, 64, (68, 72), 76, (80, 96), (112, 128), (144, 160)
VA, VBASE = 4, 5
def m32(d, x, y, c): return f'v_mfma_f32_32x32x16_bf16 v[{d}:{d+15}], v[{x}:{x+3}], v[{y}:{y+3}], ' + (f'v[{c}:{c+15}]' if c is not None else '0')
def sm(d): return f'v_smfmac_f32_16x16x64_bf16 v[{d}:{d+3}], v[{ONES}:{ONES+3}], v[{P}:{P+7}], v{IDX}'

def attn_loader(a):
    n = 'at'
    stamp(a, 0)
    a('v_lshlrev_b32 v2, 4, v0')
    a('s_lshr_b32 s28, s3, 1')
    a('s_and_b32 s29, s3, 1')
    a('s_lshl_b32 s12, s27, 1')
    a('s_add_u32 s12, s12, s28')
    a('s_lshl_b32 s12, s12, 18')
    a('s_lshl_b32 s13, s29, 13')
    a('s_add_u32 s12, s12, s13')
    a('s_add_u32 s12, s12, s10')
    a(f's_add_u32 s12, s12, {L_KVF}')
    a('s_lshl_b32 s15, s3, 13')
    a('s_add_u32 s15, s15, 32768')
    a('s_lshl_b32 s13, s26, 14')
    a('s_add_u32 s13, s13, s12')
    def issue_chunk():
        a('s_cmp_eq_u32 s12, s13')
        a('s_cselect_b32 s14, 16384, 0')
        a('s_add_u32 s12, s12, s14')
        a('s_mov_b32 m0, s15')
        a('s_add_u32 s14, s12, 4096')
        for i in range(4): a(f'buffer_load_dwordx4 v2, s[16:19], s12 offen offset:{i*1024}{SC} lds')
        a('s_add_u32 m0, s15, 4096')
        a('s_add_u32 s12, s12, 16384')
        for i in range(4): a(f'buffer_load_dwordx4 v2, s[16:19], s14 offen offset:{i*1024}{SC} lds')
        a('s_add_u32 s15, s15, 32768')
        a(f's_and_b32 s15, s15, {RING-1}')
    stamp(a, 1)
    a('s_barrier')
    handoff(a, n, 0, 's27', 's26', 's27')
    stamp(a, 2)
    issue_chunk(); issue_chunk()
    stamp(a, 3)
    a('s_cmp_eq_u32 s10, 0')
    a(f's_cbranch_scc1 {n}_ldpack')
    a('s_mov_b32 s20, 13')
    a(f'{n}_lloop:')
    issue_chunk()
    a('s_waitcnt vmcnt(16)')
    a('s_barrier')
    a('s_sub_u32 s20, s20, 1')
    a('s_cmp_lg_u32 s20, 0')
    a(f's_cbranch_scc1 {n}_lloop')
    a('s_waitcnt vmcnt(8)')
    a('s_barrier')
    a('s_waitcnt vmcnt(0)')
    a('s_barrier')
    a(f's_branch {n}_lend')
    a(f'{n}_ldpack:')
    PK = 8
    a('s_mov_b32 s35, 0x20000')
    a('s_lshl_b32 s45, s3, 12')
    a(f's_add_u32 s45, s45, {RING}')
    a('s_cmp_lt_u32 s2, 32')
    a(f's_cbranch_scc1 {n}_pk_wo')
    a('s_cmp_lt_u32 s2, 144')
    a(f's_cbranch_scc1 {n}_pk_w1')
    a('s_sub_u32 s46, s2, 144')
    a('s_lshr_b32 s47, s46, 4')
    a('s_and_b32 s46, s46, 15')
    pack.decode(a, 32, 'w2', 's46', 's47', 's3', ('s62', 's63'), 4)
    a(f's_branch {n}_pk1')
    a(f'{n}_pk_wo:')
    a('s_lshr_b32 s47, s2, 4')
    a('s_and_b32 s46, s2, 15')
    pack.decode(a, 32, 'wo', 's46', 's47', 's3', ('s56', 's57'), 4)
    a(f's_branch {n}_pk1')
    a(f'{n}_pk_w1:')
    a('s_cmp_ge_u32 s2, 88')
    a('s_cselect_b32 s47, 1, 0')
    a('s_cselect_b32 s46, 88, 32')
    a('s_sub_u32 s46, s2, s46')
    pack.decode(a, 32, 'w1', 's46', 's47', 's3', ('s60', 's61'), 4)
    a(f'{n}_pk1:')
    pack.setup(a, 32, 0, PK, 's45')
    q = [('c', 1)] * 8 + [('c', 2)] * 8
    def need(tag):
        last = max([i for i, t in enumerate(q) if t == tag], default=-1)
        a(f's_waitcnt vmcnt({len(q) - 1 - last})')
        del q[:last + 1]
    LOADS = {0: 0, 3: 1, 6: 2, 9: 3}
    FINS = {3: 0, 6: 1, 9: 2, 12: 3}
    for e in range(15):
        if e + 3 < 16: issue_chunk(); q += [('c', e + 3)] * 8
        if e in FINS:
            u = FINS[e]
            need(('p', u))
            pack.finish1(a, 32, 2, PK, 's[16:19]', st=SC, flip=None); q += [('s', u)] * 4
        if e in LOADS:
            pack.issue1(a, 32, PK, wrap=('s45', True)); q += [('p', LOADS[e])] * 4
        if e == 13:
            a('s_cmp_eq_u32 s41, 0')
            a(f's_cbranch_scc1 {n}_nocs')
            pack.colsum1(a, 32, 0, PK, 's[16:19]', st=SC)
            a(f'{n}_nocs:')
        if e == 14:
            a('s_lshl_b32 s46, s2, 4')
            a('s_lshl_b32 s47, s3, 2')
            a('s_add_u32 s46, s46, s47')
            a(f's_add_u32 s46, s46, {WS_PKF}')
            a('v_mov_b32 v3, 0')
            a('v_mov_b32 v1, 1')
            a('s_waitcnt vmcnt(0)'); q.clear()
            a('s_mov_b64 exec, 1')
            a(f'buffer_store_dword v1, v3, s[16:19], s46 offen{SC}')
            a('s_mov_b64 exec, -1')
        else:
            need(('c', e + 1))
        a('s_barrier')
    a(f'{n}_lend:')
    a('s_barrier')
    stamp(a, 4)
    prof_flush(a, 1, 0)

def attn_consumer(a):
    n = 'at'; S = S_
    stamp(a, 0)
    a('v_lshlrev_b32 v2, 4, v0')
    a('s_lshl_b32 s28, s27, 1')
    a('s_add_u32 s28, s28, s33')
    a('s_lshl_b32 s13, s3, 12')
    a(f's_add_u32 s13, s13, {RING}')
    a('v_add_u32 v3, s13, v2')
    a('s_waitcnt lgkmcnt(0)')
    for i in range(4): a(f'ds_read_b128 v[{Q[0]+4*i}:{Q[0]+4*i+3}], v3 offset:{i*1024}')
    a('v_lshrrev_b32 v3, 2, v0')
    a('v_mov_b32 v6, 0x3f803f80')
    a('v_and_b32 v1, 1, v3')
    a('v_cmp_eq_u32 vcc, 0, v1')
    a(f'v_cndmask_b32 v{ONES}, 0, v6, vcc')
    a(f'v_mov_b32 v{ONES+1}, v{ONES}')
    a(f'v_xor_b32 v{ONES+2}, v6, v{ONES}')
    a(f'v_mov_b32 v{ONES+3}, v{ONES+2}')
    a('v_and_b32 v1, 1, v0')
    a('v_cmp_eq_u32 vcc, 0, v1')
    a('v_mov_b32 v6, 0x44444444')
    a('v_mov_b32 v7, 0xeeeeeeee')
    a(f'v_cndmask_b32 v{IDX}, v7, v6, vcc')
    for r in list(range(L[0], L[0] + 8)) + list(range(O[0], O[0] + 32)) + list(range(P, P + 8)) + list(range(VB[1] + 4, VB[1] + 8)):
        a(f'v_mov_b32 v{r}, 0')
    a('s_lshl_b32 s14, s33, 14')
    a(f'v_add_u32 v{VBASE}, s14, v2')
    a(f'v_mov_b32 v{VA}, v{VBASE}')
    a('s_mov_b32 s20, 0')
    a('s_mov_b32 s21, 0')
    a('s_waitcnt lgkmcnt(0)')
    a('s_barrier')
    stamp(a, 5)
    def rd(dst, off): a(f'ds_read_b128 v[{dst}:{dst+3}], v{VA} offset:{off}')
    rd(KB[0], 0); rd(KB[0] + 4, 1024); rd(VB[0], 2048); rd(VB[0] + 4, 3072)
    a('s_waitcnt lgkmcnt(2)')
    for qi in range(2):
        a(m32(S[qi], KB[0], Q[qi], None))
        a(m32(S[qi], KB[0] + 4, Q[qi] + 4, S[qi]))
    for qi in range(2):
        s_, t_ = S[qi], 6 + qi
        a(f'v_max3_f32 v{t_}, v{s_}, v{s_+1}, v{s_+2}')
        for r in range(3, 15, 2): a(f'v_max3_f32 v{t_}, v{t_}, v{s_+r}, v{s_+r+1}')
        a(f'v_max_f32 v{t_}, v{t_}, v{s_+15}')
    a('v_mov_b32 v1, v6')
    a('v_mov_b32 v3, v7')
    a('v_permlane32_swap_b32 v6, v1')
    a('v_permlane32_swap_b32 v7, v3')
    a('v_max_f32 v6, v6, v1')
    a('v_max_f32 v7, v7, v3')
    for r in range(16): a(f'v_sub_f32 v{CI[0]+r}, 0, v6')
    a(m32(S[0], KB[0], Q[0], CI[0]))
    a(m32(S[0], KB[0] + 4, Q[0] + 4, S[0]))
    for r in range(16): a(f'v_sub_f32 v{CI[1]+r}, 0, v7')
    a('s_waitcnt vmcnt(0) lgkmcnt(0)')
    a('s_barrier')
    stamp(a, 1)
    a(f'.p2align 6\n{n}_loop:')
    for kt in range(4):
        for qi in range(2):
            sa, sb = S[qi], S[1 - qi]
            E = lambda *r: [a(f'v_exp_f32 v{sa+i}, v{sa+i}') for i in r]
            C = lambda *r: [a(f'v_cvt_pk_bf16_f32 v{P+i}, v{sa+2*i}, v{sa+2*i+1}') for i in r]
            kn = KB[kt % 2] if qi == 0 else KB[(kt + 1) % 2]
            vp = VB[(kt + 1) % 2] if qi == 0 else VB[kt % 2]
            nb = (kt + 1) % 2; off = ((kt + 1) % 4) * 4096
            f = [[] for _ in range(5)]
            if qi == 0:
                f[0] = [('rd', KB[nb], off)]; f[1] = [('rd', KB[nb] + 4, off + 1024)]
                f[2] = [('rd', VB[nb] + 4, off + 3072)]; f[3] = [('rd', VB[nb], off + 2048)]
                f[4] = ['s_waitcnt lgkmcnt(2)']
            else:
                f[1] = ['s_waitcnt lgkmcnt(0)']
                if kt == 1:
                    f[0] = ['s_add_u32 s21, s21, 32768']; f[2] = [f's_and_b32 s21, s21, {RING-1}']
                    f[3] = ['s_add_u32 s20, s20, 1']
                if kt == 2: f[3] = ['s_barrier', f'v_add_u32 v{VA}, s21, v{VBASE}']
                if kt == 3: f[0] = ['s_cmp_lg_u32 s20, 16']
            def F(i):
                for x in f[i]:
                    if isinstance(x, tuple): rd(x[1], x[2])
                    else: a(x)
            a(m32(sb, kn, Q[1 - qi], CI[1 - qi])); F(0); E(0, 1, 2)
            a(sm(L[1 - qi])); F(1); E(3, 4, 5)
            a(m32(O[1 - qi], vp + 4, P + 4, O[1 - qi])); F(2); E(6, 7); C(0, 1)
            a(m32(sb, kn + 4, Q[1 - qi] + 4, sb)); F(3); C(2, 3); E(8, 9)
            a(m32(O[qi], VB[kt % 2], P, O[qi])); F(4); E(10, 11, 12, 13, 14, 15); C(4, 5, 6, 7)
    a(f's_cbranch_scc1 {n}_loop')
    stamp(a, 2)
    a(sm(L[1]))
    a(m32(O[1], VB[1] + 4, P + 4, O[1]))
    for qi in range(2): a(f'v_add_f32 v{L[qi]}, v{L[qi]}, v{L[qi]+1}')
    a(f'v_add_f32 v1, v{L[0]}, v{L[1]}')
    for r in range(0, 32, 2): a(f'v_pk_fma_f32 v[6:7], v[{O[0]+r}:{O[0]+r+1}], 0, v[6:7]' if r else f'v_pk_mul_f32 v[6:7], v[{O[0]}:{O[0]+1}], 0')
    a('v_add_f32 v1, v1, v6')
    a('v_add_f32 v1, v1, v7')
    a(f's_mov_b32 s23, {f32bits(2.0**100)}')
    a('v_cmp_ngt_f32 vcc, s23, v1')
    a(f's_cbranch_vccnz {n}_slow')
    a(f'{n}_fin:')
    a(f'v_rcp_f32 v6, v{L[0]}')
    a(f'v_rcp_f32 v7, v{L[1]}')
    a('v_and_b32 v3, 15, v0')
    a('v_lshlrev_b32 v3, 4, v3')
    a('v_lshrrev_b32 v1, 5, v0')
    a('v_lshl_add_u32 v3, v1, 8, v3')
    a('v_bfe_u32 v1, v0, 4, 1')
    a('v_lshl_add_u32 v3, v1, 10, v3')
    a('s_lshl_b32 s24, s26, 5')
    a('s_add_u32 s24, s24, s28')
    a('s_lshl_b32 s24, s24, 13')
    a('s_lshl_b32 s25, s32, 12')
    a('s_add_u32 s24, s24, s25')
    a('s_add_u32 s24, s24, s10')
    a(f's_add_u32 s24, s24, {L_O}')
    for qi in range(2):
        for r in range(0, 16, 2):
            a(f'v_pk_mul_f32 v[{O[qi]+r}:{O[qi]+r+1}], v[{O[qi]+r}:{O[qi]+r+1}], v[6:7] op_sel:[0,{qi}] op_sel_hi:[1,{qi}]')
        for c in range(2):
            d = S[0] + 8 * qi + 4 * c
            for k, r in enumerate((4*c, 4*c + 2, 8 + 4*c, 8 + 4*c + 2)):
                a(f'v_cvt_pk_bf16_f32 v{d+k}, v{O[qi]+r}, v{O[qi]+r+1}')
            a(f'buffer_store_dwordx4 v[{d}:{d+3}], v3, s[16:19], s24 offen offset:{qi*2048 + c*512}{SC}')
    signal(a, 1, 's26', 's27')
    prof_flush(a, 1, 1)

def attn_slow(a):
    n = 'at'; S = S_
    a(f'{n}_slow:')
    M, LS, SA, KF, VF, OT = 6, 7, S[0], KB[0], VB[0], S[1]
    a('s_lshl_b32 s29, s28, 18')
    a('s_add_u32 s29, s29, s10')
    a(f's_add_u32 s29, s29, {L_KVF}')
    a('s_mov_b32 s21, 0')
    a(f'{n}_sq:')
    a(f'v_mov_b32 v{M}, {f32bits(-3.0e38)}')
    a(f'v_mov_b32 v{LS}, 0')
    for r in range(16): a(f'v_mov_b32 v{OT+r}, 0')
    a('s_mov_b32 s20, 0')
    a('s_mov_b32 s12, s29')
    a(f'{n}_sloop:')
    for i, d in enumerate((KF, KF + 4, VF, VF + 4)):
        a(f'buffer_load_dwordx4 v[{d}:{d+3}], v2, s[16:19], s12 offen offset:{i*1024}{SC}')
    a('s_add_u32 s12, s12, 4096')
    a('s_waitcnt vmcnt(0)')
    a(m32(SA, KF, Q[0], None))
    a(m32(SA, KF + 4, Q[0] + 4, SA))
    a(f'v_max3_f32 v1, v{SA}, v{SA+1}, v{SA+2}')
    for r in range(3, 15, 2): a(f'v_max3_f32 v1, v1, v{SA+r}, v{SA+r+1}')
    a(f'v_max3_f32 v1, v1, v{SA+15}, v{M}')
    a('v_mov_b32 v3, v1')
    a('v_permlane32_swap_b32 v1, v3')
    a('v_max_f32 v1, v1, v3')
    a(f'v_sub_f32 v3, v{M}, v1')
    a('v_exp_f32 v3, v3')
    a(f'v_mov_b32 v{M}, v1')
    for r in range(16): a(f'v_sub_f32 v{SA+r}, v{SA+r}, v1')
    for r in range(16): a(f'v_exp_f32 v{SA+r}, v{SA+r}')
    for r in range(16): a(f'v_mul_f32 v{OT+r}, v{OT+r}, v3')
    a(f'v_mul_f32 v{LS}, v{LS}, v3')
    for r in range(8): a(f'v_cvt_pk_bf16_f32 v{P+r}, v{SA+2*r}, v{SA+2*r+1}')
    for r in range(16): a(f'v_add_f32 v{LS}, v{LS}, v{SA+r}')
    a(m32(OT, VF, P, OT))
    a(m32(OT, VF + 4, P + 4, OT))
    a('s_add_u32 s20, s20, 1')
    a('s_cmp_lg_u32 s20, 64')
    a('s_nop 7')
    a(f's_cbranch_scc1 {n}_sloop')
    a(f'v_mov_b32 v3, v{LS}')
    a(f'v_permlane32_swap_b32 v{LS}, v3')
    a(f'v_add_f32 v{L[1]}, v{LS}, v3')
    for r in range(16): a(f'v_mov_b32 v{O[1]+r}, v{OT+r}')
    a('s_cmp_lg_u32 s21, 0')
    a(f's_cbranch_scc1 {n}_fin')
    a('s_mov_b32 s21, 1')
    a(f'v_mov_b32 v{L[0]}, v{L[1]}')
    for r in range(16): a(f'v_mov_b32 v{O[0]+r}, v{OT+r}')
    for r in range(8): a(f'v_mov_b32 v{Q[0]+r}, v{Q[1]+r}')
    a(f's_branch {n}_sq')

def main_kernel(a):
    label = 'main_kernel'
    a(f'.p2align 8\n.globl {label}\n.type {label},@function\n{label}:')
    a(f's_load_dwordx2 s[4:5], s[0:1], {KA["ws"]}')
    a(f's_load_dwordx2 s[8:9], s[0:1], {KA["out"]}')
    a(f's_load_dwordx2 s[56:57], s[0:1], {KA["wo"]}')
    a(f's_load_dwordx4 s[60:63], s[0:1], {KA["w1"]}')
    a('s_cmp_ge_u32 s2, 256')
    a('s_cbranch_scc1 main_exit')
    if dsl.PROF:
        for i in range(64, 80): a(f's_mov_b32 s{i}, 0')
    a('v_lshrrev_b32 v1, 6, v0')
    a('v_and_b32 v0, 63, v0')
    a('v_readfirstlane_b32 s3, v1')
    a('s_and_b32 s24, s2, 7')
    a('s_lshr_b32 s25, s2, 3')
    XN = 16 // NBK
    a(f's_lshr_b32 s26, s24, {log2(XN)}')
    a(f's_and_b32 s27, s24, {XN-1}')
    a(f's_lshl_b32 s26, s26, {log2(MBK)}')
    a(f's_lshl_b32 s27, s27, {log2(NBK)}')
    a(f's_and_b32 s28, s25, {MBK-1}')
    a(f's_lshr_b32 s29, s25, {log2(MBK)}')
    a('s_add_u32 s26, s26, s28')
    a('s_add_u32 s27, s27, s29')
    a(f's_mov_b32 s18, {WS_USED}')
    a('s_mov_b32 s19, 0x20000')
    a('s_mov_b32 s10, 0')
    a(f's_mov_b32 s11, {WS_FLG}')
    a('s_waitcnt lgkmcnt(0)')
    a('s_mov_b32 s16, s4')
    a('s_mov_b32 s17, s5')
    a('s_cmp_ge_u32 s3, 4')
    a('s_cbranch_scc1 main_cons')
    a('s_mov_b32 s58, 0')
    a(f'v_mov_b32 v11, {RDY}')
    a('v_mov_b32 v10, 0')
    a('ds_write_b32 v11, v10')
    a('main_lay_l:')
    gemm_loader(a, C_QKV); attn_loader(a); gemm_loader(a, C_WO); gemm_loader(a, C_W1); (gemm_loader(a, C_W2) if 'nosplit' in OPT else w2_loader(a))
    a('s_cmp_lg_u32 s10, 0')
    a('s_cbranch_scc1 main_exit')
    a(f's_mov_b32 s10, {LSTR}')
    a(f's_mov_b32 s11, {WS_FLG + 5*PSTR}')
    a('s_branch main_lay_l')
    a('main_exit:')
    a('s_endpgm')
    a('.p2align 6\nmain_cons:')
    a('s_setprio 2')
    a('s_sub_u32 s3, s3, 4')
    a('s_lshr_b32 s32, s3, 1')
    a('s_and_b32 s33, s3, 1')
    a('main_lay_c:')
    gemm_consumer(a, C_QKV); attn_consumer(a); gemm_consumer(a, C_WO); gemm_consumer(a, C_W1); (gemm_consumer(a, C_W2) if 'nosplit' in OPT else w2_consumer(a))
    a(f's_mov_b32 s10, {LSTR}')
    a(f's_mov_b32 s11, {WS_FLG + 5*PSTR}')
    a('s_branch main_lay_c')
    C_W2.final()
    attn_slow(a)

GRID_PRE = 224 + (12 * PSTR + 4096 + 16383) // 16384
def pre_kernel(a):
    n = 'pre'; label = 'pre_kernel'
    a(f'.p2align 8\n.globl {label}\n.type {label},@function\n{label}:')
    a(f's_load_dwordx2 s[4:5], s[0:1], {KA["ws"]}')
    a(f's_load_dwordx2 s[6:7], s[0:1], {KA["x"]}')
    a(f's_load_dwordx2 s[8:9], s[0:1], {KA["wqkv"]}')
    a(f's_cmp_ge_u32 s2, {GRID_PRE}')
    a(f's_cbranch_scc1 {n}_exit')
    a('v_lshrrev_b32 v1, 6, v0')
    a('v_mov_b32 v30, v0')
    a('v_and_b32 v0, 63, v0')
    a('v_readfirstlane_b32 s3, v1')
    a(f's_mov_b32 s18, {WS_USED}')
    a('s_mov_b32 s19, 0x20000')
    a('s_mov_b32 s23, 0x20000')
    a('s_cmp_lt_u32 s2, 96')
    a(f's_cbranch_scc1 {n}_cs')
    a('s_cmp_ge_u32 s2, 224')
    a(f's_cbranch_scc1 {n}_fl')
    a('s_sub_u32 s24, s2, 96')
    a('v_and_b32 v1, 15, v0')
    a('v_lshrrev_b32 v2, 4, v0')
    a('v_lshlrev_b32 v3, 3, v2')
    a('v_lshl_add_u32 v3, v1, 11, v3')
    a('v_lshlrev_b32 v4, 4, v0')
    a('s_lshl_b32 s25, s24, 15')
    a('s_lshl_b32 s26, s3, 8')
    a('s_add_u32 s25, s25, s26')
    a(f's_mov_b32 s22, {2048*2048}')
    a('s_waitcnt lgkmcnt(0)')
    a('s_mov_b32 s16, s4\ns_mov_b32 s17, s5\ns_mov_b32 s20, s6\ns_mov_b32 s21, s7')
    for k in range(4):
        for u in range(2):
            a(f'buffer_load_dwordx2 v[{8+4*k+2*u}:{9+4*k+2*u}], v3, s[20:23], s25 offen offset:{k*64 + u*32}')
    a('s_lshr_b32 s26, s24, 3')
    a('s_and_b32 s27, s24, 7')
    a('s_lshl_b32 s28, s26, 5')
    a('s_lshl_b32 s29, s3, 2')
    a('s_add_u32 s29, s28, s29')
    a('s_lshl_b32 s28, s29, 3')
    a('s_add_u32 s28, s28, s27')
    a('s_lshl_b32 s28, s28, 10')
    a(f's_add_u32 s28, s28, {L_XA}')
    a('v_mov_b32 v5, 0x3f803f80')
    for r in range(8): a(f'v_mov_b32 v{32+r}, 0')
    for k in range(4):
        a(f's_waitcnt vmcnt({6 - k})')
        a(f'buffer_store_dwordx4 v[{8+4*k}:{11+4*k}], v4, s[16:19], s28 offen{SC}')
        a('s_add_u32 s28, s28, 8192')
        for r in range(4):
            a(f'v_dot2c_f32_bf16 v{32+k}, v{8+4*k+r}, v5')
            a(f'v_dot2c_f32_bf16 v{36+k}, v{8+4*k+r}, v{8+4*k+r}')
    for b in (32, 36):
        a(f'v_permlane32_swap_b32 v{b}, v{b+1}')
        a(f'v_permlane32_swap_b32 v{b+2}, v{b+3}')
    for b in (32, 36):
        a(f'v_add_f32 v{b}, v{b}, v{b+1}')
        a(f'v_add_f32 v{b+2}, v{b+2}, v{b+3}')
    for b in (32, 36): a(f'v_permlane16_swap_b32 v{b}, v{b+2}')
    a('v_add_f32 v32, v32, v34')
    a('v_add_f32 v33, v36, v38')
    a('v_and_b32 v3, 1, v2')
    a('v_lshrrev_b32 v2, 1, v2')
    a('v_lshl_add_u32 v3, v3, 1, v2')
    a('v_lshlrev_b32 v3, 10, v3')
    a('v_lshl_add_u32 v3, v1, 3, v3')
    a('s_lshl_b32 s28, s29, 10')
    a('s_lshl_b32 s29, s27, 7')
    a('s_add_u32 s28, s28, s29')
    a(f's_add_u32 s28, s28, {L_SPA}')
    a(f'buffer_store_dwordx2 v[32:33], v3, s[16:19], s28 offen{SC}')
    a(f'{n}_exit:')
    a('s_endpgm')
    a(f'{n}_fl:')
    a('s_sub_u32 s24, s2, 224')
    a('s_lshl_b32 s24, s24, 14')
    a(f's_add_u32 s24, s24, {WS_PKF}')
    a('v_lshlrev_b32 v1, 5, v30')
    for r in range(4): a(f'v_mov_b32 v{4+r}, 0')
    a('s_waitcnt lgkmcnt(0)')
    a('s_mov_b32 s16, s4\ns_mov_b32 s17, s5')
    a(f'buffer_store_dwordx4 v[4:7], v1, s[16:19], s24 offen{SC}')
    a(f'buffer_store_dwordx4 v[4:7], v1, s[16:19], s24 offen offset:16{SC}')
    a('s_endpgm')
    a(f'{n}_cs:')
    a('s_cmp_ge_u32 s2, 48')
    a('s_cselect_b32 s13, 1, 0')
    a('s_cselect_b32 s12, 48, 0')
    a('s_sub_u32 s12, s2, s12')
    a('s_lshl_b32 s14, s3, 13')
    a('v_lshlrev_b32 v4, 4, v0')
    a('s_waitcnt lgkmcnt(0)')
    a('s_mov_b32 s16, s4\ns_mov_b32 s17, s5')
    pack.decode(a, 20, 'qkv', 's12', 's13', 's3', ('s8', 's9'), 2)
    pack.issue(a, 20, 0, 1, 's14', 2)
    pack.finish(a, 20, 0, 4, 8, 's14', 's[16:19]', n, 2, st=SC, wait=lambda u: a('s_waitcnt vmcnt(4)'))
    a('s_endpgm')

def build(path):
    a = Asm()
    a('.amdgcn_target "amdgcn-amd-amdhsa--gfx950"\n.text')
    pre_kernel(a)
    main_kernel(a)
    a.finalize()
    txt = a.text() + kd('pre_kernel', 64, 64) + kd('main_kernel', 224, 102 if dsl.PROF else 64)
    hdr = open('interleave_layers__softmax_full_mha__dense_activation_relu__prompt.s.ref').read().split('; Override launch')[0]
    hdr += '; Generated by my own generator scripts (gen/mega.py).\n'
    hdr += f'; @launch kernel=pre_kernel grid=({GRID_PRE},1,1) block=(512,1,1) lds=65536\n'
    hdr += '; @launch kernel=main_kernel grid=(256,1,1) block=(512,1,1) lds=163840\n'
    open(path, 'w').write(hdr + txt)

if __name__ == '__main__':
    if 'prof' in sys.argv[2:]: dsl.PROF = True
    if 'dbgq' in sys.argv[2:]: DBGQ = True
    OPT = set(sys.argv[2:])
    if 'sleep0' in OPT: SLEEP = 0
    build(sys.argv[1])
```

```python
import sys, struct
import dsl
from dsl import Asm, kd

MB_ = 1 << 20
LSTR  = 40 * MB_
L_QF, L_KVF, L_O, L_XA, L_XB, L_H, L_SPA, L_SPB = 0, 4*MB_, 12*MB_, 16*MB_, 20*MB_, 24*MB_, 38*MB_, 38*MB_ + 524288
WS_CSQ, WS_CS1 = 80*MB_, 80*MB_ + 262144
WS_FLG = 81*MB_
WS_PKF = WS_FLG - 4096
WS_PQ, WS_PO, WS_P1, WS_P2 = 82*MB_, 88*MB_, 90*MB_, 97*MB_
WS_EX = 104 * MB_
WS_USED = 120 * MB_
KA = dict(x=0, wqkv=8, wo=16, bx=24, w1=32, w2=40, out=48, dbg=56, ws=64)
QSCALE = (32 ** -0.5) * 1.4426950408889634
STAT = 163840 - 2048
SC = ' sc1'
MBK, NBK = (4, 8) if 'm48' in sys.argv else ((2, 16) if 'm216' in sys.argv else (8, 4))
TIMEOUT = 200000
SLEEP = 2
DBGQ = False
OPT = set()
RING = 4 * 32768

def f32bits(x): return struct.unpack('<I', struct.pack('<f', x))[0]
def log2(x):
    assert x & (x - 1) == 0
    return x.bit_length() - 1

def stamp(a, i):
    if not dsl.PROF: return
    a(f's_memrealtime s[{64+2*i}:{65+2*i}]')
    a('s_waitcnt lgkmcnt(0)')
def prof_flush(a, ph, role):
    if not dsl.PROF: return
    a('s_cmp_eq_u32 s10, 0')
    a(f's_cselect_b32 s97, {ph}, {ph + 5}')
    a('s_lshl_b32 s97, s97, 8')
    a('s_add_u32 s97, s97, s2')
    a('s_lshl_b32 s97, s97, 3')
    a('s_add_u32 s97, s97, s3')
    if role: a('s_add_u32 s97, s97, 4')
    a('s_lshl_b32 s97, s97, 5')
    a(f's_add_u32 s97, s97, {dsl.PROF_OFF}')
    a('s_mov_b32 s88, s4\ns_mov_b32 s89, s5\ns_mov_b32 s90, 0x10000000\ns_mov_b32 s91, 0x20000')
    a('v_mov_b32 v1, 0')
    for i in range(8):
        a(f'v_mov_b32 v3, s{64+2*i}')
        a(f'buffer_store_dword v3, v1, s[88:91], s97 offen offset:{4*i}')

FSTR = int(([x[4:] for x in sys.argv if x.startswith('fstr')] or [64])[0])
GSTR = max(16 * FSTR, 256)
PSTR = 16 * GSTR
RDY = STAT - 64
def code_srd(a, B, tag):
    a(f's_getpc_b64 s[{B}:{B+1}]')
    a(f'{tag}_pc:')
    a(f's_add_u32 s{B}, s{B}, main_kernel-{tag}_pc')
    a(f's_addc_u32 s{B+1}, s{B+1}, {0 if tag == "pre" else -1}')
    a(f's_mov_b32 s{B+2}, main_end-main_kernel')
    a(f's_mov_b32 s{B+3}, 0x20000')
def code_touch(a, B, va, vd, st):
    a(f'v_lshlrev_b32 v{va}, 7, v0')
    for i in range(5):
        a(f's_mov_b32 {st}, {i*8192}')
        a(f'buffer_load_dword v{vd}, v{va}, s[{B}:{B+3}], {st} offen')

def spin_global(a, tag, soff, shift, lanes=-1, n4=0):
    a(f's_mov_b32 s55, {TIMEOUT}')
    a(f'v_lshlrev_b32 v9, {shift}, v0')
    if lanes != -1: a(f's_mov_b64 exec, {lanes}')
    a(f'{tag}_poll:')
    if n4:
        for i in range(n4): a(f'buffer_load_dwordx4 v[{12+4*i}:{15+4*i}], v9, s[16:19], {soff} offen offset:{i*1024}{SC}')
        a('s_waitcnt vmcnt(0)')
        a('v_and_b32 v10, v12, v13')
        for r in range(14, 12 + 4 * n4): a(f'v_and_b32 v10, v10, v{r}')
    else:
        a(f'buffer_load_dword v10, v9, s[16:19], {soff} offen{SC}')
        a('s_waitcnt vmcnt(0)')
    a('v_cmp_eq_u32 vcc, 0, v10')
    a(f's_cbranch_vccz {tag}_ok')
    a(f's_sleep {SLEEP}')
    a('s_sub_u32 s55, s55, 1')
    a('s_cmp_lg_u32 s55, 0')
    a(f's_cbranch_scc1 {tag}_poll')
    a(f'{tag}_ok:')
    if lanes != -1: a('s_mov_b64 exec, -1')

def handoff(a, tag, ph, pgroup, pidx, cgroup, mid=None):
    a('s_barrier')
    a('s_add_u32 s58, s58, 1')
    a(f'v_mov_b32 v11, {RDY}')
    a('s_cmp_lg_u32 s3, 0')
    a(f's_cbranch_scc1 {tag}_nf')
    a(f's_mul_i32 s54, {pgroup}, {GSTR}')
    a(f's_mul_i32 s55, {pidx}, {FSTR}')
    a('s_add_u32 s54, s54, s55')
    a('s_add_u32 s54, s54, s11')
    a(f's_add_u32 s54, s54, {ph*PSTR & 0xffffffff}')
    a('v_mov_b32 v9, 0')
    a('v_mov_b32 v10, 1')
    a('s_mov_b64 exec, 1')
    a(f'buffer_store_dword v10, v9, s[16:19], s54 offen{SC}')
    a('s_mov_b64 exec, -1')
    a(f'{tag}_nf:')
    if mid: mid()
    a('s_cmp_lg_u32 s3, 0')
    a(f's_cbranch_scc1 {tag}_wait')
    a(f's_mul_i32 s54, {cgroup}, {GSTR}')
    a('s_add_u32 s54, s54, s11')
    a(f's_add_u32 s54, s54, {ph*PSTR & 0xffffffff}')
    spin_global(a, tag, 's54', log2(FSTR), lanes=0xffff)
    a('v_mov_b32 v10, s58')
    a('ds_write_b32 v11, v10')
    a(f's_branch {tag}_go')
    a(f'{tag}_wait:')
    if 'nocodepf' not in OPT:
        a('s_add_u32 s55, s10, s3')
        a('s_cmp_lg_u32 s55, 1')
        a(f's_cbranch_scc1 {tag}_np')
        code_touch(a, 80, 12, 13, 's55')
        a(f'{tag}_np:')
    a(f's_mov_b32 s55, {TIMEOUT * 16}')
    a(f'{tag}_w2:')
    a('ds_read_b32 v10, v11')
    a('s_waitcnt lgkmcnt(0)')
    a('v_cmp_ne_u32 vcc, s58, v10')
    a(f's_cbranch_vccz {tag}_go')
    a('s_sleep 1')
    a('s_sub_u32 s55, s55, 1')
    a('s_cmp_lg_u32 s55, 0')
    a(f's_cbranch_scc1 {tag}_w2')
    a(f'{tag}_go:')

def signal(a, ph, group, idx):
    stamp(a, 3)
    a('s_waitcnt vmcnt(0)')
    stamp(a, 4)
    a('s_barrier')

class Cfg:
    def __init__(s, name, kind, ph, K, woff, R, lead, xoff, ooff, roff=0, spoff=0):
        s.name, s.kind, s.ph, s.K, s.woff, s.R, s.lead = name, kind, ph, K, woff, R, lead
        s.xoff, s.ooff, s.roff, s.spoff = xoff, ooff, roff, spoff
        s.npanel = 1 if kind == 'res' else 3
        s.half = kind == 'w1'
        s.NF = 4 * s.npanel + (2 if s.half else 0)
        s.UB = 8192 + s.NF * 1024
        s.U = K // 32
        s.T = s.U // 2
        s.nw = s.npanel + (1 if s.half else 0)
        s.nload = 2 + s.nw
        assert lead <= R - 2 and lead % 2 == 0 and s.UB * R <= STAT - 64 and s.nload * R <= 63

C_QKV = Cfg('qkv', 'qkv', 0, 1024, WS_PQ, 7, 4, L_XA, 0, spoff=L_SPA)
C_WO  = Cfg('wo',  'res', 2, 1024, WS_PO, 12, 6, L_O, L_XB, roff=L_XA, spoff=L_SPB)
C_W1  = Cfg('w1',  'w1',  3, 1024, WS_P1, 7, 4, L_XB, L_H, spoff=L_SPB)
C_W2  = Cfg('w2',  'res', 4, 3584, WS_P2, 12, 6, L_H, L_XA + LSTR, roff=L_XB, spoff=L_SPA + LSTR)

def stats_issue(a, c):
    FR = 16
    a('v_and_b32 v1, 15, v0')
    a('v_lshrrev_b32 v2, 4, v0')
    a('v_lshlrev_b32 v3, 4, v1')
    a('v_lshl_add_u32 v3, v2, 10, v3')
    a('s_lshl_b32 s36, s26, 15')
    a('s_lshl_b32 s37, s3, 8')
    a('s_add_u32 s36, s36, s37')
    a('s_add_u32 s36, s36, s10')
    a(f's_add_u32 s36, s36, {c.spoff}')
    for i in range(8):
        if i: a('s_add_u32 s36, s36, 4096')
        a(f'buffer_load_dwordx4 v[{FR+4*i}:{FR+4*i+3}], v3, s[16:19], s36 offen{SC}')
    csoff, csld = (WS_CSQ, 3072 * 4) if c.kind == 'qkv' else (WS_CS1, 3584 * 4)
    if c.kind == 'qkv':
        a('s_min_u32 s37, s3, 2')
        a('s_lshl_b32 s37, s37, 12')
        a('s_lshl_b32 s38, s27, 8')
    else:
        a('s_lshl_b32 s37, s3, 8')
        a('s_mul_i32 s38, s27, 896')
    a('s_add_u32 s37, s37, s38')
    a(f's_add_u32 s37, s37, {csoff}')
    a('v_lshlrev_b32 v13, 2, v0')
    ncs = 16 if c.kind == 'qkv' else 8
    for i in range(ncs):
        a(f'buffer_load_dword v{FR+32+i}, v13, s[16:19], s37 offen{SC}')
        if i < ncs - 1: a(f's_add_u32 s37, s37, {csld}')
    return 8 + ncs

def stats_finish(a, c):
    FR = 16; S = STAT; CSR = FR + 32
    ncs = 16 if c.kind == 'qkv' else 8
    a('s_lshl_b32 s38, s3, 8')
    a(f's_add_u32 s38, s38, {S + 1024}')
    a('v_add_u32 v13, s38, v13')
    a('s_waitcnt vmcnt(0)')
    for i in range(1, ncs // 2): a(f'v_pk_add_f32 v[{CSR}:{CSR+1}], v[{CSR}:{CSR+1}], v[{CSR+2*i}:{CSR+1+2*i}]')
    a(f'v_add_f32 v{CSR}, v{CSR}, v{CSR+1}')
    a(f'ds_write_b32 v13, v{CSR}')
    for i in range(1, 8):
        for h in range(2):
            a(f'v_pk_add_f32 v[{FR+2*h}:{FR+2*h+1}], v[{FR+2*h}:{FR+2*h+1}], v[{FR+4*i+2*h}:{FR+4*i+2*h+1}]')
    for sw in ('v_permlane32_swap_b32', 'v_permlane16_swap_b32'):
        for r in range(4): a(f'v_mov_b32 v{FR+4+r}, v{FR+r}')
        for r in range(4): a(f'{sw} v{FR+r}, v{FR+4+r}')
        for r in range(4): a(f'v_add_f32 v{FR+r}, v{FR+r}, v{FR+4+r}')
    a(f's_mov_b32 s36, {f32bits(1.0/1024)}')
    a(f's_mov_b32 s37, {f32bits(1e-5)}')
    for r in range(4): a(f'v_mul_f32 v{FR+r}, s36, v{FR+r}')
    for q in (0, 2): a(f'v_fma_f32 v{FR+q+1}, -v{FR+q}, v{FR+q}, v{FR+q+1}')
    for q in (0, 2): a(f'v_max_f32 v{FR+q+1}, 0, v{FR+q+1}')
    for q in (0, 2): a(f'v_add_f32 v{FR+q+1}, s37, v{FR+q+1}')
    a(f'v_rsq_f32 v{FR+6}, v{FR+1}')
    a(f'v_rsq_f32 v{FR+7}, v{FR+3}')
    a(f'v_sub_f32 v{FR+4}, 0, v{FR}')
    a(f'v_sub_f32 v{FR+5}, 0, v{FR+2}')
    a('s_lshl_b32 s36, s3, 7')
    a(f's_add_u32 s36, s36, {S}')
    a('v_lshlrev_b32 v3, 3, v1')
    a('v_add_u32 v3, s36, v3')
    a(f'ds_write_b64 v3, v[{FR+4}:{FR+5}]')
    a(f'ds_write_b64 v3, v[{FR+6}:{FR+7}] offset:512')
    a('s_waitcnt lgkmcnt(0)')

def gemm_loader(a, c):
    n = c.name; R, U, T, lead, npw = c.R, c.U, c.T, c.lead, c.npanel
    stamp(a, 0)
    a('v_lshlrev_b32 v8, 4, v0')
    a('s_lshl_b32 s44, s3, 11')
    a(f's_mul_i32 s40, s26, {U * 8192}')
    a('s_add_u32 s40, s40, s10')
    a(f's_add_u32 s40, s40, {c.xoff}')
    a('s_add_u32 s40, s40, s44')
    a(f's_mul_i32 s45, s3, {npw * 1024}')
    a(f's_mul_i32 s41, s27, {U * c.NF * 1024}')
    a(f's_add_u32 s41, s41, {c.woff}')
    if c.half:
        a('s_lshl_b32 s46, s3, 9')
        a(f's_add_u32 s46, s46, {12 * 1024}')
        a('s_add_u32 s42, s41, s46')
        a('s_add_u32 s46, s46, 8192')
    a('s_add_u32 s41, s41, s45')
    a('s_add_u32 s45, s45, 8192')
    def issue_w(slot, first=False):
        if not first:
            a(f's_add_u32 m0, {slot}, s45')
            a('s_nop 0')
        for p in range(npw): a(f'buffer_load_dwordx4 v8, s[16:19], s41 offen offset:{p*1024}{SC} lds')
        if c.half:
            a(f's_add_u32 m0, {slot}, s46')
            a('s_mov_b32 exec_hi, 0')
            a(f'buffer_load_dwordx4 v8, s[16:19], s42 offen{SC} lds')
            a('s_mov_b32 exec_hi, -1')
            a(f's_add_u32 s42, s42, {c.NF*1024}')
        a(f's_add_u32 s41, s41, {c.NF*1024}')
    def issue_x(slot):
        a(f's_add_u32 m0, {slot}, s44')
        a('s_nop 0')
        a(f'buffer_load_dwordx4 v8, s[16:19], s40 offen{SC} lds')
        a(f'buffer_load_dwordx4 v8, s[16:19], s40 offen offset:1024{SC} lds')
        a('s_add_u32 s40, s40, 8192')
    def issue(first=False):
        issue_w('s43', first); issue_x('s43')
        a(f's_add_u32 s43, s43, {c.UB}')
        a(f's_cmp_eq_u32 s43, {c.UB*R}')
        a('s_cselect_b32 s43, 0, s43')
    if c is C_WO:
        a('s_cmp_lg_u32 s10, 0')
        a(f's_cbranch_scc1 {n}_pk_ok')
        a(f's_mov_b32 s47, {WS_PKF}')
        spin_global(a, n + '_pk', 's47', 4, n4=4)
    def wpre():
        for u in range(lead): issue_w(u * c.UB)
        stamp(a, 1)
    if 'earlyw' not in OPT:
        if c is C_QKV:
            a('s_cmp_eq_u32 s10, 0')
            a(f's_cbranch_scc1 {n}_nf')
        def mid():
            wpre()
            if c is C_QKV:
                a('s_cmp_eq_u32 s10, 0')
                a(f's_cbranch_scc1 {n}_go')
        handoff(a, n, c.ph - 1, 's26', 's27', 's26', mid=mid)
    else:
        wpre()
        if c is C_QKV:
            a('s_cmp_eq_u32 s10, 0')
            a(f's_cbranch_scc1 {n}_go')
        handoff(a, n, c.ph - 1, 's26', 's27', 's26')
    stamp(a, 2)
    for u in range(lead): issue_x(u * c.UB)
    a(f's_mov_b32 s43, {lead * c.UB}')
    nl = c.nload
    q = [u for u in range(lead) for _ in range(2)]
    def wait_units(last, extra=0):
        k = max([i for i, t in enumerate(q) if t <= last], default=-1)
        a(f's_waitcnt vmcnt({len(q) - 1 - k + extra})')
        del q[:k + 1]
    wait_units(1)
    a('s_barrier')
    stamp(a, 3)
    issued = lead; t = 0
    while 2 * t + 4 < lead + 0:
        for _ in range(2): issue(); q += [issued] * nl; issued += 1
        wait_units(2 * t + 3); a('s_barrier'); t += 1
    nfull = (U - issued) // 2
    a(f's_mov_b32 s50, {nfull}')
    a('s_add_u32 m0, s43, s45')
    a(f's_branch {n}_lbody')
    a(f'{n}_lhead:')
    a(f's_waitcnt vmcnt({(lead-2)*nl})')
    a('s_barrier')
    a(f'{n}_lbody:')
    issue(first=True); issue()
    a('s_add_u32 m0, s43, s45')
    a('s_sub_u32 s50, s50, 1')
    a('s_cmp_lg_u32 s50, 0')
    a(f's_cbranch_scc1 {n}_lhead')
    issued += 2 * nfull; t += nfull - 1
    assert issued == U
    extra = stats_issue(a, c) if c.kind != 'res' else 0
    while t < T:
        if t == T - 1 and c.kind != 'res': stats_finish(a, c)
        else: a(f's_waitcnt vmcnt({max(0, issued - (2*t+4))*nl + extra})')
        a('s_barrier'); t += 1
    stamp(a, 4)
    prof_flush(a, c.ph, 0)

def mfma(d, x, y): return f'v_mfma_f32_16x16x32_bf16 v[{d}:{d+3}], v[{x}:{x+3}], v[{y}:{y+3}], v[{d}:{d+3}]'
def wrapmask(nsteps, period):
    m = 0
    for i in range(nsteps):
        if (i + 1) % period == 0: m |= 1 << i
    return m

def res_epilogue(a, c, acc, FR):
    n = c.name
    for m in range(4):
        d = FR + 4 * m
        for e in range(2):
            s_ = acc(m, e)
            a(f'v_cvt_pk_bf16_f32 v{d+2*e}, v{s_}, v{s_+1}')
            a(f'v_cvt_pk_bf16_f32 v{d+2*e+1}, v{s_+2}, v{s_+3}')
    if c is C_W2:
        a('s_cmp_lg_u32 s10, 0')
        a(f's_cbranch_scc1 {n}_final')
    a(f's_add_u32 s36, s36, {c.ooff}')
    for m in range(4):
        a(f'buffer_store_dwordx4 v[{FR+4*m}:{FR+4*m+3}], v8, s[16:19], s36 offen offset:{m*1024}{SC}')
    SQ = FR + 16
    a('v_mov_b32 v3, 0x3f803f80')
    for r in range(8): a(f'v_mov_b32 v{SQ+r}, 0')
    for r in range(4):
        for m in range(4):
            a(f'v_dot2c_f32_bf16 v{SQ+m}, v{FR+4*m+r}, v3')
            a(f'v_dot2c_f32_bf16 v{SQ+4+m}, v{FR+4*m+r}, v{FR+4*m+r}')
    for b in (0, 4):
        a(f'v_permlane32_swap_b32 v{SQ+b}, v{SQ+b+1}')
        a(f'v_permlane32_swap_b32 v{SQ+b+2}, v{SQ+b+3}')
    for b in (0, 4):
        a(f'v_add_f32 v{SQ+b}, v{SQ+b}, v{SQ+b+1}')
        a(f'v_add_f32 v{SQ+b+2}, v{SQ+b+2}, v{SQ+b+3}')
    for b in (0, 4): a(f'v_permlane16_swap_b32 v{SQ+b}, v{SQ+b+2}')
    a(f'v_add_f32 v{SQ}, v{SQ}, v{SQ+2}')
    a(f'v_add_f32 v{SQ+1}, v{SQ+4}, v{SQ+6}')
    a('v_and_b32 v13, 1, v2')
    a('v_lshrrev_b32 v14, 1, v2')
    a('v_lshl_add_u32 v13, v13, 1, v14')
    a('v_lshl_add_u32 v13, v13, 4, v1')
    a('v_lshlrev_b32 v13, 3, v13')
    a('s_lshl_b32 s37, s26, 5')
    a('s_lshl_b32 s38, s27, 1')
    a('s_add_u32 s37, s37, s38')
    a('s_add_u32 s37, s37, s33')
    a('s_lshl_b32 s37, s37, 10')
    a('s_lshl_b32 s38, s32, 9')
    a('s_add_u32 s37, s37, s38')
    a('s_add_u32 s37, s37, s10')
    a(f's_add_u32 s37, s37, {c.spoff}')
    a(f'buffer_store_dwordx2 v[{SQ}:{SQ+1}], v13, s[16:19], s37 offen{SC}')
    signal(a, c.ph, 's26', 's27')
    prof_flush(a, c.ph, 1)
    if c is C_W2:
        c.final = lambda: final_store(a, c, FR)

def gemm_consumer(a, c):
    n = c.name; R, U, T = c.R, c.U, c.T
    res = c.kind == 'res'
    NW = {'qkv': 6, 'w1': 8, 'res': 2}[c.kind]
    tiles = [(m, t) for t in range(min(NW, 6)) for m in range(4)]
    if c.kind == 'w1': tiles += [(m, t) for t in (6, 7) for m in range(2)]
    nsub = 2 if res else 1
    VX, VW = 4, 6
    FR = 16
    fset = nsub * (4 + NW) * 4
    ACC = FR + 2 * fset
    accmap = {mt: ACC + 4 * i for i, mt in enumerate(sorted(tiles))}
    c.vgpr = ACC + 4 * len(tiles)
    acc = lambda m, t: accmap[(m, t)]
    xf = lambda st, si, m: FR + st * fset + (si * (4 + NW) + m) * 4
    wf = lambda st, si, t: FR + st * fset + (si * (4 + NW) + 4 + t) * 4
    S = STAT
    stamp(a, 0)
    a('v_lshlrev_b32 v8, 4, v0')
    a('v_and_b32 v1, 15, v0')
    a('v_lshrrev_b32 v2, 4, v0')
    a('s_lshl_b32 s34, s32, 12')
    if c.kind == 'w1':
        a('s_lshl_b32 s35, s33, 11')
        a('s_add_u32 s34, s34, s35')
        a(f'v_add_u32 v{VX}, s34, v8')
        a(f'v_xor_b32 v{VX+1}, 2048, v{VX}')
        xsrc = lambda m: (VX + (m >> 1), (m & 1) * 1024)
        addr_regs = [VX, VX + 1, VW, VW + 1]
    else:
        a(f'v_add_u32 v{VX}, s34, v8')
        xsrc = lambda m: (VX, m * 1024)
        addr_regs = [VX, VW]
    a('s_lshl_b32 s34, s33, 11')
    a('s_add_u32 s34, s34, 8192')
    a(f'v_add_u32 v{VW}, s34, v8')
    if c.half: a(f'v_add_u32 v{VW+1}, {8192 + 12*1024}, v8')
    wsrc = lambda t: (VW, (t >> 1) * 4096 + (t & 1) * 1024) if t < 6 else (VW + 1, (t & 1) * 1024)
    if res:
        a('s_lshl_b32 s36, s26, 5')
        a('s_lshl_b32 s37, s27, 1')
        a('s_add_u32 s36, s36, s37')
        a('s_add_u32 s36, s36, s33')
        a('s_lshl_b32 s36, s36, 13')
        a('s_lshl_b32 s37, s32, 12')
        a('s_add_u32 s36, s36, s37')
        a('s_add_u32 s36, s36, s10')
        a(f's_add_u32 s37, s36, {c.roff}')
        for m in range(4):
            a(f'buffer_load_dwordx4 v[{FR+4*m}:{FR+4*m+3}], v8, s[16:19], s37 offen offset:{m*1024}{SC}')
        for m in range(4):
            a(f's_waitcnt vmcnt({3-m})')
            for e in range(2):
                d = acc(m, e); r = FR + 4 * m + 2 * e
                a(f'v_lshlrev_b32 v{d}, 16, v{r}')
                a(f'v_and_b32 v{d+1}, 0xffff0000, v{r}')
                a(f'v_lshlrev_b32 v{d+2}, 16, v{r+1}')
                a(f'v_and_b32 v{d+3}, 0xffff0000, v{r+1}')
    else:
        for r in range(ACC, c.vgpr): a(f'v_mov_b32 v{r}, 0')
    def reads(st):
        out = []
        for si in range(nsub):
            ub = si * c.UB
            for m in range(4):
                reg, off = xsrc(m)
                out.append(f'ds_read_b128 v[{xf(st,si,m)}:{xf(st,si,m)+3}], v{reg} offset:{ub + off}')
            for t in range(NW):
                reg, off = wsrc(t); d = wf(st, si, t)
                out.append(f'ds_read_b128 v[{d}:{d+3}], v{reg} offset:{ub + off}')
        return out
    def mfmas(st):
        out = []
        for si in range(nsub):
            for m, t in tiles:
                if c.kind == 'qkv' and t >= 4: out.append(mfma(acc(m, t), xf(st, si, m), wf(st, si, t)))
                else: out.append(mfma(acc(m, t), wf(st, si, t), xf(st, si, m)))
        return out
    step = c.UB * nsub; period = R // nsub; nsteps = U // nsub
    mask = wrapmask(nsteps + 1, period)
    a(f's_mov_b32 s44, {mask & 0xffffffff}')
    a(f's_mov_b32 s45, {mask >> 32}')
    a(f's_mov_b32 s43, {-(period-1)*step & 0xffffffff}')
    a('s_mov_b32 s41, 0')
    pre = ['s_bitcmp1_b64 s[44:45], s41', f's_cselect_b32 s42, s43, {step}', 's_add_u32 s41, s41, 1']
    adv = [f'v_add_u32 v{r}, s42, v{r}' for r in addr_regs]
    def weave(ms, fill, at=None):
        for i, m in enumerate(ms):
            for x in (at or {}).get(i, []): a(x)
            a(m)
            for x in (fill[i] if i < len(fill) else []): a(x)
    def spread(items, ngaps):
        out = [[] for _ in range(ngaps)]
        extra = max(0, len(items) - ngaps); k = 0
        for i in range(ngaps):
            cnt = 2 if i < extra else 1
            out[i] = items[k:k + cnt]; k += cnt
        assert k >= len(items)
        return out
    a('s_barrier')
    stamp(a, 1)
    for x in pre: a(x)
    for r in reads(0): a(r)
    for x in adv: a(x)
    nm = len(tiles) * nsub
    if not res:
        a('s_waitcnt lgkmcnt(0)')
        a(f'.p2align 6\n{n}_cloop:')
        weave(mfmas(0), spread(reads(1) + pre + adv, nm - 3), at={nm - 1: ['s_waitcnt lgkmcnt(0)', 's_barrier']})
        f = spread(reads(0) + pre + adv, nm - 4)
        f += [[f's_cmp_lt_u32 s41, {nsteps + 1}'], [], ['s_waitcnt lgkmcnt(0)'], [f's_cbranch_scc1 {n}_cloop']]
        weave(mfmas(1), f)
    else:
        a(f'.p2align 6\n{n}_cloop:')
        a('s_waitcnt lgkmcnt(0)')
        a('s_barrier')
        weave(mfmas(0), spread(reads(1) + pre + adv, nm))
        a('s_waitcnt lgkmcnt(0)')
        a(f's_cmp_lt_u32 s41, {nsteps}')
        a('s_barrier')
        a(f's_cbranch_scc0 {n}_clast')
        weave(mfmas(1), spread(reads(0) + pre + adv, nm))
        a(f's_branch {n}_cloop')
        a(f'{n}_clast:')
        weave(mfmas(1), [])
    stamp(a, 2)
    if res:
        res_epilogue(a, c, acc, FR)
        return
    a('s_lshl_b32 s34, s32, 8')
    a(f's_add_u32 s34, s34, {S}')
    a('v_lshlrev_b32 v3, 2, v1')
    if c.kind == 'w1':
        a('s_lshl_b32 s35, s33, 7')
        a('s_add_u32 s35, s35, s34')
        a('v_add_u32 v3, s35, v3')
        a('v_xor_b32 v14, 128, v3')
        msrc = lambda m: (3 if m < 2 else 14, (m & 1) * 64)
    else:
        a('v_add_u32 v3, s34, v3')
        msrc = lambda m: (3, m * 64)
    for m in range(4):
        r, o = msrc(m)
        a(f'ds_read_b32 v{FR+2*m}, v{r} offset:{o}')
        a(f'ds_read_b32 v{FR+2*m+1}, v{r} offset:{512 + o}')
    CS = FR + 8
    a('v_lshlrev_b32 v13, 4, v2')
    a(f'v_add_u32 v13, {S + 1024}, v13')
    a('s_lshl_b32 s35, s33, 7')
    a('v_add_u32 v15, s35, v13')
    def fold(d, cs, st, tmp):
        for h in range(2):
            a(f'v_pk_fma_f32 v[{d+2*h}:{d+2*h+1}], v[{cs+2*h}:{cs+2*h+1}], v[{st}:{st+1}], v[{d+2*h}:{d+2*h+1}] op_sel:[0,0,0] op_sel_hi:[1,0,1]')
        for h in range(2):
            a(f'v_pk_mul_f32 v[{d+2*h}:{d+2*h+1}], v[{d+2*h}:{d+2*h+1}], v[{st}:{st+1}] op_sel:[0,1] op_sel_hi:[1,1]')
        a(f'v_cvt_pk_bf16_f32 v{tmp}, v{d}, v{d+1}')
        a(f'v_cvt_pk_bf16_f32 v{tmp+1}, v{d+2}, v{d+3}')
    if c.kind == 'w1':
        for t in range(6): a(f'ds_read_b128 v[{CS+4*t}:{CS+4*t+3}], v15 offset:{(t>>1)*256 + (t&1)*64}')
        for t in (6, 7): a(f'ds_read_b128 v[{CS+4*t}:{CS+4*t+3}], v13 offset:{768 + (t&1)*64}')
        a('s_mul_i32 s36, s26, 112')
        a('s_mul_i32 s37, s27, 7')
        a('s_add_u32 s36, s36, s37')
        a('s_add_u32 s37, s36, s33')
        a('s_add_u32 s38, s36, 6')
        a('s_lshl_b32 s37, s37, 13')
        a('s_lshl_b32 s38, s38, 13')
        a('s_lshl_b32 s36, s32, 12')
        a('s_add_u32 s36, s36, s10')
        a(f's_add_u32 s36, s36, {c.ooff}')
        a('s_add_u32 s37, s37, s36')
        a('s_add_u32 s38, s38, s36')
        a('s_lshl_b32 s35, s33, 11')
        a('v_add_u32 v3, s35, v8')
        a('v_xor_b32 v14, 2048, v3')
        a('s_waitcnt lgkmcnt(0)')
        TM = CS + 32
        k = 0
        for p in range(4):
            for m in range(4 if p < 3 else 2):
                d = TM + 4 * (k % 4); k += 1
                for e in range(2): fold(acc(m, 2 * p + e), CS + 4 * (2 * p + e), FR + 2 * m, d + 2 * e)
                for r in range(4): a(f'v_pk_max_i16 v{d+r}, v{d+r}, 0')
                a(f'buffer_store_dwordx4 v[{d}:{d+3}], v{3 if m < 2 else 14}, s[16:19], {"s37" if p < 3 else "s38"} offen offset:{(m&1)*1024}{SC}')
            if p < 2: a(f's_add_u32 s37, s37, {2*8192}')
        signal(a, c.ph, 's26', 's27')
        prof_flush(a, c.ph, 1)
        return
    for t in range(4): a(f'ds_read_b128 v[{CS+4*t}:{CS+4*t+3}], v15 offset:{(t>>1)*256 + (t&1)*64}')
    a('v_lshlrev_b32 v14, 2, v1')
    a('v_add_u32 v14, s35, v14')
    a(f'v_add_u32 v14, {S + 1024 + 512}, v14')
    CV = CS + 16
    a(f'ds_read_b32 v{CV}, v14')
    a(f'ds_read_b32 v{CV+1}, v14 offset:64')
    a('v_lshlrev_b32 v14, 4, v2')
    a('v_add_u32 v14, s34, v14')
    MV = CV + 4
    a('s_waitcnt lgkmcnt(6)')
    for m in range(4):
        a(f'ds_read_b128 v[{MV+8*m}:{MV+8*m+3}], v14 offset:{m*64}')
        a(f'ds_read_b128 v[{MV+8*m+4}:{MV+8*m+7}], v14 offset:{512 + m*64}')
    TM = MV + 32
    assert TM + 16 <= ACC
    a('v_lshlrev_b32 v3, 4, v1')
    a('v_lshl_add_u32 v3, v2, 9, v3')
    a('v_and_b32 v13, 8, v1')
    a('v_lshl_add_u32 v15, v13, 4, v3')
    a('s_lshl_b32 s34, s27, 1')
    a('s_add_u32 s34, s34, s33')
    a('s_lshl_b32 s35, s26, 2')
    a('s_lshl_b32 s36, s32, 1')
    a('s_add_u32 s35, s35, s36')
    a('s_lshl_b32 s36, s34, 17')
    a('s_lshl_b32 s37, s35, 11')
    a('s_add_u32 s36, s36, s37')
    a('s_lshl_b32 s37, s36, 1')
    a('s_add_u32 s37, s37, s10')
    a(f's_add_u32 s37, s37, {L_KVF}')
    a('s_add_u32 s38, s37, 4096')
    a('s_add_u32 s36, s36, s10')
    a('s_lshl_b32 s34, s33, 14')
    a('s_lshl_b32 s35, s32, 13')
    a('s_add_u32 s34, s34, s35')
    a('v_add_u32 v9, s34, v15')
    a('v_add_u32 v10, s34, v3')
    a('s_lshl_b32 s35, s3, 12')
    a(f's_add_u32 s35, s35, {RING}')
    a('v_add_u32 v11, s35, v3')
    a(f's_mov_b32 s39, {f32bits(QSCALE)}')
    a('s_waitcnt lgkmcnt(0)')
    k = 0
    for m in range(4):
        d = TM + 4 * (k % 4); k += 1
        for e in range(2): fold(acc(m, 2 + e), CS + 4 * (2 + e), FR + 2 * m, d + 2 * e)
        a(f'buffer_store_dwordx4 v[{d}:{d+3}], v15, s[16:19], {"s37" if m < 2 else "s38"} offen offset:{(m&1)*128}{SC}')
        a(f'ds_write_b128 v9, v[{d}:{d+3}] offset:{(m>>1)*4096 + (m&1)*128}')
    for tp in range(2):
        for e in range(2):
            d = TM + 4 * (k % 4); k += 1
            for mm in range(2):
                m = 2 * tp + mm; s_ = acc(m, 4 + e)
                for h in range(2):
                    a(f'v_pk_fma_f32 v[{s_+2*h}:{s_+2*h+1}], v[{MV+8*m+2*h}:{MV+8*m+2*h+1}], v[{CV}:{CV+1}], v[{s_+2*h}:{s_+2*h+1}] op_sel:[0,{e},0] op_sel_hi:[1,{e},1]')
                for h in range(2):
                    a(f'v_pk_mul_f32 v[{s_+2*h}:{s_+2*h+1}], v[{s_+2*h}:{s_+2*h+1}], v[{MV+8*m+4+2*h}:{MV+8*m+5+2*h}]')
                a(f'v_cvt_pk_bf16_f32 v{d+2*mm}, v{s_}, v{s_+1}')
                a(f'v_cvt_pk_bf16_f32 v{d+2*mm+1}, v{s_+2}, v{s_+3}')
            a(f'buffer_store_dwordx4 v[{d}:{d+3}], v3, s[16:19], {"s37" if tp == 0 else "s38"} offen offset:{2048 + e*256}{SC}')
            a(f'ds_write_b128 v10, v[{d}:{d+3}] offset:{tp*4096 + 2048 + e*256}')
    for m in range(4): a(f'v_mul_f32 v{FR+2*m+1}, s39, v{FR+2*m+1}')
    for m in range(4):
        d = TM + 4 * (k % 4); k += 1
        for e in range(2): fold(acc(m, e), CS + 4 * e, FR + 2 * m, d + 2 * e)
        a(f'ds_write_b128 v11, v[{d}:{d+3}] offset:{(m>>1)*2048 + (m&1)*256}')
        if DBGQ: a(f'buffer_store_dwordx4 v[{d}:{d+3}], v3, s[16:19], s36 offen offset:{(m>>1)*2048 + (m&1)*256}{SC}')
    stamp(a, 3); stamp(a, 4)
    prof_flush(a, c.ph, 1)

def final_store(a, c, FR):
    a(f'{c.name}_final:')
    a('s_mov_b32 s20, s8')
    a('s_mov_b32 s21, s9')
    a(f's_mov_b32 s22, {2048*2048}')
    a('s_mov_b32 s23, 0x20000')
    a('v_and_b32 v3, 1, v2')
    a('v_lshlrev_b32 v3, 5, v3')
    a('v_lshrrev_b32 v13, 1, v2')
    a('v_lshl_add_u32 v3, v13, 4, v3')
    a('v_lshl_add_u32 v3, v1, 11, v3')
    a('s_lshl_b32 s36, s26, 18')
    a('s_lshl_b32 s37, s32, 17')
    a('s_add_u32 s36, s36, s37')
    a('s_lshl_b32 s37, s27, 7')
    a('s_add_u32 s36, s36, s37')
    a('s_lshl_b32 s37, s33, 6')
    a('s_add_u32 s36, s36, s37')
    for m in range(4):
        d = FR + 4 * m
        a(f'v_permlane16_swap_b32 v{d}, v{d+2}')
        a(f'v_permlane16_swap_b32 v{d+1}, v{d+3}')
        if m: a('s_add_u32 s36, s36, 32768')
        a(f'buffer_store_dwordx4 v[{d}:{d+3}], v3, s[20:23], s36 offen{SC}')
    stamp(a, 3)
    if dsl.PROF: a('s_waitcnt vmcnt(0)')
    stamp(a, 4)
    prof_flush(a, c.ph, 1)
    a('s_endpgm')


N1 = int(([x[2:] for x in sys.argv if x.startswith('n1')] or [44])[0]); N2 = 112 - 2 * N1
UB2, R2, LEAD2 = 16384, 8, 6
EV_DRAIN, EV_LOAD = [int(x) for x in ([x[2:] for x in sys.argv if x.startswith('ev')] or ['24'])[0]]
def w2_loader(a):
    c = C_W2; n = 'w2'; lead = LEAD2; T1 = N1 // 2; T = (N1 + N2) // 2; U = N1 + N2
    stamp(a, 0)
    a('v_lshlrev_b32 v8, 4, v0')
    a('s_lshl_b32 s44, s3, 11')
    a('s_and_b32 s48, s27, 1')
    a(f's_mul_i32 s48, s48, {N1}')
    a(f's_mul_i32 s40, s26, 112')
    a('s_add_u32 s40, s40, s48')
    a('s_lshl_b32 s40, s40, 13')
    a('s_add_u32 s40, s40, s10')
    a(f's_add_u32 s40, s40, {c.xoff}')
    a('s_add_u32 s40, s40, s44')
    a('s_lshl_b32 s45, s3, 10')
    for r, x in (('s41', 0), ('s42', 1)):
        a(f's_xor_b32 {r}, s27, {x}')
        a(f's_mul_i32 {r}, {r}, 112')
        a(f's_add_u32 {r}, {r}, s48')
        a(f's_lshl_b32 {r}, {r}, 12')
        a(f's_add_u32 {r}, {r}, {c.woff - x*4096 + 0}')
        a(f's_add_u32 {r}, {r}, s45')
    a('s_add_u32 s42, s42, 4096')
    a('s_add_u32 s45, s45, 8192')
    a(f's_sub_u32 s48, {N1}, s48')
    def issue_w(slot, wide):
        a(f's_add_u32 m0, {slot}, s45')
        a('s_nop 0')
        a(f'buffer_load_dwordx4 v8, s[16:19], s41 offen{SC} lds')
        if wide:
            a('s_add_u32 m0, m0, 4096')
            a('s_add_u32 s41, s41, 4096')
            a(f'buffer_load_dwordx4 v8, s[16:19], s42 offen{SC} lds')
            a('s_add_u32 s42, s42, 4096')
        else:
            a('s_add_u32 s41, s41, 4096')
    def issue_x(slot):
        a(f's_add_u32 m0, {slot}, s44')
        a('s_nop 0')
        a(f'buffer_load_dwordx4 v8, s[16:19], s40 offen{SC} lds')
        a(f'buffer_load_dwordx4 v8, s[16:19], s40 offen offset:1024{SC} lds')
        a('s_add_u32 s40, s40, 8192')
    def issue(wide):
        issue_w('s43', wide); issue_x('s43')
        a(f's_add_u32 s43, s43, {UB2}')
        a(f's_and_b32 s43, s43, {UB2*R2 - 1}')
    def wpre():
        for u in range(lead): issue_w(u * UB2, True)
        stamp(a, 1)
    handoff(a, n, c.ph - 1, 's26', 's27', 's26', mid=wpre)
    stamp(a, 2)
    for u in range(lead): issue_x(u * UB2)
    a(f's_mov_b32 s43, {lead * UB2}')
    a('s_cmp_eq_u32 s10, 0')
    a(f's_cselect_b32 s46, 0, {PSTR}')
    a(f's_add_u32 s46, s46, {WS_FLG + 10*PSTR}')
    a(f's_mul_i32 s47, s26, {GSTR}')
    a('s_add_u32 s46, s46, s47')
    a('s_xor_b32 s47, s27, 1')
    a(f's_mul_i32 s47, s47, {FSTR}')
    a('s_add_u32 s47, s47, s46')
    a(f's_mul_i32 s49, s27, {FSTR}')
    a('s_add_u32 s46, s46, s49')
    a('v_mov_b32 v14, 0')
    a('v_mov_b32 v15, 1')
    cnt = lambda u: 2 if u < lead else (4 if u < N1 else 3)
    def allowed(t, issued): return sum(cnt(u) for u in range(2 * t + 4, issued))
    a(f's_waitcnt vmcnt({allowed(-1, lead)})')
    a('s_barrier')
    stamp(a, 3)
    BD = T1 + 2 * EV_DRAIN + 1; BL = T1 + 2 * EV_LOAD + 1
    def epoch_desc(t):
        us = [u for u in (lead + 2 * t, lead + 2 * t + 1) if u < U]
        issued = min(U, lead + 2 * t + 2)
        ev = []
        if us and us[0] == N1: ev.append('jump')
        if t == BD: ev.append('flag')
        if t == BL - 2: ev.append('poll')
        if t == BL - 1: ev.append('check')
        return (tuple(u < N1 for u in us), allowed(t, issued), tuple(ev))
    t = 0; seg = 0
    while t < T:
        d = epoch_desc(t); k = 1
        while not d[2] and t + k < T and epoch_desc(t + k) == d: k += 1
        if k > 1:
            a(f's_mov_b32 s50, {k}')
            a(f'{n}_l{seg}:')
        if 'jump' in d[2]:
            a('s_lshl_b32 s49, s48, 13')
            a('s_add_u32 s40, s40, s49')
            a('s_lshl_b32 s49, s48, 12')
            a('s_add_u32 s41, s41, s49')
        if 'flag' in d[2]:
            a('s_cmp_lg_u32 s3, 0')
            a(f's_cbranch_scc1 {n}_nf2')
            a('s_mov_b64 exec, 1')
            a(f'buffer_store_dword v15, v14, s[16:19], s46 offen{SC}')
            a('s_mov_b64 exec, -1')
            a(f'{n}_nf2:')
        for wide in d[0]: issue(wide)
        if 'poll' in d[2]: a(f'buffer_load_dword v16, v14, s[16:19], s47 offen{SC}')
        if 'check' in d[2]:
            a(f's_waitcnt vmcnt({3 * len(d[0])})')
            a('v_cmp_eq_u32 vcc, 0, v16')
            a(f's_cbranch_vccz {n}_x_ok')
            spin_global(a, n + '_x', 's47', 2, lanes=1)
        a(f's_waitcnt vmcnt({d[1]})')
        a('s_barrier')
        if k > 1:
            a('s_sub_u32 s50, s50, 1')
            a('s_cmp_lg_u32 s50, 0')
            a(f's_cbranch_scc1 {n}_l{seg}')
            seg += 1
        t += k
    stamp(a, 4)
    prof_flush(a, c.ph, 0)

def w2_consumer(a):
    c = C_W2; n = 'w2'
    VX, VW, FR, ACC, PAC = 4, 6, 16, 112, 144
    acc = lambda m, t: (ACC if t < 2 else PAC) + (m * 2 + (t & 1)) * 4
    stamp(a, 0)
    a('v_lshlrev_b32 v8, 4, v0')
    a('v_and_b32 v1, 15, v0')
    a('v_lshrrev_b32 v2, 4, v0')
    a('s_lshl_b32 s34, s32, 12')
    a('v_add_u32 v9, s34, v8')
    a('s_lshl_b32 s34, s33, 11')
    a('s_add_u32 s34, s34, 8192')
    a('v_add_u32 v10, s34, v8')
    a(f'v_mov_b32 v{VX}, v9')
    a(f'v_mov_b32 v{VW}, v10')
    a('s_lshl_b32 s36, s26, 5')
    a('s_lshl_b32 s37, s27, 1')
    a('s_add_u32 s36, s36, s37')
    a('s_add_u32 s36, s36, s33')
    a('s_lshl_b32 s36, s36, 13')
    a('s_lshl_b32 s37, s32, 12')
    a('s_add_u32 s36, s36, s37')
    a('s_add_u32 s36, s36, s10')
    a(f's_add_u32 s37, s36, {c.roff}')
    for m in range(4):
        a(f'buffer_load_dwordx4 v[{FR+4*m}:{FR+4*m+3}], v8, s[16:19], s37 offen offset:{m*1024}{SC}')
    for r in range(PAC, PAC + 32): a(f'v_mov_b32 v{r}, 0')
    a('s_cmp_eq_u32 s10, 0')
    a(f's_cselect_b32 s38, 0, {8*MB_}')
    a(f's_add_u32 s38, s38, {WS_EX}')
    a('s_lshl_b32 s39, s26, 19')
    a('s_add_u32 s38, s38, s39')
    a('s_lshl_b32 s39, s3, 13')
    a('s_add_u32 s38, s38, s39')
    a('s_lshl_b32 s39, s27, 15')
    a('s_add_u32 s39, s39, s38')
    a('s_xor_b32 s38, s39, 32768')
    for m in range(4):
        a(f's_waitcnt vmcnt({3-m})')
        for e in range(2):
            d = acc(m, e); r = FR + 4 * m + 2 * e
            a(f'v_lshlrev_b32 v{d}, 16, v{r}')
            a(f'v_and_b32 v{d+1}, 0xffff0000, v{r}')
            a(f'v_lshlrev_b32 v{d+2}, 16, v{r+1}')
            a(f'v_and_b32 v{d+3}, 0xffff0000, v{r+1}')
    def weave(ms, fill, at=None):
        for i, m in enumerate(ms):
            for x in (at or {}).get(i, []): a(x)
            a(m)
            for x in (fill[i] if i < len(fill) else []): a(x)
    def spread(items, ngaps):
        out = [[] for _ in range(ngaps)]
        extra = max(0, len(items) - ngaps); k = 0
        for i in range(ngaps):
            cnt = 2 if i < extra else 1
            out[i] = items[k:k + cnt]; k += cnt
        assert k >= len(items)
        return out
    def mk(nsub, NW):
        fs = nsub * (4 + NW) * 4
        xf = lambda st, si, m: FR + st * fs + (si * (4 + NW) + m) * 4
        wf = lambda st, si, t: FR + st * fs + (si * (4 + NW) + 4 + t) * 4
        def reads(st):
            out = []
            for si in range(nsub):
                out += [f'ds_read_b128 v[{xf(st,si,m)}:{xf(st,si,m)+3}], v{VX} offset:{si*UB2 + m*1024}' for m in range(4)]
                out += [f'ds_read_b128 v[{wf(st,si,t)}:{wf(st,si,t)+3}], v{VW} offset:{si*UB2 + (t>>1)*4096 + (t&1)*1024}' for t in range(NW)]
            return out
        def mfmas(st): return [mfma(acc(m, t), wf(st, si, t), xf(st, si, m)) for si in range(nsub) for t in range(NW) for m in range(4)]
        adv = [f's_add_u32 s42, s42, {nsub*UB2}', f's_and_b32 s42, s42, {UB2*R2 - 1}', 's_add_u32 s41, s41, 1',
               f'v_add_u32 v{VX}, s42, v9', f'v_add_u32 v{VW}, s42, v10']
        return reads, mfmas, adv
    a('s_mov_b32 s41, 0')
    a('s_mov_b32 s42, 0')
    a('s_barrier')
    stamp(a, 1)
    reads, mfmas, adv = mk(1, 4)
    for r in reads(0) + adv: a(r)
    a('s_waitcnt lgkmcnt(0)')
    a(f'.p2align 6\n{n}_c1:')
    weave(mfmas(0), spread(reads(1) + adv, 11), at={15: ['s_waitcnt lgkmcnt(0)', 's_barrier']})
    f = spread(reads(0) + adv, 11) + [[], [f's_cmp_lt_u32 s41, {N1 + 1}'], [], ['s_waitcnt lgkmcnt(0)'], [f's_cbranch_scc1 {n}_c1']]
    weave(mfmas(1), f)
    stamp(a, 5)
    reads, mfmas, adv = mk(2, 2)
    a(f's_mov_b32 s42, {(N1 % R2) * UB2}')
    a(f'v_add_u32 v{VX}, s42, v9')
    a(f'v_add_u32 v{VW}, s42, v10')
    a('s_mov_b32 s41, 0')
    for r in reads(0) + adv: a(r)
    a('s_add_u32 s40, s38, 4096')
    for i in range(8):
        a(f'buffer_store_dwordx4 v[{PAC+4*i}:{PAC+4*i+3}], v8, s[16:19], {"s38" if i < 4 else "s40"} offen offset:{(i&3)*1024}{SC}')
    a(f's_mov_b32 s44, {(1 << (2*EV_DRAIN + 1)) | (1 << (2*EV_LOAD + 1))}')
    a(f'.p2align 6\n{n}_c2:')
    a('s_waitcnt lgkmcnt(0)')
    a('s_barrier')
    a(f'{n}_c2b:')
    weave(mfmas(0), spread(reads(1) + adv, 16))
    a('s_waitcnt lgkmcnt(0)')
    a(f's_cmp_lt_u32 s41, {N2 // 2}')
    a('s_barrier')
    a(f's_cbranch_scc0 {n}_clast')
    weave(mfmas(1), spread(reads(0) + adv, 15) + [['s_bitcmp1_b32 s44, s41']])
    a(f's_cbranch_scc0 {n}_c2')
    a(f's_cmp_eq_u32 s41, {2*EV_DRAIN + 1}')
    a(f's_cbranch_scc0 {n}_ev2')
    a('s_waitcnt vmcnt(0)')
    a(f's_branch {n}_c2')
    a(f'{n}_ev2:')
    a('s_waitcnt lgkmcnt(0)')
    a('s_barrier')
    a('s_add_u32 s40, s39, 4096')
    for i in range(8):
        a(f'buffer_load_dwordx4 v[{PAC+4*i}:{PAC+4*i+3}], v8, s[16:19], {"s39" if i < 4 else "s40"} offen offset:{(i&3)*1024}{SC}')
    a(f's_branch {n}_c2b')
    a(f'{n}_clast:')
    weave(mfmas(1), [])
    stamp(a, 6)
    a('s_waitcnt vmcnt(0)')
    stamp(a, 2)
    for r in range(0, 32, 2): a(f'v_pk_add_f32 v[{ACC+r}:{ACC+r+1}], v[{ACC+r}:{ACC+r+1}], v[{PAC+r}:{PAC+r+1}]')
    res_epilogue(a, c, acc, FR)

import pack
pack.WS_PQ, pack.WS_PO, pack.WS_P1, pack.WS_P2, pack.WS_CSQ, pack.WS_CS1 = WS_PQ, WS_PO, WS_P1, WS_P2, WS_CSQ, WS_CS1
RING = 4 * 32768
Q, KB, VB, P, ONES, L, IDX, O, CI, S_ = (8, 16), (24, 32), (40, 48), 56, 64, (68, 72), 76, (80, 96), (112, 128), (144, 160)
VA, VBASE = 4, 5
def m32(d, x, y, c): return f'v_mfma_f32_32x32x16_bf16 v[{d}:{d+15}], v[{x}:{x+3}], v[{y}:{y+3}], ' + (f'v[{c}:{c+15}]' if c is not None else '0')
def sm(d): return f'v_smfmac_f32_16x16x64_bf16 v[{d}:{d+3}], v[{ONES}:{ONES+3}], v[{P}:{P+7}], v{IDX}'

def attn_loader(a):
    n = 'at'
    stamp(a, 0)
    a('v_lshlrev_b32 v2, 4, v0')
    a('s_lshr_b32 s28, s3, 1')
    a('s_and_b32 s29, s3, 1')
    a('s_lshl_b32 s12, s27, 1')
    a('s_add_u32 s12, s12, s28')
    a('s_lshl_b32 s12, s12, 18')
    a('s_lshl_b32 s13, s29, 13')
    a('s_add_u32 s12, s12, s13')
    a('s_add_u32 s12, s12, s10')
    a(f's_add_u32 s12, s12, {L_KVF}')
    a('s_lshl_b32 s15, s3, 13')
    a('s_add_u32 s15, s15, 32768')
    a('s_lshl_b32 s13, s26, 14')
    a('s_add_u32 s13, s13, s12')
    def issue_chunk():
        a('s_cmp_eq_u32 s12, s13')
        a('s_cselect_b32 s14, 16384, 0')
        a('s_add_u32 s12, s12, s14')
        a('s_mov_b32 m0, s15')
        a('s_add_u32 s14, s12, 4096')
        for i in range(4): a(f'buffer_load_dwordx4 v2, s[16:19], s12 offen offset:{i*1024}{SC} lds')
        a('s_add_u32 m0, s15, 4096')
        a('s_add_u32 s12, s12, 16384')
        for i in range(4): a(f'buffer_load_dwordx4 v2, s[16:19], s14 offen offset:{i*1024}{SC} lds')
        a('s_add_u32 s15, s15, 32768')
        a(f's_and_b32 s15, s15, {RING-1}')
    stamp(a, 1)
    a('s_barrier')
    handoff(a, n, 0, 's27', 's26', 's27')
    stamp(a, 2)
    issue_chunk(); issue_chunk()
    stamp(a, 3)
    a('s_cmp_eq_u32 s10, 0')
    a(f's_cbranch_scc1 {n}_ldpack')
    a('s_mov_b32 s20, 13')
    a(f'{n}_lloop:')
    issue_chunk()
    a('s_waitcnt vmcnt(16)')
    a('s_barrier')
    a('s_sub_u32 s20, s20, 1')
    a('s_cmp_lg_u32 s20, 0')
    a(f's_cbranch_scc1 {n}_lloop')
    a('s_waitcnt vmcnt(8)')
    a('s_barrier')
    a('s_waitcnt vmcnt(0)')
    a('s_barrier')
    a(f's_branch {n}_lend')
    a(f'{n}_ldpack:')
    PK = 8
    a('s_mov_b32 s35, 0x20000')
    a('s_lshl_b32 s45, s3, 12')
    a(f's_add_u32 s45, s45, {RING}')
    a('s_cmp_lt_u32 s2, 32')
    a(f's_cbranch_scc1 {n}_pk_wo')
    a('s_cmp_lt_u32 s2, 144')
    a(f's_cbranch_scc1 {n}_pk_w1')
    a('s_sub_u32 s46, s2, 144')
    a('s_lshr_b32 s47, s46, 4')
    a('s_and_b32 s46, s46, 15')
    pack.decode(a, 32, 'w2', 's46', 's47', 's3', ('s62', 's63'), 4)
    a(f's_branch {n}_pk1')
    a(f'{n}_pk_wo:')
    a('s_lshr_b32 s47, s2, 4')
    a('s_and_b32 s46, s2, 15')
    pack.decode(a, 32, 'wo', 's46', 's47', 's3', ('s56', 's57'), 4)
    a(f's_branch {n}_pk1')
    a(f'{n}_pk_w1:')
    a('s_cmp_ge_u32 s2, 88')
    a('s_cselect_b32 s47, 1, 0')
    a('s_cselect_b32 s46, 88, 32')
    a('s_sub_u32 s46, s2, s46')
    pack.decode(a, 32, 'w1', 's46', 's47', 's3', ('s60', 's61'), 4)
    a(f'{n}_pk1:')
    pack.setup(a, 32, 0, PK, 's45')
    q = [('c', 1)] * 8 + [('c', 2)] * 8
    def need(tag):
        last = max([i for i, t in enumerate(q) if t == tag], default=-1)
        a(f's_waitcnt vmcnt({len(q) - 1 - last})')
        del q[:last + 1]
    LOADS = {0: 0, 3: 1, 6: 2, 9: 3}
    FINS = {3: 0, 6: 1, 9: 2, 12: 3}
    for e in range(15):
        if e + 3 < 16: issue_chunk(); q += [('c', e + 3)] * 8
        if e in FINS:
            u = FINS[e]
            need(('p', u))
            pack.finish1(a, 32, 2, PK, 's[16:19]', st=SC, flip=None); q += [('s', u)] * 4
        if e in LOADS:
            pack.issue1(a, 32, PK, wrap=('s45', True)); q += [('p', LOADS[e])] * 4
        if e == 13:
            a('s_cmp_eq_u32 s41, 0')
            a(f's_cbranch_scc1 {n}_nocs')
            pack.colsum1(a, 32, 0, PK, 's[16:19]', st=SC)
            a(f'{n}_nocs:')
        if e == 14:
            a('s_lshl_b32 s46, s2, 4')
            a('s_lshl_b32 s47, s3, 2')
            a('s_add_u32 s46, s46, s47')
            a(f's_add_u32 s46, s46, {WS_PKF}')
            a('v_mov_b32 v3, 0')
            a('v_mov_b32 v1, 1')
            a('s_waitcnt vmcnt(0)'); q.clear()
            a('s_mov_b64 exec, 1')
            a(f'buffer_store_dword v1, v3, s[16:19], s46 offen{SC}')
            a('s_mov_b64 exec, -1')
        else:
            need(('c', e + 1))
        a('s_barrier')
    a(f'{n}_lend:')
    a('s_barrier')
    stamp(a, 4)
    prof_flush(a, 1, 0)

def attn_consumer(a):
    n = 'at'; S = S_
    stamp(a, 0)
    a('v_lshlrev_b32 v2, 4, v0')
    a('s_lshl_b32 s28, s27, 1')
    a('s_add_u32 s28, s28, s33')
    a('s_lshl_b32 s13, s3, 12')
    a(f's_add_u32 s13, s13, {RING}')
    a('v_add_u32 v3, s13, v2')
    a('s_waitcnt lgkmcnt(0)')
    for i in range(4): a(f'ds_read_b128 v[{Q[0]+4*i}:{Q[0]+4*i+3}], v3 offset:{i*1024}')
    a('v_lshrrev_b32 v3, 2, v0')
    a('v_mov_b32 v6, 0x3f803f80')
    a('v_and_b32 v1, 1, v3')
    a('v_cmp_eq_u32 vcc, 0, v1')
    a(f'v_cndmask_b32 v{ONES}, 0, v6, vcc')
    a(f'v_mov_b32 v{ONES+1}, v{ONES}')
    a(f'v_xor_b32 v{ONES+2}, v6, v{ONES}')
    a(f'v_mov_b32 v{ONES+3}, v{ONES+2}')
    a('v_and_b32 v1, 1, v0')
    a('v_cmp_eq_u32 vcc, 0, v1')
    a('v_mov_b32 v6, 0x44444444')
    a('v_mov_b32 v7, 0xeeeeeeee')
    a(f'v_cndmask_b32 v{IDX}, v7, v6, vcc')
    for r in list(range(L[0], L[0] + 8)) + list(range(O[0], O[0] + 32)) + list(range(P, P + 8)) + list(range(VB[1] + 4, VB[1] + 8)):
        a(f'v_mov_b32 v{r}, 0')
    a('s_lshl_b32 s14, s33, 14')
    a(f'v_add_u32 v{VBASE}, s14, v2')
    a(f'v_mov_b32 v{VA}, v{VBASE}')
    a('s_mov_b32 s20, 0')
    a('s_mov_b32 s21, 0')
    a('s_waitcnt lgkmcnt(0)')
    a('s_barrier')
    stamp(a, 5)
    def rd(dst, off): a(f'ds_read_b128 v[{dst}:{dst+3}], v{VA} offset:{off}')
    rd(KB[0], 0); rd(KB[0] + 4, 1024); rd(VB[0], 2048); rd(VB[0] + 4, 3072)
    a('s_waitcnt lgkmcnt(2)')
    for qi in range(2):
        a(m32(S[qi], KB[0], Q[qi], None))
        a(m32(S[qi], KB[0] + 4, Q[qi] + 4, S[qi]))
    for qi in range(2):
        s_, t_ = S[qi], 6 + qi
        a(f'v_max3_f32 v{t_}, v{s_}, v{s_+1}, v{s_+2}')
        for r in range(3, 15, 2): a(f'v_max3_f32 v{t_}, v{t_}, v{s_+r}, v{s_+r+1}')
        a(f'v_max_f32 v{t_}, v{t_}, v{s_+15}')
    a('v_mov_b32 v1, v6')
    a('v_mov_b32 v3, v7')
    a('v_permlane32_swap_b32 v6, v1')
    a('v_permlane32_swap_b32 v7, v3')
    a('v_max_f32 v6, v6, v1')
    a('v_max_f32 v7, v7, v3')
    for r in range(16): a(f'v_sub_f32 v{CI[0]+r}, 0, v6')
    a(m32(S[0], KB[0], Q[0], CI[0]))
    a(m32(S[0], KB[0] + 4, Q[0] + 4, S[0]))
    for r in range(16): a(f'v_sub_f32 v{CI[1]+r}, 0, v7')
    a('s_waitcnt vmcnt(0) lgkmcnt(0)')
    a('s_barrier')
    stamp(a, 1)
    a(f'.p2align 6\n{n}_loop:')
    for kt in range(4):
        for qi in range(2):
            sa, sb = S[qi], S[1 - qi]
            E = lambda *r: [a(f'v_exp_f32 v{sa+i}, v{sa+i}') for i in r]
            C = lambda *r: [a(f'v_cvt_pk_bf16_f32 v{P+i}, v{sa+2*i}, v{sa+2*i+1}') for i in r]
            kn = KB[kt % 2] if qi == 0 else KB[(kt + 1) % 2]
            vp = VB[(kt + 1) % 2] if qi == 0 else VB[kt % 2]
            nb = (kt + 1) % 2; off = ((kt + 1) % 4) * 4096
            f = [[] for _ in range(5)]
            if qi == 0:
                f[0] = [('rd', KB[nb], off)]; f[1] = [('rd', KB[nb] + 4, off + 1024)]
                f[2] = [('rd', VB[nb] + 4, off + 3072)]; f[3] = [('rd', VB[nb], off + 2048)]
                f[4] = ['s_waitcnt lgkmcnt(2)']
            else:
                f[1] = ['s_waitcnt lgkmcnt(0)']
                if kt == 1:
                    f[0] = ['s_add_u32 s21, s21, 32768']; f[2] = [f's_and_b32 s21, s21, {RING-1}']
                    f[3] = ['s_add_u32 s20, s20, 1']
                if kt == 2: f[3] = ['s_barrier', f'v_add_u32 v{VA}, s21, v{VBASE}']
                if kt == 3: f[0] = ['s_cmp_lg_u32 s20, 16']
            def F(i):
                for x in f[i]:
                    if isinstance(x, tuple): rd(x[1], x[2])
                    else: a(x)
            a(m32(sb, kn, Q[1 - qi], CI[1 - qi])); F(0); E(0, 1, 2)
            a(sm(L[1 - qi])); F(1); E(3, 4, 5)
            a(m32(O[1 - qi], vp + 4, P + 4, O[1 - qi])); F(2); E(6, 7); C(0, 1)
            a(m32(sb, kn + 4, Q[1 - qi] + 4, sb)); F(3); C(2, 3); E(8, 9)
            a(m32(O[qi], VB[kt % 2], P, O[qi])); F(4); E(10, 11, 12, 13, 14, 15); C(4, 5, 6, 7)
    a(f's_cbranch_scc1 {n}_loop')
    stamp(a, 2)
    a(sm(L[1]))
    a(m32(O[1], VB[1] + 4, P + 4, O[1]))
    for qi in range(2): a(f'v_add_f32 v{L[qi]}, v{L[qi]}, v{L[qi]+1}')
    a(f'v_add_f32 v1, v{L[0]}, v{L[1]}')
    for r in range(0, 32, 2): a(f'v_pk_fma_f32 v[6:7], v[{O[0]+r}:{O[0]+r+1}], 0, v[6:7]' if r else f'v_pk_mul_f32 v[6:7], v[{O[0]}:{O[0]+1}], 0')
    a('v_add_f32 v1, v1, v6')
    a('v_add_f32 v1, v1, v7')
    a(f's_mov_b32 s23, {f32bits(2.0**100)}')
    a('v_cmp_ngt_f32 vcc, s23, v1')
    a(f's_cbranch_vccnz {n}_slow')
    a(f'{n}_fin:')
    a(f'v_rcp_f32 v6, v{L[0]}')
    a(f'v_rcp_f32 v7, v{L[1]}')
    a('v_and_b32 v3, 15, v0')
    a('v_lshlrev_b32 v3, 4, v3')
    a('v_lshrrev_b32 v1, 5, v0')
    a('v_lshl_add_u32 v3, v1, 8, v3')
    a('v_bfe_u32 v1, v0, 4, 1')
    a('v_lshl_add_u32 v3, v1, 10, v3')
    a('s_lshl_b32 s24, s26, 5')
    a('s_add_u32 s24, s24, s28')
    a('s_lshl_b32 s24, s24, 13')
    a('s_lshl_b32 s25, s32, 12')
    a('s_add_u32 s24, s24, s25')
    a('s_add_u32 s24, s24, s10')
    a(f's_add_u32 s24, s24, {L_O}')
    for qi in range(2):
        for r in range(0, 16, 2):
            a(f'v_pk_mul_f32 v[{O[qi]+r}:{O[qi]+r+1}], v[{O[qi]+r}:{O[qi]+r+1}], v[6:7] op_sel:[0,{qi}] op_sel_hi:[1,{qi}]')
        for c in range(2):
            d = S[0] + 8 * qi + 4 * c
            for k, r in enumerate((4*c, 4*c + 2, 8 + 4*c, 8 + 4*c + 2)):
                a(f'v_cvt_pk_bf16_f32 v{d+k}, v{O[qi]+r}, v{O[qi]+r+1}')
            a(f'buffer_store_dwordx4 v[{d}:{d+3}], v3, s[16:19], s24 offen offset:{qi*2048 + c*512}{SC}')
    signal(a, 1, 's26', 's27')
    prof_flush(a, 1, 1)

def attn_slow(a):
    n = 'at'; S = S_
    a(f'{n}_slow:')
    M, LS, SA, KF, VF, OT = 6, 7, S[0], KB[0], VB[0], S[1]
    a('s_lshl_b32 s29, s28, 18')
    a('s_add_u32 s29, s29, s10')
    a(f's_add_u32 s29, s29, {L_KVF}')
    a('s_mov_b32 s21, 0')
    a(f'{n}_sq:')
    a(f'v_mov_b32 v{M}, {f32bits(-3.0e38)}')
    a(f'v_mov_b32 v{LS}, 0')
    for r in range(16): a(f'v_mov_b32 v{OT+r}, 0')
    a('s_mov_b32 s20, 0')
    a('s_mov_b32 s12, s29')
    a(f'{n}_sloop:')
    for i, d in enumerate((KF, KF + 4, VF, VF + 4)):
        a(f'buffer_load_dwordx4 v[{d}:{d+3}], v2, s[16:19], s12 offen offset:{i*1024}{SC}')
    a('s_add_u32 s12, s12, 4096')
    a('s_waitcnt vmcnt(0)')
    a(m32(SA, KF, Q[0], None))
    a(m32(SA, KF + 4, Q[0] + 4, SA))
    a(f'v_max3_f32 v1, v{SA}, v{SA+1}, v{SA+2}')
    for r in range(3, 15, 2): a(f'v_max3_f32 v1, v1, v{SA+r}, v{SA+r+1}')
    a(f'v_max3_f32 v1, v1, v{SA+15}, v{M}')
    a('v_mov_b32 v3, v1')
    a('v_permlane32_swap_b32 v1, v3')
    a('v_max_f32 v1, v1, v3')
    a(f'v_sub_f32 v3, v{M}, v1')
    a('v_exp_f32 v3, v3')
    a(f'v_mov_b32 v{M}, v1')
    for r in range(16): a(f'v_sub_f32 v{SA+r}, v{SA+r}, v1')
    for r in range(16): a(f'v_exp_f32 v{SA+r}, v{SA+r}')
    for r in range(16): a(f'v_mul_f32 v{OT+r}, v{OT+r}, v3')
    a(f'v_mul_f32 v{LS}, v{LS}, v3')
    for r in range(8): a(f'v_cvt_pk_bf16_f32 v{P+r}, v{SA+2*r}, v{SA+2*r+1}')
    for r in range(16): a(f'v_add_f32 v{LS}, v{LS}, v{SA+r}')
    a(m32(OT, VF, P, OT))
    a(m32(OT, VF + 4, P + 4, OT))
    a('s_add_u32 s20, s20, 1')
    a('s_cmp_lg_u32 s20, 64')
    a('s_nop 7')
    a(f's_cbranch_scc1 {n}_sloop')
    a(f'v_mov_b32 v3, v{LS}')
    a(f'v_permlane32_swap_b32 v{LS}, v3')
    a(f'v_add_f32 v{L[1]}, v{LS}, v3')
    for r in range(16): a(f'v_mov_b32 v{O[1]+r}, v{OT+r}')
    a('s_cmp_lg_u32 s21, 0')
    a(f's_cbranch_scc1 {n}_fin')
    a('s_mov_b32 s21, 1')
    a(f'v_mov_b32 v{L[0]}, v{L[1]}')
    for r in range(16): a(f'v_mov_b32 v{O[0]+r}, v{OT+r}')
    for r in range(8): a(f'v_mov_b32 v{Q[0]+r}, v{Q[1]+r}')
    a(f's_branch {n}_sq')

def main_kernel(a):
    label = 'main_kernel'
    a(f'.p2align 8\n.globl {label}\n.type {label},@function\n{label}:')
    a(f's_load_dwordx2 s[4:5], s[0:1], {KA["ws"]}')
    a(f's_load_dwordx2 s[8:9], s[0:1], {KA["out"]}')
    a(f's_load_dwordx2 s[56:57], s[0:1], {KA["wo"]}')
    a(f's_load_dwordx4 s[60:63], s[0:1], {KA["w1"]}')
    a('s_cmp_ge_u32 s2, 256')
    a('s_cbranch_scc1 main_exit')
    if dsl.PROF:
        for i in range(64, 80): a(f's_mov_b32 s{i}, 0')
    a('v_lshrrev_b32 v1, 6, v0')
    a('v_and_b32 v0, 63, v0')
    a('v_readfirstlane_b32 s3, v1')
    a('s_and_b32 s24, s2, 7')
    a('s_lshr_b32 s25, s2, 3')
    XN = 16 // NBK
    a(f's_lshr_b32 s26, s24, {log2(XN)}')
    a(f's_and_b32 s27, s24, {XN-1}')
    a(f's_lshl_b32 s26, s26, {log2(MBK)}')
    a(f's_lshl_b32 s27, s27, {log2(NBK)}')
    a(f's_and_b32 s28, s25, {MBK-1}')
    a(f's_lshr_b32 s29, s25, {log2(MBK)}')
    a('s_add_u32 s26, s26, s28')
    a('s_add_u32 s27, s27, s29')
    a(f's_mov_b32 s18, {WS_USED}')
    a('s_mov_b32 s19, 0x20000')
    a('s_mov_b32 s10, 0')
    a(f's_mov_b32 s11, {WS_FLG}')
    a('s_waitcnt lgkmcnt(0)')
    a('s_mov_b32 s16, s4')
    a('s_mov_b32 s17, s5')
    a('s_cmp_ge_u32 s3, 4')
    a('s_cbranch_scc1 main_cons')
    a('s_mov_b32 s58, 0')
    code_srd(a, 80, 'main')
    a(f'v_mov_b32 v11, {RDY}')
    a('v_mov_b32 v10, 0')
    a('ds_write_b32 v11, v10')
    a('main_lay_l:')
    gemm_loader(a, C_QKV); attn_loader(a); gemm_loader(a, C_WO); gemm_loader(a, C_W1); (gemm_loader(a, C_W2) if 'nosplit' in OPT else w2_loader(a))
    a('s_cmp_lg_u32 s10, 0')
    a('s_cbranch_scc1 main_exit')
    a(f's_mov_b32 s10, {LSTR}')
    a(f's_mov_b32 s11, {WS_FLG + 5*PSTR}')
    a('s_branch main_lay_l')
    a('main_exit:')
    a('s_endpgm')
    a('.p2align 6\nmain_cons:')
    a('s_setprio 2')
    a('s_sub_u32 s3, s3, 4')
    a('s_lshr_b32 s32, s3, 1')
    a('s_and_b32 s33, s3, 1')
    a('main_lay_c:')
    gemm_consumer(a, C_QKV); attn_consumer(a); gemm_consumer(a, C_WO); gemm_consumer(a, C_W1); (gemm_consumer(a, C_W2) if 'nosplit' in OPT else w2_consumer(a))
    a(f's_mov_b32 s10, {LSTR}')
    a(f's_mov_b32 s11, {WS_FLG + 5*PSTR}')
    a('s_branch main_lay_c')
    C_W2.final()
    attn_slow(a)
    a('main_end:')

GRID_PRE = 224 + (12 * PSTR + 4096 + 16383) // 16384
def pre_kernel(a):
    n = 'pre'; label = 'pre_kernel'
    a(f'.p2align 8\n.globl {label}\n.type {label},@function\n{label}:')
    a(f's_load_dwordx2 s[4:5], s[0:1], {KA["ws"]}')
    a(f's_load_dwordx2 s[6:7], s[0:1], {KA["x"]}')
    a(f's_load_dwordx2 s[8:9], s[0:1], {KA["wqkv"]}')
    a(f's_cmp_ge_u32 s2, {GRID_PRE}')
    a(f's_cbranch_scc1 {n}_exit')
    a('v_lshrrev_b32 v1, 6, v0')
    a('v_mov_b32 v30, v0')
    a('v_and_b32 v0, 63, v0')
    a('v_readfirstlane_b32 s3, v1')
    a(f's_mov_b32 s18, {WS_USED}')
    a('s_mov_b32 s19, 0x20000')
    a('s_mov_b32 s23, 0x20000')
    a('s_cmp_lt_u32 s2, 96')
    a(f's_cbranch_scc1 {n}_cs')
    a('s_cmp_ge_u32 s2, 224')
    a(f's_cbranch_scc1 {n}_fl')
    a('s_sub_u32 s24, s2, 96')
    a('v_and_b32 v1, 15, v0')
    a('v_lshrrev_b32 v2, 4, v0')
    a('v_lshlrev_b32 v3, 3, v2')
    a('v_lshl_add_u32 v3, v1, 11, v3')
    a('v_lshlrev_b32 v4, 4, v0')
    a('s_lshl_b32 s25, s24, 15')
    a('s_lshl_b32 s26, s3, 8')
    a('s_add_u32 s25, s25, s26')
    a(f's_mov_b32 s22, {2048*2048}')
    a('s_waitcnt lgkmcnt(0)')
    a('s_mov_b32 s16, s4\ns_mov_b32 s17, s5\ns_mov_b32 s20, s6\ns_mov_b32 s21, s7')
    for k in range(4):
        for u in range(2):
            a(f'buffer_load_dwordx2 v[{8+4*k+2*u}:{9+4*k+2*u}], v3, s[20:23], s25 offen offset:{k*64 + u*32}')
    a('s_lshr_b32 s26, s24, 3')
    a('s_and_b32 s27, s24, 7')
    a('s_lshl_b32 s28, s26, 5')
    a('s_lshl_b32 s29, s3, 2')
    a('s_add_u32 s29, s28, s29')
    a('s_lshl_b32 s28, s29, 3')
    a('s_add_u32 s28, s28, s27')
    a('s_lshl_b32 s28, s28, 10')
    a(f's_add_u32 s28, s28, {L_XA}')
    a('v_mov_b32 v5, 0x3f803f80')
    for r in range(8): a(f'v_mov_b32 v{32+r}, 0')
    for k in range(4):
        a(f's_waitcnt vmcnt({6 - k})')
        a(f'buffer_store_dwordx4 v[{8+4*k}:{11+4*k}], v4, s[16:19], s28 offen{SC}')
        a('s_add_u32 s28, s28, 8192')
        for r in range(4):
            a(f'v_dot2c_f32_bf16 v{32+k}, v{8+4*k+r}, v5')
            a(f'v_dot2c_f32_bf16 v{36+k}, v{8+4*k+r}, v{8+4*k+r}')
    for b in (32, 36):
        a(f'v_permlane32_swap_b32 v{b}, v{b+1}')
        a(f'v_permlane32_swap_b32 v{b+2}, v{b+3}')
    for b in (32, 36):
        a(f'v_add_f32 v{b}, v{b}, v{b+1}')
        a(f'v_add_f32 v{b+2}, v{b+2}, v{b+3}')
    for b in (32, 36): a(f'v_permlane16_swap_b32 v{b}, v{b+2}')
    a('v_add_f32 v32, v32, v34')
    a('v_add_f32 v33, v36, v38')
    a('v_and_b32 v3, 1, v2')
    a('v_lshrrev_b32 v2, 1, v2')
    a('v_lshl_add_u32 v3, v3, 1, v2')
    a('v_lshlrev_b32 v3, 10, v3')
    a('v_lshl_add_u32 v3, v1, 3, v3')
    a('s_lshl_b32 s28, s29, 10')
    a('s_lshl_b32 s29, s27, 7')
    a('s_add_u32 s28, s28, s29')
    a(f's_add_u32 s28, s28, {L_SPA}')
    a(f'buffer_store_dwordx2 v[32:33], v3, s[16:19], s28 offen{SC}')
    a(f'{n}_exit:')
    a('s_endpgm')
    a(f'{n}_fl:')
    a('s_sub_u32 s24, s2, 224')
    a('s_lshl_b32 s24, s24, 14')
    a(f's_add_u32 s24, s24, {WS_PKF}')
    a('v_lshlrev_b32 v1, 5, v30')
    for r in range(4): a(f'v_mov_b32 v{4+r}, 0')
    a('s_waitcnt lgkmcnt(0)')
    a('s_mov_b32 s16, s4\ns_mov_b32 s17, s5')
    a(f'buffer_store_dwordx4 v[4:7], v1, s[16:19], s24 offen{SC}')
    a(f'buffer_store_dwordx4 v[4:7], v1, s[16:19], s24 offen offset:16{SC}')
    if 'nocodepf' not in OPT:
        a('s_cmp_lg_u32 s3, 0')
        a(f's_cbranch_scc1 {n}_exit')
        code_srd(a, 28, 'pre')
        code_touch(a, 28, 8, 9, 's24')
        a('s_waitcnt vmcnt(0)')
    a('s_endpgm')
    a(f'{n}_cs:')
    a('s_cmp_ge_u32 s2, 48')
    a('s_cselect_b32 s13, 1, 0')
    a('s_cselect_b32 s12, 48, 0')
    a('s_sub_u32 s12, s2, s12')
    a('s_lshl_b32 s14, s3, 13')
    a('v_lshlrev_b32 v4, 4, v0')
    a('s_waitcnt lgkmcnt(0)')
    a('s_mov_b32 s16, s4\ns_mov_b32 s17, s5')
    pack.decode(a, 20, 'qkv', 's12', 's13', 's3', ('s8', 's9'), 2)
    pack.issue(a, 20, 0, 1, 's14', 2)
    pack.finish(a, 20, 0, 4, 8, 's14', 's[16:19]', n, 2, st=SC, wait=lambda u: a('s_waitcnt vmcnt(4)'))
    a('s_endpgm')

def build(path):
    a = Asm()
    a('.amdgcn_target "amdgcn-amd-amdhsa--gfx950"\n.text')
    pre_kernel(a)
    main_kernel(a)
    a.finalize()
    txt = a.text() + kd('pre_kernel', 64, 64) + kd('main_kernel', 224, 102 if dsl.PROF else 88)
    hdr = open('interleave_layers__softmax_full_mha__dense_activation_relu__prompt.s.ref').read().split('; Override launch')[0]
    hdr += '; Generated by my own generator scripts (gen/mega.py).\n'
    hdr += f'; @launch kernel=pre_kernel grid=({GRID_PRE},1,1) block=(512,1,1) lds=65536\n'
    hdr += '; @launch kernel=main_kernel grid=(256,1,1) block=(512,1,1) lds=163840\n'
    open(path, 'w').write(hdr + txt)

if __name__ == '__main__':
    if 'prof' in sys.argv[2:]: dsl.PROF = True
    if 'dbgq' in sys.argv[2:]: DBGQ = True
    OPT = set(sys.argv[2:])
    if 'sleep0' in OPT: SLEEP = 0
    build(sys.argv[1])
```

```python
import sys, struct
import dsl
from dsl import Asm, kd

MB_ = 1 << 20
LSTR  = 40 * MB_
L_QF, L_KVF, L_O, L_XA, L_XB, L_H, L_SPA, L_SPB = 0, 4*MB_, 12*MB_, 16*MB_, 20*MB_, 24*MB_, 38*MB_, 38*MB_ + 524288
WS_CSQ, WS_CS1 = 80*MB_, 80*MB_ + 262144
WS_FLG = 81*MB_
WS_PKF = WS_FLG - 4096
WS_PQ, WS_PO, WS_P1, WS_P2 = 82*MB_, 88*MB_, 90*MB_, 97*MB_
WS_EX = 104 * MB_
WS_USED = 120 * MB_
KA = dict(x=0, wqkv=8, wo=16, bx=24, w1=32, w2=40, out=48, dbg=56, ws=64)
QSCALE = (32 ** -0.5) * 1.4426950408889634
STAT = 163840 - 2048
SC = ' sc1'
MBK, NBK = (4, 8) if 'm48' in sys.argv else ((2, 16) if 'm216' in sys.argv else (8, 4))
TIMEOUT = 200000
SLEEP = 2
DBGQ = False
OPT = set()
RING = 4 * 32768

def f32bits(x): return struct.unpack('<I', struct.pack('<f', x))[0]
def log2(x):
    assert x & (x - 1) == 0
    return x.bit_length() - 1

def stamp(a, i):
    if not dsl.PROF: return
    a(f's_memrealtime s[{64+2*i}:{65+2*i}]')
    a('s_waitcnt lgkmcnt(0)')
_dbg_n = [0]
def dbgt(a, word, layered=False):
    if 'dbgt' not in OPT: return
    _dbg_n[0] += 1; t = f'dbgt{_dbg_n[0]}'
    a('s_add_u32 s97, s2, s3')
    a('s_cmp_lg_u32 s97, 0')
    a(f's_cbranch_scc1 {t}')
    a('s_memrealtime s[98:99]')
    if layered:
        a('s_cmp_eq_u32 s10, 0')
        a(f's_cselect_b32 s97, {word*4}, {(word+6)*4}')
    else: a(f's_mov_b32 s97, {word*4}')
    a('s_waitcnt lgkmcnt(0)')
    a('v_mov_b32 v3, s98')
    a('v_mov_b32 v13, 0')
    a('buffer_store_dword v3, v13, s[92:95], s97 offen')
    a(f'{t}:')
def dbgt_init(a, back):
    if 'dbgt' not in OPT: return
    a('s_load_dwordx2 s[92:93], s[0:1], 56')
    a('s_waitcnt lgkmcnt(0)')
    if not back:
        a('s_add_u32 s92, s92, 512')
        a('s_addc_u32 s93, s93, 0')
    a('s_mov_b32 s94, 64')
    a('s_mov_b32 s95, 0x20000')

def prof_flush(a, ph, role):
    if not dsl.PROF: return
    a('s_cmp_eq_u32 s10, 0')
    a(f's_cselect_b32 s97, {ph}, {ph + 5}')
    a('s_lshl_b32 s97, s97, 8')
    a('s_add_u32 s97, s97, s2')
    a('s_lshl_b32 s97, s97, 3')
    a('s_add_u32 s97, s97, s3')
    if role: a('s_add_u32 s97, s97, 4')
    a('s_lshl_b32 s97, s97, 5')
    a(f's_add_u32 s97, s97, {dsl.PROF_OFF}')
    a('s_mov_b32 s88, s4\ns_mov_b32 s89, s5\ns_mov_b32 s90, 0x10000000\ns_mov_b32 s91, 0x20000')
    a('v_mov_b32 v1, 0')
    for i in range(8):
        a(f'v_mov_b32 v3, s{64+2*i}')
        a(f'buffer_store_dword v3, v1, s[88:91], s97 offen offset:{4*i}')

FSTR = int(([x[4:] for x in sys.argv if x.startswith('fstr')] or [64])[0])
GSTR = max(16 * FSTR, 256)
PSTR = 16 * GSTR
RDY = STAT - 64
def code_srd(a, B, tag):
    a(f's_getpc_b64 s[{B}:{B+1}]')
    a(f'{tag}_pc:')
    a(f's_add_u32 s{B}, s{B}, main_kernel-{tag}_pc')
    a(f's_addc_u32 s{B+1}, s{B+1}, {0 if tag == "pre" else -1}')
    a(f's_mov_b32 s{B+2}, main_end-main_kernel')
    a(f's_mov_b32 s{B+3}, 0x20000')
def code_touch(a, B, va, vd, st):
    a(f'v_lshlrev_b32 v{va}, 7, v0')
    for i in range(5):
        a(f's_mov_b32 {st}, {i*8192}')
        a(f'buffer_load_dword v{vd}, v{va}, s[{B}:{B+3}], {st} offen')

def spin_global(a, tag, soff, shift, lanes=-1, n4=0):
    a(f's_mov_b32 s55, {TIMEOUT}')
    a(f'v_lshlrev_b32 v9, {shift}, v0')
    if lanes != -1: a(f's_mov_b64 exec, {lanes}')
    a(f'{tag}_poll:')
    if n4:
        for i in range(n4): a(f'buffer_load_dwordx4 v[{12+4*i}:{15+4*i}], v9, s[16:19], {soff} offen offset:{i*1024}{SC}')
        a('s_waitcnt vmcnt(0)')
        a('v_and_b32 v10, v12, v13')
        for r in range(14, 12 + 4 * n4): a(f'v_and_b32 v10, v10, v{r}')
    else:
        a(f'buffer_load_dword v10, v9, s[16:19], {soff} offen{SC}')
        a('s_waitcnt vmcnt(0)')
    a('v_cmp_eq_u32 vcc, 0, v10')
    a(f's_cbranch_vccz {tag}_ok')
    a(f's_sleep {SLEEP}')
    a('s_sub_u32 s55, s55, 1')
    a('s_cmp_lg_u32 s55, 0')
    a(f's_cbranch_scc1 {tag}_poll')
    a(f'{tag}_ok:')
    if lanes != -1: a('s_mov_b64 exec, -1')

def handoff(a, tag, ph, pgroup, pidx, cgroup, mid=None):
    a('s_barrier')
    a('s_add_u32 s58, s58, 1')
    a(f'v_mov_b32 v11, {RDY}')
    a('s_cmp_lg_u32 s3, 0')
    a(f's_cbranch_scc1 {tag}_nf')
    a(f's_mul_i32 s54, {pgroup}, {GSTR}')
    a(f's_mul_i32 s55, {pidx}, {FSTR}')
    a('s_add_u32 s54, s54, s55')
    a('s_add_u32 s54, s54, s11')
    a(f's_add_u32 s54, s54, {ph*PSTR & 0xffffffff}')
    a('v_mov_b32 v9, 0')
    a('v_mov_b32 v10, 1')
    a('s_mov_b64 exec, 1')
    a(f'buffer_store_dword v10, v9, s[16:19], s54 offen{SC}')
    a('s_mov_b64 exec, -1')
    a(f'{tag}_nf:')
    if mid: mid()
    a('s_cmp_lg_u32 s3, 0')
    a(f's_cbranch_scc1 {tag}_wait')
    a(f's_mul_i32 s54, {cgroup}, {GSTR}')
    a('s_add_u32 s54, s54, s11')
    a(f's_add_u32 s54, s54, {ph*PSTR & 0xffffffff}')
    spin_global(a, tag, 's54', log2(FSTR), lanes=0xffff)
    a('v_mov_b32 v10, s58')
    a('ds_write_b32 v11, v10')
    a(f's_branch {tag}_go')
    a(f'{tag}_wait:')
    if 'nocodepf' not in OPT:
        a('s_add_u32 s55, s10, s3')
        a('s_cmp_lg_u32 s55, 1')
        a(f's_cbranch_scc1 {tag}_np')
        code_touch(a, 80, 12, 13, 's55')
        a(f'{tag}_np:')
    a(f's_mov_b32 s55, {TIMEOUT * 16}')
    a(f'{tag}_w2:')
    a('ds_read_b32 v10, v11')
    a('s_waitcnt lgkmcnt(0)')
    a('v_cmp_ne_u32 vcc, s58, v10')
    a(f's_cbranch_vccz {tag}_go')
    a('s_sleep 1')
    a('s_sub_u32 s55, s55, 1')
    a('s_cmp_lg_u32 s55, 0')
    a(f's_cbranch_scc1 {tag}_w2')
    a(f'{tag}_go:')

def signal(a, ph, group, idx):
    stamp(a, 3)
    a('s_waitcnt vmcnt(0)')
    stamp(a, 4)
    a('s_barrier')

class Cfg:
    def __init__(s, name, kind, ph, K, woff, R, lead, xoff, ooff, roff=0, spoff=0):
        s.name, s.kind, s.ph, s.K, s.woff, s.R, s.lead = name, kind, ph, K, woff, R, lead
        s.xoff, s.ooff, s.roff, s.spoff = xoff, ooff, roff, spoff
        s.npanel = 1 if kind == 'res' else 3
        s.half = kind == 'w1'
        s.NF = 4 * s.npanel + (2 if s.half else 0)
        s.UB = 8192 + s.NF * 1024
        s.U = K // 32
        s.T = s.U // 2
        s.nw = s.npanel + (1 if s.half else 0)
        s.nload = 2 + s.nw
        assert lead <= R - 2 and lead % 2 == 0 and s.UB * R <= STAT - 64 and s.nload * R <= 63

C_QKV = Cfg('qkv', 'qkv', 0, 1024, WS_PQ, 7, 4, L_XA, 0, spoff=L_SPA)
C_WO  = Cfg('wo',  'res', 2, 1024, WS_PO, 12, 6, L_O, L_XB, roff=L_XA, spoff=L_SPB)
C_W1  = Cfg('w1',  'w1',  3, 1024, WS_P1, 7, 4, L_XB, L_H, spoff=L_SPB)
C_W2  = Cfg('w2',  'res', 4, 3584, WS_P2, 12, 6, L_H, L_XA + LSTR, roff=L_XB, spoff=L_SPA + LSTR)

def stats_issue(a, c):
    FR = 16
    a('v_and_b32 v1, 15, v0')
    a('v_lshrrev_b32 v2, 4, v0')
    a('v_lshlrev_b32 v3, 4, v1')
    a('v_lshl_add_u32 v3, v2, 10, v3')
    a('s_lshl_b32 s36, s26, 15')
    a('s_lshl_b32 s37, s3, 8')
    a('s_add_u32 s36, s36, s37')
    a('s_add_u32 s36, s36, s10')
    a(f's_add_u32 s36, s36, {c.spoff}')
    for i in range(8):
        if i: a('s_add_u32 s36, s36, 4096')
        a(f'buffer_load_dwordx4 v[{FR+4*i}:{FR+4*i+3}], v3, s[16:19], s36 offen{SC}')
    csoff, csld = (WS_CSQ, 3072 * 4) if c.kind == 'qkv' else (WS_CS1, 3584 * 4)
    if c.kind == 'qkv':
        a('s_min_u32 s37, s3, 2')
        a('s_lshl_b32 s37, s37, 12')
        a('s_lshl_b32 s38, s27, 8')
    else:
        a('s_lshl_b32 s37, s3, 8')
        a('s_mul_i32 s38, s27, 896')
    a('s_add_u32 s37, s37, s38')
    a(f's_add_u32 s37, s37, {csoff}')
    a('v_lshlrev_b32 v13, 2, v0')
    ncs = 16 if c.kind == 'qkv' else 8
    for i in range(ncs):
        a(f'buffer_load_dword v{FR+32+i}, v13, s[16:19], s37 offen{SC}')
        if i < ncs - 1: a(f's_add_u32 s37, s37, {csld}')
    return 8 + ncs

def stats_finish(a, c):
    FR = 16; S = STAT; CSR = FR + 32
    ncs = 16 if c.kind == 'qkv' else 8
    a('s_lshl_b32 s38, s3, 8')
    a(f's_add_u32 s38, s38, {S + 1024}')
    a('v_add_u32 v13, s38, v13')
    a('s_waitcnt vmcnt(0)')
    for i in range(1, ncs // 2): a(f'v_pk_add_f32 v[{CSR}:{CSR+1}], v[{CSR}:{CSR+1}], v[{CSR+2*i}:{CSR+1+2*i}]')
    a(f'v_add_f32 v{CSR}, v{CSR}, v{CSR+1}')
    a(f'ds_write_b32 v13, v{CSR}')
    for i in range(1, 8):
        for h in range(2):
            a(f'v_pk_add_f32 v[{FR+2*h}:{FR+2*h+1}], v[{FR+2*h}:{FR+2*h+1}], v[{FR+4*i+2*h}:{FR+4*i+2*h+1}]')
    for sw in ('v_permlane32_swap_b32', 'v_permlane16_swap_b32'):
        for r in range(4): a(f'v_mov_b32 v{FR+4+r}, v{FR+r}')
        for r in range(4): a(f'{sw} v{FR+r}, v{FR+4+r}')
        for r in range(4): a(f'v_add_f32 v{FR+r}, v{FR+r}, v{FR+4+r}')
    a(f's_mov_b32 s36, {f32bits(1.0/1024)}')
    a(f's_mov_b32 s37, {f32bits(1e-5)}')
    for r in range(4): a(f'v_mul_f32 v{FR+r}, s36, v{FR+r}')
    for q in (0, 2): a(f'v_fma_f32 v{FR+q+1}, -v{FR+q}, v{FR+q}, v{FR+q+1}')
    for q in (0, 2): a(f'v_max_f32 v{FR+q+1}, 0, v{FR+q+1}')
    for q in (0, 2): a(f'v_add_f32 v{FR+q+1}, s37, v{FR+q+1}')
    a(f'v_rsq_f32 v{FR+6}, v{FR+1}')
    a(f'v_rsq_f32 v{FR+7}, v{FR+3}')
    a(f'v_sub_f32 v{FR+4}, 0, v{FR}')
    a(f'v_sub_f32 v{FR+5}, 0, v{FR+2}')
    a('s_lshl_b32 s36, s3, 7')
    a(f's_add_u32 s36, s36, {S}')
    a('v_lshlrev_b32 v3, 3, v1')
    a('v_add_u32 v3, s36, v3')
    a(f'ds_write_b64 v3, v[{FR+4}:{FR+5}]')
    a(f'ds_write_b64 v3, v[{FR+6}:{FR+7}] offset:512')
    a('s_waitcnt lgkmcnt(0)')

def gemm_loader(a, c):
    n = c.name; R, U, T, lead, npw = c.R, c.U, c.T, c.lead, c.npanel
    stamp(a, 0)
    a('v_lshlrev_b32 v8, 4, v0')
    a('s_lshl_b32 s44, s3, 11')
    a(f's_mul_i32 s40, s26, {U * 8192}')
    a('s_add_u32 s40, s40, s10')
    a(f's_add_u32 s40, s40, {c.xoff}')
    a('s_add_u32 s40, s40, s44')
    a(f's_mul_i32 s45, s3, {npw * 1024}')
    a(f's_mul_i32 s41, s27, {U * c.NF * 1024}')
    a(f's_add_u32 s41, s41, {c.woff}')
    if c.half:
        a('s_lshl_b32 s46, s3, 9')
        a(f's_add_u32 s46, s46, {12 * 1024}')
        a('s_add_u32 s42, s41, s46')
        a('s_add_u32 s46, s46, 8192')
    a('s_add_u32 s41, s41, s45')
    a('s_add_u32 s45, s45, 8192')
    def issue_w(slot, first=False):
        if not first:
            a(f's_add_u32 m0, {slot}, s45')
            a('s_nop 0')
        for p in range(npw): a(f'buffer_load_dwordx4 v8, s[16:19], s41 offen offset:{p*1024}{SC} lds')
        if c.half:
            a(f's_add_u32 m0, {slot}, s46')
            a('s_mov_b32 exec_hi, 0')
            a(f'buffer_load_dwordx4 v8, s[16:19], s42 offen{SC} lds')
            a('s_mov_b32 exec_hi, -1')
            a(f's_add_u32 s42, s42, {c.NF*1024}')
        a(f's_add_u32 s41, s41, {c.NF*1024}')
    def issue_x(slot):
        a(f's_add_u32 m0, {slot}, s44')
        a('s_nop 0')
        a(f'buffer_load_dwordx4 v8, s[16:19], s40 offen{SC} lds')
        a(f'buffer_load_dwordx4 v8, s[16:19], s40 offen offset:1024{SC} lds')
        a('s_add_u32 s40, s40, 8192')
    def issue(first=False):
        issue_w('s43', first); issue_x('s43')
        a(f's_add_u32 s43, s43, {c.UB}')
        a(f's_cmp_eq_u32 s43, {c.UB*R}')
        a('s_cselect_b32 s43, 0, s43')
    if c is C_WO:
        a('s_cmp_lg_u32 s10, 0')
        a(f's_cbranch_scc1 {n}_pk_ok')
        a(f's_mov_b32 s47, {WS_PKF}')
        spin_global(a, n + '_pk', 's47', 4, n4=4)
    def wpre():
        for u in range(lead): issue_w(u * c.UB)
        stamp(a, 1)
    if 'earlyw' not in OPT:
        if c is C_QKV:
            a('s_cmp_eq_u32 s10, 0')
            a(f's_cbranch_scc1 {n}_nf')
        def mid():
            wpre()
            if c is C_QKV:
                a('s_cmp_eq_u32 s10, 0')
                a(f's_cbranch_scc1 {n}_go')
        handoff(a, n, c.ph - 1, 's26', 's27', 's26', mid=mid)
    else:
        wpre()
        if c is C_QKV:
            a('s_cmp_eq_u32 s10, 0')
            a(f's_cbranch_scc1 {n}_go')
        handoff(a, n, c.ph - 1, 's26', 's27', 's26')
    stamp(a, 2)
    for u in range(lead): issue_x(u * c.UB)
    a(f's_mov_b32 s43, {lead * c.UB}')
    nl = c.nload
    q = [u for u in range(lead) for _ in range(2)]
    def wait_units(last, extra=0):
        k = max([i for i, t in enumerate(q) if t <= last], default=-1)
        a(f's_waitcnt vmcnt({len(q) - 1 - k + extra})')
        del q[:k + 1]
    wait_units(1)
    a('s_barrier')
    stamp(a, 3)
    issued = lead; t = 0
    while 2 * t + 4 < lead + 0:
        for _ in range(2): issue(); q += [issued] * nl; issued += 1
        wait_units(2 * t + 3); a('s_barrier'); t += 1
    nfull = (U - issued) // 2
    a(f's_mov_b32 s50, {nfull}')
    a('s_add_u32 m0, s43, s45')
    a(f's_branch {n}_lbody')
    a(f'{n}_lhead:')
    a(f's_waitcnt vmcnt({(lead-2)*nl})')
    a('s_barrier')
    a(f'{n}_lbody:')
    issue(first=True); issue()
    a('s_add_u32 m0, s43, s45')
    a('s_sub_u32 s50, s50, 1')
    a('s_cmp_lg_u32 s50, 0')
    a(f's_cbranch_scc1 {n}_lhead')
    issued += 2 * nfull; t += nfull - 1
    assert issued == U
    extra = stats_issue(a, c) if c.kind != 'res' else 0
    while t < T:
        if t == T - 1 and c.kind != 'res': stats_finish(a, c)
        else: a(f's_waitcnt vmcnt({max(0, issued - (2*t+4))*nl + extra})')
        a('s_barrier'); t += 1
    stamp(a, 4)
    prof_flush(a, c.ph, 0)

def mfma(d, x, y): return f'v_mfma_f32_16x16x32_bf16 v[{d}:{d+3}], v[{x}:{x+3}], v[{y}:{y+3}], v[{d}:{d+3}]'
def wrapmask(nsteps, period):
    m = 0
    for i in range(nsteps):
        if (i + 1) % period == 0: m |= 1 << i
    return m

def res_epilogue(a, c, acc, FR):
    n = c.name
    for m in range(4):
        d = FR + 4 * m
        for e in range(2):
            s_ = acc(m, e)
            a(f'v_cvt_pk_bf16_f32 v{d+2*e}, v{s_}, v{s_+1}')
            a(f'v_cvt_pk_bf16_f32 v{d+2*e+1}, v{s_+2}, v{s_+3}')
    if c is C_W2:
        a('s_cmp_lg_u32 s10, 0')
        a(f's_cbranch_scc1 {n}_final')
    a(f's_add_u32 s36, s36, {c.ooff}')
    for m in range(4):
        a(f'buffer_store_dwordx4 v[{FR+4*m}:{FR+4*m+3}], v8, s[16:19], s36 offen offset:{m*1024}{SC}')
    SQ = FR + 16
    a('v_mov_b32 v3, 0x3f803f80')
    for r in range(8): a(f'v_mov_b32 v{SQ+r}, 0')
    for r in range(4):
        for m in range(4):
            a(f'v_dot2c_f32_bf16 v{SQ+m}, v{FR+4*m+r}, v3')
            a(f'v_dot2c_f32_bf16 v{SQ+4+m}, v{FR+4*m+r}, v{FR+4*m+r}')
    for b in (0, 4):
        a(f'v_permlane32_swap_b32 v{SQ+b}, v{SQ+b+1}')
        a(f'v_permlane32_swap_b32 v{SQ+b+2}, v{SQ+b+3}')
    for b in (0, 4):
        a(f'v_add_f32 v{SQ+b}, v{SQ+b}, v{SQ+b+1}')
        a(f'v_add_f32 v{SQ+b+2}, v{SQ+b+2}, v{SQ+b+3}')
    for b in (0, 4): a(f'v_permlane16_swap_b32 v{SQ+b}, v{SQ+b+2}')
    a(f'v_add_f32 v{SQ}, v{SQ}, v{SQ+2}')
    a(f'v_add_f32 v{SQ+1}, v{SQ+4}, v{SQ+6}')
    a('v_and_b32 v13, 1, v2')
    a('v_lshrrev_b32 v14, 1, v2')
    a('v_lshl_add_u32 v13, v13, 1, v14')
    a('v_lshl_add_u32 v13, v13, 4, v1')
    a('v_lshlrev_b32 v13, 3, v13')
    a('s_lshl_b32 s37, s26, 5')
    a('s_lshl_b32 s38, s27, 1')
    a('s_add_u32 s37, s37, s38')
    a('s_add_u32 s37, s37, s33')
    a('s_lshl_b32 s37, s37, 10')
    a('s_lshl_b32 s38, s32, 9')
    a('s_add_u32 s37, s37, s38')
    a('s_add_u32 s37, s37, s10')
    a(f's_add_u32 s37, s37, {c.spoff}')
    a(f'buffer_store_dwordx2 v[{SQ}:{SQ+1}], v13, s[16:19], s37 offen{SC}')
    signal(a, c.ph, 's26', 's27')
    prof_flush(a, c.ph, 1)
    if c is C_W2:
        c.final = lambda: final_store(a, c, FR)

def gemm_consumer(a, c):
    n = c.name; R, U, T = c.R, c.U, c.T
    res = c.kind == 'res'
    NW = {'qkv': 6, 'w1': 8, 'res': 2}[c.kind]
    tiles = [(m, t) for t in range(min(NW, 6)) for m in range(4)]
    if c.kind == 'w1': tiles += [(m, t) for t in (6, 7) for m in range(2)]
    nsub = 2 if res else 1
    VX, VW = 4, 6
    FR = 16
    fset = nsub * (4 + NW) * 4
    ACC = FR + 2 * fset
    accmap = {mt: ACC + 4 * i for i, mt in enumerate(sorted(tiles))}
    c.vgpr = ACC + 4 * len(tiles)
    acc = lambda m, t: accmap[(m, t)]
    xf = lambda st, si, m: FR + st * fset + (si * (4 + NW) + m) * 4
    wf = lambda st, si, t: FR + st * fset + (si * (4 + NW) + 4 + t) * 4
    S = STAT
    stamp(a, 0)
    a('v_lshlrev_b32 v8, 4, v0')
    a('v_and_b32 v1, 15, v0')
    a('v_lshrrev_b32 v2, 4, v0')
    a('s_lshl_b32 s34, s32, 12')
    if c.kind == 'w1':
        a('s_lshl_b32 s35, s33, 11')
        a('s_add_u32 s34, s34, s35')
        a(f'v_add_u32 v{VX}, s34, v8')
        a(f'v_xor_b32 v{VX+1}, 2048, v{VX}')
        xsrc = lambda m: (VX + (m >> 1), (m & 1) * 1024)
        addr_regs = [VX, VX + 1, VW, VW + 1]
    else:
        a(f'v_add_u32 v{VX}, s34, v8')
        xsrc = lambda m: (VX, m * 1024)
        addr_regs = [VX, VW]
    a('s_lshl_b32 s34, s33, 11')
    a('s_add_u32 s34, s34, 8192')
    a(f'v_add_u32 v{VW}, s34, v8')
    if c.half: a(f'v_add_u32 v{VW+1}, {8192 + 12*1024}, v8')
    wsrc = lambda t: (VW, (t >> 1) * 4096 + (t & 1) * 1024) if t < 6 else (VW + 1, (t & 1) * 1024)
    if res:
        a('s_lshl_b32 s36, s26, 5')
        a('s_lshl_b32 s37, s27, 1')
        a('s_add_u32 s36, s36, s37')
        a('s_add_u32 s36, s36, s33')
        a('s_lshl_b32 s36, s36, 13')
        a('s_lshl_b32 s37, s32, 12')
        a('s_add_u32 s36, s36, s37')
        a('s_add_u32 s36, s36, s10')
        a(f's_add_u32 s37, s36, {c.roff}')
        for m in range(4):
            a(f'buffer_load_dwordx4 v[{FR+4*m}:{FR+4*m+3}], v8, s[16:19], s37 offen offset:{m*1024}{SC}')
        for m in range(4):
            a(f's_waitcnt vmcnt({3-m})')
            for e in range(2):
                d = acc(m, e); r = FR + 4 * m + 2 * e
                a(f'v_lshlrev_b32 v{d}, 16, v{r}')
                a(f'v_and_b32 v{d+1}, 0xffff0000, v{r}')
                a(f'v_lshlrev_b32 v{d+2}, 16, v{r+1}')
                a(f'v_and_b32 v{d+3}, 0xffff0000, v{r+1}')
    else:
        for r in range(ACC, c.vgpr): a(f'v_mov_b32 v{r}, 0')
    def reads(st):
        out = []
        for si in range(nsub):
            ub = si * c.UB
            for m in range(4):
                reg, off = xsrc(m)
                out.append(f'ds_read_b128 v[{xf(st,si,m)}:{xf(st,si,m)+3}], v{reg} offset:{ub + off}')
            for t in range(NW):
                reg, off = wsrc(t); d = wf(st, si, t)
                out.append(f'ds_read_b128 v[{d}:{d+3}], v{reg} offset:{ub + off}')
        return out
    def mfmas(st):
        out = []
        for si in range(nsub):
            for m, t in tiles:
                if c.kind == 'qkv' and t >= 4: out.append(mfma(acc(m, t), xf(st, si, m), wf(st, si, t)))
                else: out.append(mfma(acc(m, t), wf(st, si, t), xf(st, si, m)))
        return out
    step = c.UB * nsub; period = R // nsub; nsteps = U // nsub
    mask = wrapmask(nsteps + 1, period)
    a(f's_mov_b32 s44, {mask & 0xffffffff}')
    a(f's_mov_b32 s45, {mask >> 32}')
    a(f's_mov_b32 s43, {-(period-1)*step & 0xffffffff}')
    a('s_mov_b32 s41, 0')
    pre = ['s_bitcmp1_b64 s[44:45], s41', f's_cselect_b32 s42, s43, {step}', 's_add_u32 s41, s41, 1']
    adv = [f'v_add_u32 v{r}, s42, v{r}' for r in addr_regs]
    def weave(ms, fill, at=None):
        for i, m in enumerate(ms):
            for x in (at or {}).get(i, []): a(x)
            a(m)
            for x in (fill[i] if i < len(fill) else []): a(x)
    def spread(items, ngaps):
        out = [[] for _ in range(ngaps)]
        extra = max(0, len(items) - ngaps); k = 0
        for i in range(ngaps):
            cnt = 2 if i < extra else 1
            out[i] = items[k:k + cnt]; k += cnt
        assert k >= len(items)
        return out
    a('s_barrier')
    stamp(a, 1)
    for x in pre: a(x)
    for r in reads(0): a(r)
    for x in adv: a(x)
    nm = len(tiles) * nsub
    if not res:
        a('s_waitcnt lgkmcnt(0)')
        a(f'.p2align 6\n{n}_cloop:')
        weave(mfmas(0), spread(reads(1) + pre + adv, nm - 3), at={nm - 1: ['s_waitcnt lgkmcnt(0)', 's_barrier']})
        f = spread(reads(0) + pre + adv, nm - 4)
        f += [[f's_cmp_lt_u32 s41, {nsteps + 1}'], [], ['s_waitcnt lgkmcnt(0)'], [f's_cbranch_scc1 {n}_cloop']]
        weave(mfmas(1), f)
    else:
        a(f'.p2align 6\n{n}_cloop:')
        a('s_waitcnt lgkmcnt(0)')
        a('s_barrier')
        weave(mfmas(0), spread(reads(1) + pre + adv, nm))
        a('s_waitcnt lgkmcnt(0)')
        a(f's_cmp_lt_u32 s41, {nsteps}')
        a('s_barrier')
        a(f's_cbranch_scc0 {n}_clast')
        weave(mfmas(1), spread(reads(0) + pre + adv, nm))
        a(f's_branch {n}_cloop')
        a(f'{n}_clast:')
        weave(mfmas(1), [])
    stamp(a, 2)
    if res:
        res_epilogue(a, c, acc, FR)
        return
    a('s_lshl_b32 s34, s32, 8')
    a(f's_add_u32 s34, s34, {S}')
    a('v_lshlrev_b32 v3, 2, v1')
    if c.kind == 'w1':
        a('s_lshl_b32 s35, s33, 7')
        a('s_add_u32 s35, s35, s34')
        a('v_add_u32 v3, s35, v3')
        a('v_xor_b32 v14, 128, v3')
        msrc = lambda m: (3 if m < 2 else 14, (m & 1) * 64)
    else:
        a('v_add_u32 v3, s34, v3')
        msrc = lambda m: (3, m * 64)
    for m in range(4):
        r, o = msrc(m)
        a(f'ds_read_b32 v{FR+2*m}, v{r} offset:{o}')
        a(f'ds_read_b32 v{FR+2*m+1}, v{r} offset:{512 + o}')
    CS = FR + 8
    a('v_lshlrev_b32 v13, 4, v2')
    a(f'v_add_u32 v13, {S + 1024}, v13')
    a('s_lshl_b32 s35, s33, 7')
    a('v_add_u32 v15, s35, v13')
    def fold(d, cs, st, tmp):
        for h in range(2):
            a(f'v_pk_fma_f32 v[{d+2*h}:{d+2*h+1}], v[{cs+2*h}:{cs+2*h+1}], v[{st}:{st+1}], v[{d+2*h}:{d+2*h+1}] op_sel:[0,0,0] op_sel_hi:[1,0,1]')
        for h in range(2):
            a(f'v_pk_mul_f32 v[{d+2*h}:{d+2*h+1}], v[{d+2*h}:{d+2*h+1}], v[{st}:{st+1}] op_sel:[0,1] op_sel_hi:[1,1]')
        a(f'v_cvt_pk_bf16_f32 v{tmp}, v{d}, v{d+1}')
        a(f'v_cvt_pk_bf16_f32 v{tmp+1}, v{d+2}, v{d+3}')
    if c.kind == 'w1':
        for t in range(6): a(f'ds_read_b128 v[{CS+4*t}:{CS+4*t+3}], v15 offset:{(t>>1)*256 + (t&1)*64}')
        for t in (6, 7): a(f'ds_read_b128 v[{CS+4*t}:{CS+4*t+3}], v13 offset:{768 + (t&1)*64}')
        a('s_mul_i32 s36, s26, 112')
        a('s_mul_i32 s37, s27, 7')
        a('s_add_u32 s36, s36, s37')
        a('s_add_u32 s37, s36, s33')
        a('s_add_u32 s38, s36, 6')
        a('s_lshl_b32 s37, s37, 13')
        a('s_lshl_b32 s38, s38, 13')
        a('s_lshl_b32 s36, s32, 12')
        a('s_add_u32 s36, s36, s10')
        a(f's_add_u32 s36, s36, {c.ooff}')
        a('s_add_u32 s37, s37, s36')
        a('s_add_u32 s38, s38, s36')
        a('s_lshl_b32 s35, s33, 11')
        a('v_add_u32 v3, s35, v8')
        a('v_xor_b32 v14, 2048, v3')
        a('s_waitcnt lgkmcnt(0)')
        TM = CS + 32
        k = 0
        for p in range(4):
            for m in range(4 if p < 3 else 2):
                d = TM + 4 * (k % 4); k += 1
                for e in range(2): fold(acc(m, 2 * p + e), CS + 4 * (2 * p + e), FR + 2 * m, d + 2 * e)
                for r in range(4): a(f'v_pk_max_i16 v{d+r}, v{d+r}, 0')
                a(f'buffer_store_dwordx4 v[{d}:{d+3}], v{3 if m < 2 else 14}, s[16:19], {"s37" if p < 3 else "s38"} offen offset:{(m&1)*1024}{SC}')
            if p < 2: a(f's_add_u32 s37, s37, {2*8192}')
        signal(a, c.ph, 's26', 's27')
        prof_flush(a, c.ph, 1)
        return
    for t in range(4): a(f'ds_read_b128 v[{CS+4*t}:{CS+4*t+3}], v15 offset:{(t>>1)*256 + (t&1)*64}')
    a('v_lshlrev_b32 v14, 2, v1')
    a('v_add_u32 v14, s35, v14')
    a(f'v_add_u32 v14, {S + 1024 + 512}, v14')
    CV = CS + 16
    a(f'ds_read_b32 v{CV}, v14')
    a(f'ds_read_b32 v{CV+1}, v14 offset:64')
    a('v_lshlrev_b32 v14, 4, v2')
    a('v_add_u32 v14, s34, v14')
    MV = CV + 4
    a('s_waitcnt lgkmcnt(6)')
    for m in range(4):
        a(f'ds_read_b128 v[{MV+8*m}:{MV+8*m+3}], v14 offset:{m*64}')
        a(f'ds_read_b128 v[{MV+8*m+4}:{MV+8*m+7}], v14 offset:{512 + m*64}')
    TM = MV + 32
    assert TM + 16 <= ACC
    a('v_lshlrev_b32 v3, 4, v1')
    a('v_lshl_add_u32 v3, v2, 9, v3')
    a('v_and_b32 v13, 8, v1')
    a('v_lshl_add_u32 v15, v13, 4, v3')
    a('s_lshl_b32 s34, s27, 1')
    a('s_add_u32 s34, s34, s33')
    a('s_lshl_b32 s35, s26, 2')
    a('s_lshl_b32 s36, s32, 1')
    a('s_add_u32 s35, s35, s36')
    a('s_lshl_b32 s36, s34, 17')
    a('s_lshl_b32 s37, s35, 11')
    a('s_add_u32 s36, s36, s37')
    a('s_lshl_b32 s37, s36, 1')
    a('s_add_u32 s37, s37, s10')
    a(f's_add_u32 s37, s37, {L_KVF}')
    a('s_add_u32 s38, s37, 4096')
    a('s_add_u32 s36, s36, s10')
    a('s_lshl_b32 s34, s33, 14')
    a('s_lshl_b32 s35, s32, 13')
    a('s_add_u32 s34, s34, s35')
    a('v_add_u32 v9, s34, v15')
    a('v_add_u32 v10, s34, v3')
    a('s_lshl_b32 s35, s3, 12')
    a(f's_add_u32 s35, s35, {RING}')
    a('v_add_u32 v11, s35, v3')
    a(f's_mov_b32 s39, {f32bits(QSCALE)}')
    a('s_waitcnt lgkmcnt(0)')
    k = 0
    for m in range(4):
        d = TM + 4 * (k % 4); k += 1
        for e in range(2): fold(acc(m, 2 + e), CS + 4 * (2 + e), FR + 2 * m, d + 2 * e)
        a(f'buffer_store_dwordx4 v[{d}:{d+3}], v15, s[16:19], {"s37" if m < 2 else "s38"} offen offset:{(m&1)*128}{SC}')
        a(f'ds_write_b128 v9, v[{d}:{d+3}] offset:{(m>>1)*4096 + (m&1)*128}')
    for tp in range(2):
        for e in range(2):
            d = TM + 4 * (k % 4); k += 1
            for mm in range(2):
                m = 2 * tp + mm; s_ = acc(m, 4 + e)
                for h in range(2):
                    a(f'v_pk_fma_f32 v[{s_+2*h}:{s_+2*h+1}], v[{MV+8*m+2*h}:{MV+8*m+2*h+1}], v[{CV}:{CV+1}], v[{s_+2*h}:{s_+2*h+1}] op_sel:[0,{e},0] op_sel_hi:[1,{e},1]')
                for h in range(2):
                    a(f'v_pk_mul_f32 v[{s_+2*h}:{s_+2*h+1}], v[{s_+2*h}:{s_+2*h+1}], v[{MV+8*m+4+2*h}:{MV+8*m+5+2*h}]')
                a(f'v_cvt_pk_bf16_f32 v{d+2*mm}, v{s_}, v{s_+1}')
                a(f'v_cvt_pk_bf16_f32 v{d+2*mm+1}, v{s_+2}, v{s_+3}')
            a(f'buffer_store_dwordx4 v[{d}:{d+3}], v3, s[16:19], {"s37" if tp == 0 else "s38"} offen offset:{2048 + e*256}{SC}')
            a(f'ds_write_b128 v10, v[{d}:{d+3}] offset:{tp*4096 + 2048 + e*256}')
    for m in range(4): a(f'v_mul_f32 v{FR+2*m+1}, s39, v{FR+2*m+1}')
    for m in range(4):
        d = TM + 4 * (k % 4); k += 1
        for e in range(2): fold(acc(m, e), CS + 4 * e, FR + 2 * m, d + 2 * e)
        a(f'ds_write_b128 v11, v[{d}:{d+3}] offset:{(m>>1)*2048 + (m&1)*256}')
        if DBGQ: a(f'buffer_store_dwordx4 v[{d}:{d+3}], v3, s[16:19], s36 offen offset:{(m>>1)*2048 + (m&1)*256}{SC}')
    stamp(a, 3); stamp(a, 4)
    prof_flush(a, c.ph, 1)

def final_store(a, c, FR):
    a(f'{c.name}_final:')
    a('s_mov_b32 s20, s8')
    a('s_mov_b32 s21, s9')
    a(f's_mov_b32 s22, {2048*2048}')
    a('s_mov_b32 s23, 0x20000')
    a('v_and_b32 v3, 1, v2')
    a('v_lshlrev_b32 v3, 5, v3')
    a('v_lshrrev_b32 v13, 1, v2')
    a('v_lshl_add_u32 v3, v13, 4, v3')
    a('v_lshl_add_u32 v3, v1, 11, v3')
    a('s_lshl_b32 s36, s26, 18')
    a('s_lshl_b32 s37, s32, 17')
    a('s_add_u32 s36, s36, s37')
    a('s_lshl_b32 s37, s27, 7')
    a('s_add_u32 s36, s36, s37')
    a('s_lshl_b32 s37, s33, 6')
    a('s_add_u32 s36, s36, s37')
    for m in range(4):
        d = FR + 4 * m
        a(f'v_permlane16_swap_b32 v{d}, v{d+2}')
        a(f'v_permlane16_swap_b32 v{d+1}, v{d+3}')
        if m: a('s_add_u32 s36, s36, 32768')
        a(f'buffer_store_dwordx4 v[{d}:{d+3}], v3, s[20:23], s36 offen{SC}')
    stamp(a, 3)
    if dsl.PROF: a('s_waitcnt vmcnt(0)')
    stamp(a, 4)
    prof_flush(a, c.ph, 1)
    if 'dbgt' in OPT: a('s_waitcnt vmcnt(0)')
    dbgt(a, 13)
    a('s_endpgm')


N1 = int(([x[2:] for x in sys.argv if x.startswith('n1')] or [44])[0]); N2 = 112 - 2 * N1
UB2, R2, LEAD2 = 16384, 8, 6
EV_DRAIN, EV_LOAD = [int(x) for x in ([x[2:] for x in sys.argv if x.startswith('ev')] or ['24'])[0]]
def w2_loader(a):
    c = C_W2; n = 'w2'; lead = LEAD2; T1 = N1 // 2; T = (N1 + N2) // 2; U = N1 + N2
    stamp(a, 0)
    a('v_lshlrev_b32 v8, 4, v0')
    a('s_lshl_b32 s44, s3, 11')
    a('s_and_b32 s48, s27, 1')
    a(f's_mul_i32 s48, s48, {N1}')
    a(f's_mul_i32 s40, s26, 112')
    a('s_add_u32 s40, s40, s48')
    a('s_lshl_b32 s40, s40, 13')
    a('s_add_u32 s40, s40, s10')
    a(f's_add_u32 s40, s40, {c.xoff}')
    a('s_add_u32 s40, s40, s44')
    a('s_lshl_b32 s45, s3, 10')
    for r, x in (('s41', 0), ('s42', 1)):
        a(f's_xor_b32 {r}, s27, {x}')
        a(f's_mul_i32 {r}, {r}, 112')
        a(f's_add_u32 {r}, {r}, s48')
        a(f's_lshl_b32 {r}, {r}, 12')
        a(f's_add_u32 {r}, {r}, {c.woff - x*4096 + 0}')
        a(f's_add_u32 {r}, {r}, s45')
    a('s_add_u32 s42, s42, 4096')
    a('s_add_u32 s45, s45, 8192')
    a(f's_sub_u32 s48, {N1}, s48')
    def issue_w(slot, wide):
        a(f's_add_u32 m0, {slot}, s45')
        a('s_nop 0')
        a(f'buffer_load_dwordx4 v8, s[16:19], s41 offen{SC} lds')
        if wide:
            a('s_add_u32 m0, m0, 4096')
            a('s_add_u32 s41, s41, 4096')
            a(f'buffer_load_dwordx4 v8, s[16:19], s42 offen{SC} lds')
            a('s_add_u32 s42, s42, 4096')
        else:
            a('s_add_u32 s41, s41, 4096')
    def issue_x(slot):
        a(f's_add_u32 m0, {slot}, s44')
        a('s_nop 0')
        a(f'buffer_load_dwordx4 v8, s[16:19], s40 offen{SC} lds')
        a(f'buffer_load_dwordx4 v8, s[16:19], s40 offen offset:1024{SC} lds')
        a('s_add_u32 s40, s40, 8192')
    def issue(wide):
        issue_w('s43', wide); issue_x('s43')
        a(f's_add_u32 s43, s43, {UB2}')
        a(f's_and_b32 s43, s43, {UB2*R2 - 1}')
    def wpre():
        for u in range(lead): issue_w(u * UB2, True)
        stamp(a, 1)
    handoff(a, n, c.ph - 1, 's26', 's27', 's26', mid=wpre)
    stamp(a, 2)
    for u in range(lead): issue_x(u * UB2)
    a(f's_mov_b32 s43, {lead * UB2}')
    a('s_cmp_eq_u32 s10, 0')
    a(f's_cselect_b32 s46, 0, {PSTR}')
    a(f's_add_u32 s46, s46, {WS_FLG + 10*PSTR}')
    a(f's_mul_i32 s47, s26, {GSTR}')
    a('s_add_u32 s46, s46, s47')
    a('s_xor_b32 s47, s27, 1')
    a(f's_mul_i32 s47, s47, {FSTR}')
    a('s_add_u32 s47, s47, s46')
    a(f's_mul_i32 s49, s27, {FSTR}')
    a('s_add_u32 s46, s46, s49')
    a('v_mov_b32 v14, 0')
    a('v_mov_b32 v15, 1')
    cnt = lambda u: 2 if u < lead else (4 if u < N1 else 3)
    def allowed(t, issued): return sum(cnt(u) for u in range(2 * t + 4, issued))
    a(f's_waitcnt vmcnt({allowed(-1, lead)})')
    a('s_barrier')
    stamp(a, 3)
    BD = T1 + 2 * EV_DRAIN + 1; BL = T1 + 2 * EV_LOAD + 1
    def epoch_desc(t):
        us = [u for u in (lead + 2 * t, lead + 2 * t + 1) if u < U]
        issued = min(U, lead + 2 * t + 2)
        ev = []
        if us and us[0] == N1: ev.append('jump')
        if t == BD: ev.append('flag')
        if t == BL - 2: ev.append('poll')
        if t == BL - 1: ev.append('check')
        return (tuple(u < N1 for u in us), allowed(t, issued), tuple(ev))
    t = 0; seg = 0
    while t < T:
        d = epoch_desc(t); k = 1
        while not d[2] and t + k < T and epoch_desc(t + k) == d: k += 1
        if k > 1:
            a(f's_mov_b32 s50, {k}')
            a(f'{n}_l{seg}:')
        if 'jump' in d[2]:
            a('s_lshl_b32 s49, s48, 13')
            a('s_add_u32 s40, s40, s49')
            a('s_lshl_b32 s49, s48, 12')
            a('s_add_u32 s41, s41, s49')
        if 'flag' in d[2]:
            a('s_cmp_lg_u32 s3, 0')
            a(f's_cbranch_scc1 {n}_nf2')
            a('s_mov_b64 exec, 1')
            a(f'buffer_store_dword v15, v14, s[16:19], s46 offen{SC}')
            a('s_mov_b64 exec, -1')
            a(f'{n}_nf2:')
        for wide in d[0]: issue(wide)
        if 'poll' in d[2]: a(f'buffer_load_dword v16, v14, s[16:19], s47 offen{SC}')
        if 'check' in d[2]:
            a(f's_waitcnt vmcnt({3 * len(d[0])})')
            a('v_cmp_eq_u32 vcc, 0, v16')
            a(f's_cbranch_vccz {n}_x_ok')
            spin_global(a, n + '_x', 's47', 2, lanes=1)
        a(f's_waitcnt vmcnt({d[1]})')
        a('s_barrier')
        if k > 1:
            a('s_sub_u32 s50, s50, 1')
            a('s_cmp_lg_u32 s50, 0')
            a(f's_cbranch_scc1 {n}_l{seg}')
            seg += 1
        t += k
    stamp(a, 4)
    prof_flush(a, c.ph, 0)

def w2_consumer(a):
    c = C_W2; n = 'w2'
    VX, VW, FR, ACC, PAC = 4, 6, 16, 112, 144
    acc = lambda m, t: (ACC if t < 2 else PAC) + (m * 2 + (t & 1)) * 4
    stamp(a, 0)
    a('v_lshlrev_b32 v8, 4, v0')
    a('v_and_b32 v1, 15, v0')
    a('v_lshrrev_b32 v2, 4, v0')
    a('s_lshl_b32 s34, s32, 12')
    a('v_add_u32 v9, s34, v8')
    a('s_lshl_b32 s34, s33, 11')
    a('s_add_u32 s34, s34, 8192')
    a('v_add_u32 v10, s34, v8')
    a(f'v_mov_b32 v{VX}, v9')
    a(f'v_mov_b32 v{VW}, v10')
    a('s_lshl_b32 s36, s26, 5')
    a('s_lshl_b32 s37, s27, 1')
    a('s_add_u32 s36, s36, s37')
    a('s_add_u32 s36, s36, s33')
    a('s_lshl_b32 s36, s36, 13')
    a('s_lshl_b32 s37, s32, 12')
    a('s_add_u32 s36, s36, s37')
    a('s_add_u32 s36, s36, s10')
    a(f's_add_u32 s37, s36, {c.roff}')
    for m in range(4):
        a(f'buffer_load_dwordx4 v[{FR+4*m}:{FR+4*m+3}], v8, s[16:19], s37 offen offset:{m*1024}{SC}')
    for r in range(PAC, PAC + 32): a(f'v_mov_b32 v{r}, 0')
    a('s_cmp_eq_u32 s10, 0')
    a(f's_cselect_b32 s38, 0, {8*MB_}')
    a(f's_add_u32 s38, s38, {WS_EX}')
    a('s_lshl_b32 s39, s26, 19')
    a('s_add_u32 s38, s38, s39')
    a('s_lshl_b32 s39, s3, 13')
    a('s_add_u32 s38, s38, s39')
    a('s_lshl_b32 s39, s27, 15')
    a('s_add_u32 s39, s39, s38')
    a('s_xor_b32 s38, s39, 32768')
    for m in range(4):
        a(f's_waitcnt vmcnt({3-m})')
        for e in range(2):
            d = acc(m, e); r = FR + 4 * m + 2 * e
            a(f'v_lshlrev_b32 v{d}, 16, v{r}')
            a(f'v_and_b32 v{d+1}, 0xffff0000, v{r}')
            a(f'v_lshlrev_b32 v{d+2}, 16, v{r+1}')
            a(f'v_and_b32 v{d+3}, 0xffff0000, v{r+1}')
    def weave(ms, fill, at=None):
        for i, m in enumerate(ms):
            for x in (at or {}).get(i, []): a(x)
            a(m)
            for x in (fill[i] if i < len(fill) else []): a(x)
    def spread(items, ngaps):
        out = [[] for _ in range(ngaps)]
        extra = max(0, len(items) - ngaps); k = 0
        for i in range(ngaps):
            cnt = 2 if i < extra else 1
            out[i] = items[k:k + cnt]; k += cnt
        assert k >= len(items)
        return out
    def mk(nsub, NW):
        fs = nsub * (4 + NW) * 4
        xf = lambda st, si, m: FR + st * fs + (si * (4 + NW) + m) * 4
        wf = lambda st, si, t: FR + st * fs + (si * (4 + NW) + 4 + t) * 4
        def reads(st):
            out = []
            for si in range(nsub):
                out += [f'ds_read_b128 v[{xf(st,si,m)}:{xf(st,si,m)+3}], v{VX} offset:{si*UB2 + m*1024}' for m in range(4)]
                out += [f'ds_read_b128 v[{wf(st,si,t)}:{wf(st,si,t)+3}], v{VW} offset:{si*UB2 + (t>>1)*4096 + (t&1)*1024}' for t in range(NW)]
            return out
        def mfmas(st): return [mfma(acc(m, t), wf(st, si, t), xf(st, si, m)) for si in range(nsub) for t in range(NW) for m in range(4)]
        adv = [f's_add_u32 s42, s42, {nsub*UB2}', f's_and_b32 s42, s42, {UB2*R2 - 1}', 's_add_u32 s41, s41, 1',
               f'v_add_u32 v{VX}, s42, v9', f'v_add_u32 v{VW}, s42, v10']
        return reads, mfmas, adv
    a('s_mov_b32 s41, 0')
    a('s_mov_b32 s42, 0')
    a('s_barrier')
    stamp(a, 1)
    reads, mfmas, adv = mk(1, 4)
    for r in reads(0) + adv: a(r)
    a('s_waitcnt lgkmcnt(0)')
    a(f'.p2align 6\n{n}_c1:')
    weave(mfmas(0), spread(reads(1) + adv, 11), at={15: ['s_waitcnt lgkmcnt(0)', 's_barrier']})
    f = spread(reads(0) + adv, 11) + [[], [f's_cmp_lt_u32 s41, {N1 + 1}'], [], ['s_waitcnt lgkmcnt(0)'], [f's_cbranch_scc1 {n}_c1']]
    weave(mfmas(1), f)
    stamp(a, 5)
    reads, mfmas, adv = mk(2, 2)
    a(f's_mov_b32 s42, {(N1 % R2) * UB2}')
    a(f'v_add_u32 v{VX}, s42, v9')
    a(f'v_add_u32 v{VW}, s42, v10')
    a('s_mov_b32 s41, 0')
    for r in reads(0) + adv: a(r)
    a('s_add_u32 s40, s38, 4096')
    for i in range(8):
        a(f'buffer_store_dwordx4 v[{PAC+4*i}:{PAC+4*i+3}], v8, s[16:19], {"s38" if i < 4 else "s40"} offen offset:{(i&3)*1024}{SC}')
    a(f's_mov_b32 s44, {(1 << (2*EV_DRAIN + 1)) | (1 << (2*EV_LOAD + 1))}')
    a(f'.p2align 6\n{n}_c2:')
    a('s_waitcnt lgkmcnt(0)')
    a('s_barrier')
    a(f'{n}_c2b:')
    weave(mfmas(0), spread(reads(1) + adv, 16))
    a('s_waitcnt lgkmcnt(0)')
    a(f's_cmp_lt_u32 s41, {N2 // 2}')
    a('s_barrier')
    a(f's_cbranch_scc0 {n}_clast')
    weave(mfmas(1), spread(reads(0) + adv, 15) + [['s_bitcmp1_b32 s44, s41']])
    a(f's_cbranch_scc0 {n}_c2')
    a(f's_cmp_eq_u32 s41, {2*EV_DRAIN + 1}')
    a(f's_cbranch_scc0 {n}_ev2')
    a('s_waitcnt vmcnt(0)')
    a(f's_branch {n}_c2')
    a(f'{n}_ev2:')
    a('s_waitcnt lgkmcnt(0)')
    a('s_barrier')
    a('s_add_u32 s40, s39, 4096')
    for i in range(8):
        a(f'buffer_load_dwordx4 v[{PAC+4*i}:{PAC+4*i+3}], v8, s[16:19], {"s39" if i < 4 else "s40"} offen offset:{(i&3)*1024}{SC}')
    a(f's_branch {n}_c2b')
    a(f'{n}_clast:')
    weave(mfmas(1), [])
    stamp(a, 6)
    a('s_waitcnt vmcnt(0)')
    stamp(a, 2)
    for r in range(0, 32, 2): a(f'v_pk_add_f32 v[{ACC+r}:{ACC+r+1}], v[{ACC+r}:{ACC+r+1}], v[{PAC+r}:{PAC+r+1}]')
    res_epilogue(a, c, acc, FR)

import pack
pack.WS_PQ, pack.WS_PO, pack.WS_P1, pack.WS_P2, pack.WS_CSQ, pack.WS_CS1 = WS_PQ, WS_PO, WS_P1, WS_P2, WS_CSQ, WS_CS1
RING = 4 * 32768
Q, KB, VB, P, ONES, L, IDX, O, CI, S_ = (8, 16), (24, 32), (40, 48), 56, 64, (68, 72), 76, (80, 96), (112, 128), (144, 160)
VA, VBASE = 4, 5
def m32(d, x, y, c): return f'v_mfma_f32_32x32x16_bf16 v[{d}:{d+15}], v[{x}:{x+3}], v[{y}:{y+3}], ' + (f'v[{c}:{c+15}]' if c is not None else '0')
def sm(d): return f'v_smfmac_f32_16x16x64_bf16 v[{d}:{d+3}], v[{ONES}:{ONES+3}], v[{P}:{P+7}], v{IDX}'

def attn_loader(a):
    n = 'at'
    stamp(a, 0)
    a('v_lshlrev_b32 v2, 4, v0')
    a('s_lshr_b32 s28, s3, 1')
    a('s_and_b32 s29, s3, 1')
    a('s_lshl_b32 s12, s27, 1')
    a('s_add_u32 s12, s12, s28')
    a('s_lshl_b32 s12, s12, 18')
    a('s_lshl_b32 s13, s29, 13')
    a('s_add_u32 s12, s12, s13')
    a('s_add_u32 s12, s12, s10')
    a(f's_add_u32 s12, s12, {L_KVF}')
    a('s_lshl_b32 s15, s3, 13')
    a('s_add_u32 s15, s15, 32768')
    a('s_lshl_b32 s13, s26, 14')
    a('s_add_u32 s13, s13, s12')
    def issue_chunk():
        a('s_cmp_eq_u32 s12, s13')
        a('s_cselect_b32 s14, 16384, 0')
        a('s_add_u32 s12, s12, s14')
        a('s_mov_b32 m0, s15')
        a('s_add_u32 s14, s12, 4096')
        for i in range(4): a(f'buffer_load_dwordx4 v2, s[16:19], s12 offen offset:{i*1024}{SC} lds')
        a('s_add_u32 m0, s15, 4096')
        a('s_add_u32 s12, s12, 16384')
        for i in range(4): a(f'buffer_load_dwordx4 v2, s[16:19], s14 offen offset:{i*1024}{SC} lds')
        a('s_add_u32 s15, s15, 32768')
        a(f's_and_b32 s15, s15, {RING-1}')
    stamp(a, 1)
    a('s_barrier')
    handoff(a, n, 0, 's27', 's26', 's27')
    stamp(a, 2)
    issue_chunk(); issue_chunk()
    stamp(a, 3)
    a('s_cmp_eq_u32 s10, 0')
    a(f's_cbranch_scc1 {n}_ldpack')
    a('s_mov_b32 s20, 13')
    a(f'{n}_lloop:')
    issue_chunk()
    a('s_waitcnt vmcnt(16)')
    a('s_barrier')
    a('s_sub_u32 s20, s20, 1')
    a('s_cmp_lg_u32 s20, 0')
    a(f's_cbranch_scc1 {n}_lloop')
    a('s_waitcnt vmcnt(8)')
    a('s_barrier')
    a('s_waitcnt vmcnt(0)')
    a('s_barrier')
    a(f's_branch {n}_lend')
    a(f'{n}_ldpack:')
    PK = 8
    a('s_mov_b32 s35, 0x20000')
    a('s_lshl_b32 s45, s3, 12')
    a(f's_add_u32 s45, s45, {RING}')
    a('s_cmp_lt_u32 s2, 32')
    a(f's_cbranch_scc1 {n}_pk_wo')
    a('s_cmp_lt_u32 s2, 144')
    a(f's_cbranch_scc1 {n}_pk_w1')
    a('s_sub_u32 s46, s2, 144')
    a('s_lshr_b32 s47, s46, 4')
    a('s_and_b32 s46, s46, 15')
    pack.decode(a, 32, 'w2', 's46', 's47', 's3', ('s62', 's63'), 4)
    a(f's_branch {n}_pk1')
    a(f'{n}_pk_wo:')
    a('s_lshr_b32 s47, s2, 4')
    a('s_and_b32 s46, s2, 15')
    pack.decode(a, 32, 'wo', 's46', 's47', 's3', ('s56', 's57'), 4)
    a(f's_branch {n}_pk1')
    a(f'{n}_pk_w1:')
    a('s_cmp_ge_u32 s2, 88')
    a('s_cselect_b32 s47, 1, 0')
    a('s_cselect_b32 s46, 88, 32')
    a('s_sub_u32 s46, s2, s46')
    pack.decode(a, 32, 'w1', 's46', 's47', 's3', ('s60', 's61'), 4)
    a(f'{n}_pk1:')
    pack.setup(a, 32, 0, PK, 's45')
    q = [('c', 1)] * 8 + [('c', 2)] * 8
    def need(tag):
        last = max([i for i, t in enumerate(q) if t == tag], default=-1)
        a(f's_waitcnt vmcnt({len(q) - 1 - last})')
        del q[:last + 1]
    LOADS = {0: 0, 3: 1, 6: 2, 9: 3}
    FINS = {3: 0, 6: 1, 9: 2, 12: 3}
    for e in range(15):
        if e + 3 < 16: issue_chunk(); q += [('c', e + 3)] * 8
        if e in FINS:
            u = FINS[e]
            need(('p', u))
            pack.finish1(a, 32, 2, PK, 's[16:19]', st=SC, flip=None); q += [('s', u)] * 4
        if e in LOADS:
            pack.issue1(a, 32, PK, wrap=('s45', True)); q += [('p', LOADS[e])] * 4
        if e == 13:
            a('s_cmp_eq_u32 s41, 0')
            a(f's_cbranch_scc1 {n}_nocs')
            pack.colsum1(a, 32, 0, PK, 's[16:19]', st=SC)
            a(f'{n}_nocs:')
        if e == 14:
            a('s_lshl_b32 s46, s2, 4')
            a('s_lshl_b32 s47, s3, 2')
            a('s_add_u32 s46, s46, s47')
            a(f's_add_u32 s46, s46, {WS_PKF}')
            a('v_mov_b32 v3, 0')
            a('v_mov_b32 v1, 1')
            a('s_waitcnt vmcnt(0)'); q.clear()
            a('s_mov_b64 exec, 1')
            a(f'buffer_store_dword v1, v3, s[16:19], s46 offen{SC}')
            a('s_mov_b64 exec, -1')
        else:
            need(('c', e + 1))
        a('s_barrier')
    a(f'{n}_lend:')
    a('s_barrier')
    stamp(a, 4)
    prof_flush(a, 1, 0)

def attn_consumer(a):
    n = 'at'; S = S_
    stamp(a, 0)
    a('v_lshlrev_b32 v2, 4, v0')
    a('s_lshl_b32 s28, s27, 1')
    a('s_add_u32 s28, s28, s33')
    a('s_lshl_b32 s13, s3, 12')
    a(f's_add_u32 s13, s13, {RING}')
    a('v_add_u32 v3, s13, v2')
    a('s_waitcnt lgkmcnt(0)')
    for i in range(4): a(f'ds_read_b128 v[{Q[0]+4*i}:{Q[0]+4*i+3}], v3 offset:{i*1024}')
    a('v_lshrrev_b32 v3, 2, v0')
    a('v_mov_b32 v6, 0x3f803f80')
    a('v_and_b32 v1, 1, v3')
    a('v_cmp_eq_u32 vcc, 0, v1')
    a(f'v_cndmask_b32 v{ONES}, 0, v6, vcc')
    a(f'v_mov_b32 v{ONES+1}, v{ONES}')
    a(f'v_xor_b32 v{ONES+2}, v6, v{ONES}')
    a(f'v_mov_b32 v{ONES+3}, v{ONES+2}')
    a('v_and_b32 v1, 1, v0')
    a('v_cmp_eq_u32 vcc, 0, v1')
    a('v_mov_b32 v6, 0x44444444')
    a('v_mov_b32 v7, 0xeeeeeeee')
    a(f'v_cndmask_b32 v{IDX}, v7, v6, vcc')
    for r in list(range(L[0], L[0] + 8)) + list(range(O[0], O[0] + 32)) + list(range(P, P + 8)) + list(range(VB[1] + 4, VB[1] + 8)):
        a(f'v_mov_b32 v{r}, 0')
    a('s_lshl_b32 s14, s33, 14')
    a(f'v_add_u32 v{VBASE}, s14, v2')
    a(f'v_mov_b32 v{VA}, v{VBASE}')
    a('s_mov_b32 s20, 0')
    a('s_mov_b32 s21, 0')
    a('s_waitcnt lgkmcnt(0)')
    a('s_barrier')
    stamp(a, 5)
    def rd(dst, off): a(f'ds_read_b128 v[{dst}:{dst+3}], v{VA} offset:{off}')
    rd(KB[0], 0); rd(KB[0] + 4, 1024); rd(VB[0], 2048); rd(VB[0] + 4, 3072)
    a('s_waitcnt lgkmcnt(2)')
    for qi in range(2):
        a(m32(S[qi], KB[0], Q[qi], None))
        a(m32(S[qi], KB[0] + 4, Q[qi] + 4, S[qi]))
    for qi in range(2):
        s_, t_ = S[qi], 6 + qi
        a(f'v_max3_f32 v{t_}, v{s_}, v{s_+1}, v{s_+2}')
        for r in range(3, 15, 2): a(f'v_max3_f32 v{t_}, v{t_}, v{s_+r}, v{s_+r+1}')
        a(f'v_max_f32 v{t_}, v{t_}, v{s_+15}')
    a('v_mov_b32 v1, v6')
    a('v_mov_b32 v3, v7')
    a('v_permlane32_swap_b32 v6, v1')
    a('v_permlane32_swap_b32 v7, v3')
    a('v_max_f32 v6, v6, v1')
    a('v_max_f32 v7, v7, v3')
    for r in range(16): a(f'v_sub_f32 v{CI[0]+r}, 0, v6')
    a(m32(S[0], KB[0], Q[0], CI[0]))
    a(m32(S[0], KB[0] + 4, Q[0] + 4, S[0]))
    for r in range(16): a(f'v_sub_f32 v{CI[1]+r}, 0, v7')
    a('s_waitcnt vmcnt(0) lgkmcnt(0)')
    a('s_barrier')
    stamp(a, 1)
    a(f'.p2align 6\n{n}_loop:')
    for kt in range(4):
        for qi in range(2):
            sa, sb = S[qi], S[1 - qi]
            E = lambda *r: [a(f'v_exp_f32 v{sa+i}, v{sa+i}') for i in r]
            C = lambda *r: [a(f'v_cvt_pk_bf16_f32 v{P+i}, v{sa+2*i}, v{sa+2*i+1}') for i in r]
            kn = KB[kt % 2] if qi == 0 else KB[(kt + 1) % 2]
            vp = VB[(kt + 1) % 2] if qi == 0 else VB[kt % 2]
            nb = (kt + 1) % 2; off = ((kt + 1) % 4) * 4096
            f = [[] for _ in range(5)]
            if qi == 0:
                f[0] = [('rd', KB[nb], off)]; f[1] = [('rd', KB[nb] + 4, off + 1024)]
                f[2] = [('rd', VB[nb] + 4, off + 3072)]; f[3] = [('rd', VB[nb], off + 2048)]
                f[4] = ['s_waitcnt lgkmcnt(2)']
            else:
                f[1] = ['s_waitcnt lgkmcnt(0)']
                if kt == 1:
                    f[0] = ['s_add_u32 s21, s21, 32768']; f[2] = [f's_and_b32 s21, s21, {RING-1}']
                    f[3] = ['s_add_u32 s20, s20, 1']
                if kt == 2: f[3] = ['s_barrier', f'v_add_u32 v{VA}, s21, v{VBASE}']
                if kt == 3: f[0] = ['s_cmp_lg_u32 s20, 16']
            def F(i):
                for x in f[i]:
                    if isinstance(x, tuple): rd(x[1], x[2])
                    else: a(x)
            a(m32(sb, kn, Q[1 - qi], CI[1 - qi])); F(0); E(0, 1, 2)
            a(sm(L[1 - qi])); F(1); E(3, 4, 5)
            a(m32(O[1 - qi], vp + 4, P + 4, O[1 - qi])); F(2); E(6, 7); C(0, 1)
            a(m32(sb, kn + 4, Q[1 - qi] + 4, sb)); F(3); C(2, 3); E(8, 9)
            a(m32(O[qi], VB[kt % 2], P, O[qi])); F(4); E(10, 11, 12, 13, 14, 15); C(4, 5, 6, 7)
    a(f's_cbranch_scc1 {n}_loop')
    stamp(a, 2)
    a(sm(L[1]))
    a(m32(O[1], VB[1] + 4, P + 4, O[1]))
    for qi in range(2): a(f'v_add_f32 v{L[qi]}, v{L[qi]}, v{L[qi]+1}')
    a(f'v_add_f32 v1, v{L[0]}, v{L[1]}')
    for r in range(0, 32, 2): a(f'v_pk_fma_f32 v[6:7], v[{O[0]+r}:{O[0]+r+1}], 0, v[6:7]' if r else f'v_pk_mul_f32 v[6:7], v[{O[0]}:{O[0]+1}], 0')
    a('v_add_f32 v1, v1, v6')
    a('v_add_f32 v1, v1, v7')
    a(f's_mov_b32 s23, {f32bits(2.0**100)}')
    a('v_cmp_ngt_f32 vcc, s23, v1')
    a(f's_cbranch_vccnz {n}_slow')
    a(f'{n}_fin:')
    a(f'v_rcp_f32 v6, v{L[0]}')
    a(f'v_rcp_f32 v7, v{L[1]}')
    a('v_and_b32 v3, 15, v0')
    a('v_lshlrev_b32 v3, 4, v3')
    a('v_lshrrev_b32 v1, 5, v0')
    a('v_lshl_add_u32 v3, v1, 8, v3')
    a('v_bfe_u32 v1, v0, 4, 1')
    a('v_lshl_add_u32 v3, v1, 10, v3')
    a('s_lshl_b32 s24, s26, 5')
    a('s_add_u32 s24, s24, s28')
    a('s_lshl_b32 s24, s24, 13')
    a('s_lshl_b32 s25, s32, 12')
    a('s_add_u32 s24, s24, s25')
    a('s_add_u32 s24, s24, s10')
    a(f's_add_u32 s24, s24, {L_O}')
    for qi in range(2):
        for r in range(0, 16, 2):
            a(f'v_pk_mul_f32 v[{O[qi]+r}:{O[qi]+r+1}], v[{O[qi]+r}:{O[qi]+r+1}], v[6:7] op_sel:[0,{qi}] op_sel_hi:[1,{qi}]')
        for c in range(2):
            d = S[0] + 8 * qi + 4 * c
            for k, r in enumerate((4*c, 4*c + 2, 8 + 4*c, 8 + 4*c + 2)):
                a(f'v_cvt_pk_bf16_f32 v{d+k}, v{O[qi]+r}, v{O[qi]+r+1}')
            a(f'buffer_store_dwordx4 v[{d}:{d+3}], v3, s[16:19], s24 offen offset:{qi*2048 + c*512}{SC}')
    signal(a, 1, 's26', 's27')
    prof_flush(a, 1, 1)

def attn_slow(a):
    n = 'at'; S = S_
    a(f'{n}_slow:')
    M, LS, SA, KF, VF, OT = 6, 7, S[0], KB[0], VB[0], S[1]
    a('s_lshl_b32 s29, s28, 18')
    a('s_add_u32 s29, s29, s10')
    a(f's_add_u32 s29, s29, {L_KVF}')
    a('s_mov_b32 s21, 0')
    a(f'{n}_sq:')
    a(f'v_mov_b32 v{M}, {f32bits(-3.0e38)}')
    a(f'v_mov_b32 v{LS}, 0')
    for r in range(16): a(f'v_mov_b32 v{OT+r}, 0')
    a('s_mov_b32 s20, 0')
    a('s_mov_b32 s12, s29')
    a(f'{n}_sloop:')
    for i, d in enumerate((KF, KF + 4, VF, VF + 4)):
        a(f'buffer_load_dwordx4 v[{d}:{d+3}], v2, s[16:19], s12 offen offset:{i*1024}{SC}')
    a('s_add_u32 s12, s12, 4096')
    a('s_waitcnt vmcnt(0)')
    a(m32(SA, KF, Q[0], None))
    a(m32(SA, KF + 4, Q[0] + 4, SA))
    a(f'v_max3_f32 v1, v{SA}, v{SA+1}, v{SA+2}')
    for r in range(3, 15, 2): a(f'v_max3_f32 v1, v1, v{SA+r}, v{SA+r+1}')
    a(f'v_max3_f32 v1, v1, v{SA+15}, v{M}')
    a('v_mov_b32 v3, v1')
    a('v_permlane32_swap_b32 v1, v3')
    a('v_max_f32 v1, v1, v3')
    a(f'v_sub_f32 v3, v{M}, v1')
    a('v_exp_f32 v3, v3')
    a(f'v_mov_b32 v{M}, v1')
    for r in range(16): a(f'v_sub_f32 v{SA+r}, v{SA+r}, v1')
    for r in range(16): a(f'v_exp_f32 v{SA+r}, v{SA+r}')
    for r in range(16): a(f'v_mul_f32 v{OT+r}, v{OT+r}, v3')
    a(f'v_mul_f32 v{LS}, v{LS}, v3')
    for r in range(8): a(f'v_cvt_pk_bf16_f32 v{P+r}, v{SA+2*r}, v{SA+2*r+1}')
    for r in range(16): a(f'v_add_f32 v{LS}, v{LS}, v{SA+r}')
    a(m32(OT, VF, P, OT))
    a(m32(OT, VF + 4, P + 4, OT))
    a('s_add_u32 s20, s20, 1')
    a('s_cmp_lg_u32 s20, 64')
    a('s_nop 7')
    a(f's_cbranch_scc1 {n}_sloop')
    a(f'v_mov_b32 v3, v{LS}')
    a(f'v_permlane32_swap_b32 v{LS}, v3')
    a(f'v_add_f32 v{L[1]}, v{LS}, v3')
    for r in range(16): a(f'v_mov_b32 v{O[1]+r}, v{OT+r}')
    a('s_cmp_lg_u32 s21, 0')
    a(f's_cbranch_scc1 {n}_fin')
    a('s_mov_b32 s21, 1')
    a(f'v_mov_b32 v{L[0]}, v{L[1]}')
    for r in range(16): a(f'v_mov_b32 v{O[0]+r}, v{OT+r}')
    for r in range(8): a(f'v_mov_b32 v{Q[0]+r}, v{Q[1]+r}')
    a(f's_branch {n}_sq')

def main_kernel(a):
    label = 'main_kernel'
    a(f'.p2align 8\n.globl {label}\n.type {label},@function\n{label}:')
    a(f's_load_dwordx2 s[4:5], s[0:1], {KA["ws"]}')
    a(f's_load_dwordx2 s[8:9], s[0:1], {KA["out"]}')
    a(f's_load_dwordx2 s[56:57], s[0:1], {KA["wo"]}')
    a(f's_load_dwordx4 s[60:63], s[0:1], {KA["w1"]}')
    a('s_cmp_ge_u32 s2, 256')
    a('s_cbranch_scc1 main_exit')
    if dsl.PROF:
        for i in range(64, 80): a(f's_mov_b32 s{i}, 0')
    a('v_lshrrev_b32 v1, 6, v0')
    a('v_and_b32 v0, 63, v0')
    a('v_readfirstlane_b32 s3, v1')
    a('s_and_b32 s24, s2, 7')
    a('s_lshr_b32 s25, s2, 3')
    XN = 16 // NBK
    a(f's_lshr_b32 s26, s24, {log2(XN)}')
    a(f's_and_b32 s27, s24, {XN-1}')
    a(f's_lshl_b32 s26, s26, {log2(MBK)}')
    a(f's_lshl_b32 s27, s27, {log2(NBK)}')
    a(f's_and_b32 s28, s25, {MBK-1}')
    a(f's_lshr_b32 s29, s25, {log2(MBK)}')
    a('s_add_u32 s26, s26, s28')
    a('s_add_u32 s27, s27, s29')
    a(f's_mov_b32 s18, {WS_USED}')
    a('s_mov_b32 s19, 0x20000')
    a('s_mov_b32 s10, 0')
    a(f's_mov_b32 s11, {WS_FLG}')
    a('s_waitcnt lgkmcnt(0)')
    a('s_mov_b32 s16, s4')
    a('s_mov_b32 s17, s5')
    a('s_cmp_ge_u32 s3, 4')
    a('s_cbranch_scc1 main_cons')
    a('s_mov_b32 s58, 0')
    code_srd(a, 80, 'main')
    a(f'v_mov_b32 v11, {RDY}')
    a('v_mov_b32 v10, 0')
    a('ds_write_b32 v11, v10')
    a('main_lay_l:')
    gemm_loader(a, C_QKV); attn_loader(a); gemm_loader(a, C_WO); gemm_loader(a, C_W1); (gemm_loader(a, C_W2) if 'nosplit' in OPT else w2_loader(a))
    a('s_cmp_lg_u32 s10, 0')
    a('s_cbranch_scc1 main_exit')
    a(f's_mov_b32 s10, {LSTR}')
    a(f's_mov_b32 s11, {WS_FLG + 5*PSTR}')
    a('s_branch main_lay_l')
    a('main_exit:')
    a('s_endpgm')
    a('.p2align 6\nmain_cons:')
    a('s_setprio 2')
    a('s_sub_u32 s3, s3, 4')
    a('s_lshr_b32 s32, s3, 1')
    a('s_and_b32 s33, s3, 1')
    dbgt_init(a, True)
    a('main_lay_c:')
    dbgt(a, 2, True); gemm_consumer(a, C_QKV); dbgt(a, 3, True); attn_consumer(a); dbgt(a, 4, True); gemm_consumer(a, C_WO); dbgt(a, 5, True); gemm_consumer(a, C_W1); dbgt(a, 6, True)
    (gemm_consumer(a, C_W2) if 'nosplit' in OPT else w2_consumer(a))
    a(f's_mov_b32 s10, {LSTR}')
    a(f's_mov_b32 s11, {WS_FLG + 5*PSTR}')
    a('s_branch main_lay_c')
    C_W2.final()
    attn_slow(a)
    a('main_end:')

GRID_PRE = 224 + (12 * PSTR + 4096 + 16383) // 16384
def pre_kernel(a):
    n = 'pre'; label = 'pre_kernel'
    a(f'.p2align 8\n.globl {label}\n.type {label},@function\n{label}:')
    a(f's_load_dwordx2 s[4:5], s[0:1], {KA["ws"]}')
    a(f's_load_dwordx2 s[6:7], s[0:1], {KA["x"]}')
    a(f's_load_dwordx2 s[8:9], s[0:1], {KA["wqkv"]}')
    a(f's_cmp_ge_u32 s2, {GRID_PRE}')
    a(f's_cbranch_scc1 {n}_exit')
    a('v_lshrrev_b32 v1, 6, v0')
    a('v_mov_b32 v30, v0')
    a('v_and_b32 v0, 63, v0')
    a('v_readfirstlane_b32 s3, v1')
    dbgt_init(a, False); dbgt(a, 0)
    a(f's_mov_b32 s18, {WS_USED}')
    a('s_mov_b32 s19, 0x20000')
    a('s_mov_b32 s23, 0x20000')
    a('s_cmp_lt_u32 s2, 96')
    a(f's_cbranch_scc1 {n}_cs')
    a('s_cmp_ge_u32 s2, 224')
    a(f's_cbranch_scc1 {n}_fl')
    a('s_sub_u32 s24, s2, 96')
    a('v_and_b32 v1, 15, v0')
    a('v_lshrrev_b32 v2, 4, v0')
    a('v_lshlrev_b32 v3, 3, v2')
    a('v_lshl_add_u32 v3, v1, 11, v3')
    a('v_lshlrev_b32 v4, 4, v0')
    a('s_lshl_b32 s25, s24, 15')
    a('s_lshl_b32 s26, s3, 8')
    a('s_add_u32 s25, s25, s26')
    a(f's_mov_b32 s22, {2048*2048}')
    a('s_waitcnt lgkmcnt(0)')
    a('s_mov_b32 s16, s4\ns_mov_b32 s17, s5\ns_mov_b32 s20, s6\ns_mov_b32 s21, s7')
    for k in range(4):
        for u in range(2):
            a(f'buffer_load_dwordx2 v[{8+4*k+2*u}:{9+4*k+2*u}], v3, s[20:23], s25 offen offset:{k*64 + u*32}')
    a('s_lshr_b32 s26, s24, 3')
    a('s_and_b32 s27, s24, 7')
    a('s_lshl_b32 s28, s26, 5')
    a('s_lshl_b32 s29, s3, 2')
    a('s_add_u32 s29, s28, s29')
    a('s_lshl_b32 s28, s29, 3')
    a('s_add_u32 s28, s28, s27')
    a('s_lshl_b32 s28, s28, 10')
    a(f's_add_u32 s28, s28, {L_XA}')
    a('v_mov_b32 v5, 0x3f803f80')
    for r in range(8): a(f'v_mov_b32 v{32+r}, 0')
    for k in range(4):
        a(f's_waitcnt vmcnt({6 - k})')
        a(f'buffer_store_dwordx4 v[{8+4*k}:{11+4*k}], v4, s[16:19], s28 offen{SC}')
        a('s_add_u32 s28, s28, 8192')
        for r in range(4):
            a(f'v_dot2c_f32_bf16 v{32+k}, v{8+4*k+r}, v5')
            a(f'v_dot2c_f32_bf16 v{36+k}, v{8+4*k+r}, v{8+4*k+r}')
    for b in (32, 36):
        a(f'v_permlane32_swap_b32 v{b}, v{b+1}')
        a(f'v_permlane32_swap_b32 v{b+2}, v{b+3}')
    for b in (32, 36):
        a(f'v_add_f32 v{b}, v{b}, v{b+1}')
        a(f'v_add_f32 v{b+2}, v{b+2}, v{b+3}')
    for b in (32, 36): a(f'v_permlane16_swap_b32 v{b}, v{b+2}')
    a('v_add_f32 v32, v32, v34')
    a('v_add_f32 v33, v36, v38')
    a('v_and_b32 v3, 1, v2')
    a('v_lshrrev_b32 v2, 1, v2')
    a('v_lshl_add_u32 v3, v3, 1, v2')
    a('v_lshlrev_b32 v3, 10, v3')
    a('v_lshl_add_u32 v3, v1, 3, v3')
    a('s_lshl_b32 s28, s29, 10')
    a('s_lshl_b32 s29, s27, 7')
    a('s_add_u32 s28, s28, s29')
    a(f's_add_u32 s28, s28, {L_SPA}')
    a(f'buffer_store_dwordx2 v[32:33], v3, s[16:19], s28 offen{SC}')
    a(f'{n}_exit:')
    a('s_endpgm')
    a(f'{n}_fl:')
    a('s_sub_u32 s24, s2, 224')
    a('s_lshl_b32 s24, s24, 14')
    a(f's_add_u32 s24, s24, {WS_PKF}')
    a('v_lshlrev_b32 v1, 5, v30')
    for r in range(4): a(f'v_mov_b32 v{4+r}, 0')
    a('s_waitcnt lgkmcnt(0)')
    a('s_mov_b32 s16, s4\ns_mov_b32 s17, s5')
    a(f'buffer_store_dwordx4 v[4:7], v1, s[16:19], s24 offen{SC}')
    a(f'buffer_store_dwordx4 v[4:7], v1, s[16:19], s24 offen offset:16{SC}')
    if 'nocodepf' not in OPT:
        a('s_cmp_lg_u32 s3, 0')
        a(f's_cbranch_scc1 {n}_exit')
        code_srd(a, 28, 'pre')
        code_touch(a, 28, 8, 9, 's24')
        a('s_waitcnt vmcnt(0)')
    a('s_endpgm')
    a(f'{n}_cs:')
    a('s_cmp_ge_u32 s2, 48')
    a('s_cselect_b32 s13, 1, 0')
    a('s_cselect_b32 s12, 48, 0')
    a('s_sub_u32 s12, s2, s12')
    a('s_lshl_b32 s14, s3, 13')
    a('v_lshlrev_b32 v4, 4, v0')
    a('s_waitcnt lgkmcnt(0)')
    a('s_mov_b32 s16, s4\ns_mov_b32 s17, s5')
    pack.decode(a, 20, 'qkv', 's12', 's13', 's3', ('s8', 's9'), 2)
    pack.issue(a, 20, 0, 1, 's14', 2)
    pack.finish(a, 20, 0, 4, 8, 's14', 's[16:19]', n, 2, st=SC, wait=lambda u: a('s_waitcnt vmcnt(4)'))
    if 'dbgt' in OPT: a('s_waitcnt vmcnt(0)')
    dbgt(a, 1)
    a('s_endpgm')

def build(path):
    a = Asm()
    a('.amdgcn_target "amdgcn-amd-amdhsa--gfx950"\n.text')
    pre_kernel(a)
    main_kernel(a)
    a.finalize()
    txt = a.text() + kd('pre_kernel', 64, 102 if 'dbgt' in OPT else 64) + kd('main_kernel', 224, 102 if dsl.PROF or 'dbgt' in OPT else 88)
    hdr = open('interleave_layers__softmax_full_mha__dense_activation_relu__prompt.s.ref').read().split('; Override launch')[0]
    hdr += '; Generated by my own generator scripts (gen/mega.py).\n'
    hdr += f'; @launch kernel=pre_kernel grid=({GRID_PRE},1,1) block=(512,1,1) lds=65536\n'
    hdr += '; @launch kernel=main_kernel grid=(256,1,1) block=(512,1,1) lds=163840\n'
    open(path, 'w').write(hdr + txt)

if __name__ == '__main__':
    if 'prof' in sys.argv[2:]: dsl.PROF = True
    if 'dbgq' in sys.argv[2:]: DBGQ = True
    OPT = set(sys.argv[2:])
    if 'sleep0' in OPT: SLEEP = 0
    build(sys.argv[1])
```

```python
import sys, struct
import dsl
from dsl import Asm, kd

MB_ = 1 << 20
LSTR  = 40 * MB_
L_QF, L_KVF, L_O, L_XA, L_XB, L_H, L_SPA, L_SPB = 0, 4*MB_, 12*MB_, 16*MB_, 20*MB_, 24*MB_, 38*MB_, 38*MB_ + 524288
WS_CSQ, WS_CS1 = 80*MB_, 80*MB_ + 262144
WS_FLG = 81*MB_
WS_PKF = WS_FLG - 4096
WS_PQ, WS_PO, WS_P1, WS_P2 = 82*MB_, 88*MB_, 90*MB_, 97*MB_
WS_EX = 104 * MB_
WS_USED = 120 * MB_
KA = dict(x=0, wqkv=8, wo=16, bx=24, w1=32, w2=40, out=48, dbg=56, ws=64)
QSCALE = (32 ** -0.5) * 1.4426950408889634
STAT = 163840 - 2048
SC = ' sc1'
MBK, NBK = (4, 8) if 'm48' in sys.argv else ((2, 16) if 'm216' in sys.argv else (8, 4))
TIMEOUT = 200000
SLEEP = 2
DBGQ = False
OPT = set()
RING = 4 * 32768

def f32bits(x): return struct.unpack('<I', struct.pack('<f', x))[0]
def log2(x):
    assert x & (x - 1) == 0
    return x.bit_length() - 1

def stamp(a, i):
    if not dsl.PROF: return
    a(f's_memrealtime s[{64+2*i}:{65+2*i}]')
    a('s_waitcnt lgkmcnt(0)')
_dbg_n = [0]
def dbgt(a, word, layered=False):
    if 'dbgt' not in OPT: return
    _dbg_n[0] += 1; t = f'dbgt{_dbg_n[0]}'
    a('s_add_u32 s97, s2, s3')
    a('s_cmp_lg_u32 s97, 0')
    a(f's_cbranch_scc1 {t}')
    a('s_memrealtime s[98:99]')
    if layered:
        a('s_cmp_eq_u32 s10, 0')
        a(f's_cselect_b32 s97, {word*4}, {(word+6)*4}')
    else: a(f's_mov_b32 s97, {word*4}')
    a('s_waitcnt lgkmcnt(0)')
    a('v_mov_b32 v3, s98')
    a('v_mov_b32 v13, 0')
    a('buffer_store_dword v3, v13, s[92:95], s97 offen')
    a(f'{t}:')
def dbgt_init(a, back):
    if 'dbgt' not in OPT: return
    a('s_load_dwordx2 s[92:93], s[0:1], 56')
    a('s_waitcnt lgkmcnt(0)')
    if not back:
        a('s_add_u32 s92, s92, 512')
        a('s_addc_u32 s93, s93, 0')
    a('s_mov_b32 s94, 64')
    a('s_mov_b32 s95, 0x20000')

def prof_flush(a, ph, role):
    if not dsl.PROF: return
    a('s_cmp_eq_u32 s10, 0')
    a(f's_cselect_b32 s97, {ph}, {ph + 5}')
    a('s_lshl_b32 s97, s97, 8')
    a('s_add_u32 s97, s97, s2')
    a('s_lshl_b32 s97, s97, 3')
    a('s_add_u32 s97, s97, s3')
    if role: a('s_add_u32 s97, s97, 4')
    a('s_lshl_b32 s97, s97, 5')
    a(f's_add_u32 s97, s97, {dsl.PROF_OFF}')
    a('s_mov_b32 s88, s4\ns_mov_b32 s89, s5\ns_mov_b32 s90, 0x10000000\ns_mov_b32 s91, 0x20000')
    a('v_mov_b32 v1, 0')
    for i in range(8):
        a(f'v_mov_b32 v3, s{64+2*i}')
        a(f'buffer_store_dword v3, v1, s[88:91], s97 offen offset:{4*i}')

FSTR = int(([x[4:] for x in sys.argv if x.startswith('fstr')] or [64])[0])
GSTR = max(16 * FSTR, 256)
PSTR = 16 * GSTR
RDY = STAT - 64
def code_srd(a, B, tag):
    a(f's_getpc_b64 s[{B}:{B+1}]')
    a(f'{tag}_pc:')
    a(f's_add_u32 s{B}, s{B}, main_kernel-{tag}_pc')
    a(f's_addc_u32 s{B+1}, s{B+1}, {0 if tag == "pre" else -1}')
    a(f's_mov_b32 s{B+2}, main_end-main_kernel')
    a(f's_mov_b32 s{B+3}, 0x20000')
def code_touch(a, B, va, vd, st):
    a(f'v_lshlrev_b32 v{va}, 7, v0')
    for i in range(5):
        a(f's_mov_b32 {st}, {i*8192}')
        a(f'buffer_load_dword v{vd}, v{va}, s[{B}:{B+3}], {st} offen')

def spin_global(a, tag, soff, shift, lanes=-1, n4=0):
    a(f's_mov_b32 s55, {TIMEOUT}')
    a(f'v_lshlrev_b32 v9, {shift}, v0')
    if lanes != -1: a(f's_mov_b64 exec, {lanes}')
    a(f'{tag}_poll:')
    if n4:
        for i in range(n4): a(f'buffer_load_dwordx4 v[{12+4*i}:{15+4*i}], v9, s[16:19], {soff} offen offset:{i*1024}{SC}')
        a('s_waitcnt vmcnt(0)')
        a('v_and_b32 v10, v12, v13')
        for r in range(14, 12 + 4 * n4): a(f'v_and_b32 v10, v10, v{r}')
    else:
        a(f'buffer_load_dword v10, v9, s[16:19], {soff} offen{SC}')
        a('s_waitcnt vmcnt(0)')
    a('v_cmp_eq_u32 vcc, 0, v10')
    a(f's_cbranch_vccz {tag}_ok')
    a(f's_sleep {SLEEP}')
    a('s_sub_u32 s55, s55, 1')
    a('s_cmp_lg_u32 s55, 0')
    a(f's_cbranch_scc1 {tag}_poll')
    a(f'{tag}_ok:')
    if lanes != -1: a('s_mov_b64 exec, -1')

def handoff(a, tag, ph, pgroup, pidx, cgroup, mid=None):
    a('s_barrier')
    a('s_add_u32 s58, s58, 1')
    a(f'v_mov_b32 v11, {RDY}')
    a('s_cmp_lg_u32 s3, 0')
    a(f's_cbranch_scc1 {tag}_nf')
    a(f's_mul_i32 s54, {pgroup}, {GSTR}')
    a(f's_mul_i32 s55, {pidx}, {FSTR}')
    a('s_add_u32 s54, s54, s55')
    a('s_add_u32 s54, s54, s11')
    a(f's_add_u32 s54, s54, {ph*PSTR & 0xffffffff}')
    a('v_mov_b32 v9, 0')
    a('v_mov_b32 v10, 1')
    a('s_mov_b64 exec, 1')
    a(f'buffer_store_dword v10, v9, s[16:19], s54 offen{SC}')
    a('s_mov_b64 exec, -1')
    a(f'{tag}_nf:')
    if mid: mid()
    a('s_cmp_lg_u32 s3, 0')
    a(f's_cbranch_scc1 {tag}_wait')
    a(f's_mul_i32 s54, {cgroup}, {GSTR}')
    a('s_add_u32 s54, s54, s11')
    a(f's_add_u32 s54, s54, {ph*PSTR & 0xffffffff}')
    spin_global(a, tag, 's54', log2(FSTR), lanes=0xffff)
    a('v_mov_b32 v10, s58')
    a('ds_write_b32 v11, v10')
    a(f's_branch {tag}_go')
    a(f'{tag}_wait:')
    if 'nocodepf' not in OPT:
        a('s_add_u32 s55, s10, s3')
        a('s_cmp_lg_u32 s55, 1')
        a(f's_cbranch_scc1 {tag}_np')
        code_touch(a, 80, 12, 13, 's55')
        a(f'{tag}_np:')
    a(f's_mov_b32 s55, {TIMEOUT * 16}')
    a(f'{tag}_w2:')
    a('ds_read_b32 v10, v11')
    a('s_waitcnt lgkmcnt(0)')
    a('v_cmp_ne_u32 vcc, s58, v10')
    a(f's_cbranch_vccz {tag}_go')
    a('s_sleep 1')
    a('s_sub_u32 s55, s55, 1')
    a('s_cmp_lg_u32 s55, 0')
    a(f's_cbranch_scc1 {tag}_w2')
    a(f'{tag}_go:')

def signal(a, ph, group, idx):
    stamp(a, 3)
    a('s_waitcnt vmcnt(0)')
    stamp(a, 4)
    a('s_barrier')

class Cfg:
    def __init__(s, name, kind, ph, K, woff, R, lead, xoff, ooff, roff=0, spoff=0):
        s.name, s.kind, s.ph, s.K, s.woff, s.R, s.lead = name, kind, ph, K, woff, R, lead
        s.xoff, s.ooff, s.roff, s.spoff = xoff, ooff, roff, spoff
        s.npanel = 1 if kind == 'res' else 3
        s.half = kind == 'w1'
        s.NF = 4 * s.npanel + (2 if s.half else 0)
        s.UB = 8192 + s.NF * 1024
        s.U = K // 32
        s.T = s.U // 2
        s.nw = s.npanel + (1 if s.half else 0)
        s.nload = 2 + s.nw
        assert lead <= R - 2 and lead % 2 == 0 and s.UB * R <= STAT - 64 and s.nload * R <= 63

C_QKV = Cfg('qkv', 'qkv', 0, 1024, WS_PQ, 7, 4, L_XA, 0, spoff=L_SPA)
C_WO  = Cfg('wo',  'res', 2, 1024, WS_PO, 12, 6, L_O, L_XB, roff=L_XA, spoff=L_SPB)
C_W1  = Cfg('w1',  'w1',  3, 1024, WS_P1, 7, 4, L_XB, L_H, spoff=L_SPB)
C_W2  = Cfg('w2',  'res', 4, 3584, WS_P2, 12, 6, L_H, L_XA + LSTR, roff=L_XB, spoff=L_SPA + LSTR)

def stats_issue(a, c):
    FR = 16
    a('v_and_b32 v1, 15, v0')
    a('v_lshrrev_b32 v2, 4, v0')
    a('v_lshlrev_b32 v3, 4, v1')
    a('v_lshl_add_u32 v3, v2, 10, v3')
    a('s_lshl_b32 s36, s26, 15')
    a('s_lshl_b32 s37, s3, 8')
    a('s_add_u32 s36, s36, s37')
    a('s_add_u32 s36, s36, s10')
    a(f's_add_u32 s36, s36, {c.spoff}')
    for i in range(8):
        if i: a('s_add_u32 s36, s36, 4096')
        a(f'buffer_load_dwordx4 v[{FR+4*i}:{FR+4*i+3}], v3, s[16:19], s36 offen{SC}')
    csoff, csld = (WS_CSQ, 3072 * 4) if c.kind == 'qkv' else (WS_CS1, 3584 * 4)
    if c.kind == 'qkv':
        a('s_min_u32 s37, s3, 2')
        a('s_lshl_b32 s37, s37, 12')
        a('s_lshl_b32 s38, s27, 8')
    else:
        a('s_lshl_b32 s37, s3, 8')
        a('s_mul_i32 s38, s27, 896')
    a('s_add_u32 s37, s37, s38')
    a(f's_add_u32 s37, s37, {csoff}')
    a('v_lshlrev_b32 v13, 2, v0')
    ncs = 16 if c.kind == 'qkv' else 8
    for i in range(ncs):
        a(f'buffer_load_dword v{FR+32+i}, v13, s[16:19], s37 offen{SC}')
        if i < ncs - 1: a(f's_add_u32 s37, s37, {csld}')
    return 8 + ncs

def stats_finish(a, c):
    FR = 16; S = STAT; CSR = FR + 32
    ncs = 16 if c.kind == 'qkv' else 8
    a('s_lshl_b32 s38, s3, 8')
    a(f's_add_u32 s38, s38, {S + 1024}')
    a('v_add_u32 v13, s38, v13')
    a('s_waitcnt vmcnt(0)')
    for i in range(1, ncs // 2): a(f'v_pk_add_f32 v[{CSR}:{CSR+1}], v[{CSR}:{CSR+1}], v[{CSR+2*i}:{CSR+1+2*i}]')
    a(f'v_add_f32 v{CSR}, v{CSR}, v{CSR+1}')
    a(f'ds_write_b32 v13, v{CSR}')
    for i in range(1, 8):
        for h in range(2):
            a(f'v_pk_add_f32 v[{FR+2*h}:{FR+2*h+1}], v[{FR+2*h}:{FR+2*h+1}], v[{FR+4*i+2*h}:{FR+4*i+2*h+1}]')
    for sw in ('v_permlane32_swap_b32', 'v_permlane16_swap_b32'):
        for r in range(4): a(f'v_mov_b32 v{FR+4+r}, v{FR+r}')
        for r in range(4): a(f'{sw} v{FR+r}, v{FR+4+r}')
        for r in range(4): a(f'v_add_f32 v{FR+r}, v{FR+r}, v{FR+4+r}')
    a(f's_mov_b32 s36, {f32bits(1.0/1024)}')
    a(f's_mov_b32 s37, {f32bits(1e-5)}')
    for r in range(4): a(f'v_mul_f32 v{FR+r}, s36, v{FR+r}')
    for q in (0, 2): a(f'v_fma_f32 v{FR+q+1}, -v{FR+q}, v{FR+q}, v{FR+q+1}')
    for q in (0, 2): a(f'v_max_f32 v{FR+q+1}, 0, v{FR+q+1}')
    for q in (0, 2): a(f'v_add_f32 v{FR+q+1}, s37, v{FR+q+1}')
    a(f'v_rsq_f32 v{FR+6}, v{FR+1}')
    a(f'v_rsq_f32 v{FR+7}, v{FR+3}')
    a(f'v_sub_f32 v{FR+4}, 0, v{FR}')
    a(f'v_sub_f32 v{FR+5}, 0, v{FR+2}')
    a('s_lshl_b32 s36, s3, 7')
    a(f's_add_u32 s36, s36, {S}')
    a('v_lshlrev_b32 v3, 3, v1')
    a('v_add_u32 v3, s36, v3')
    a(f'ds_write_b64 v3, v[{FR+4}:{FR+5}]')
    a(f'ds_write_b64 v3, v[{FR+6}:{FR+7}] offset:512')
    a('s_waitcnt lgkmcnt(0)')

def gemm_loader(a, c):
    n = c.name; R, U, T, lead, npw = c.R, c.U, c.T, c.lead, c.npanel
    stamp(a, 0)
    a('v_lshlrev_b32 v8, 4, v0')
    a('s_lshl_b32 s44, s3, 11')
    a(f's_mul_i32 s40, s26, {U * 8192}')
    a('s_add_u32 s40, s40, s10')
    a(f's_add_u32 s40, s40, {c.xoff}')
    a('s_add_u32 s40, s40, s44')
    a(f's_mul_i32 s45, s3, {npw * 1024}')
    a(f's_mul_i32 s41, s27, {U * c.NF * 1024}')
    a(f's_add_u32 s41, s41, {c.woff}')
    if c.half:
        a('s_lshl_b32 s46, s3, 9')
        a(f's_add_u32 s46, s46, {12 * 1024}')
        a('s_add_u32 s42, s41, s46')
        a('s_add_u32 s46, s46, 8192')
    a('s_add_u32 s41, s41, s45')
    a('s_add_u32 s45, s45, 8192')
    def issue_w(slot, first=False):
        if not first:
            a(f's_add_u32 m0, {slot}, s45')
            a('s_nop 0')
        for p in range(npw): a(f'buffer_load_dwordx4 v8, s[16:19], s41 offen offset:{p*1024}{SC} lds')
        if c.half:
            a(f's_add_u32 m0, {slot}, s46')
            a('s_mov_b32 exec_hi, 0')
            a(f'buffer_load_dwordx4 v8, s[16:19], s42 offen{SC} lds')
            a('s_mov_b32 exec_hi, -1')
            a(f's_add_u32 s42, s42, {c.NF*1024}')
        a(f's_add_u32 s41, s41, {c.NF*1024}')
    def issue_x(slot):
        a(f's_add_u32 m0, {slot}, s44')
        a('s_nop 0')
        a(f'buffer_load_dwordx4 v8, s[16:19], s40 offen{SC} lds')
        a(f'buffer_load_dwordx4 v8, s[16:19], s40 offen offset:1024{SC} lds')
        a('s_add_u32 s40, s40, 8192')
    def issue(first=False):
        issue_w('s43', first); issue_x('s43')
        a(f's_add_u32 s43, s43, {c.UB}')
        a(f's_cmp_eq_u32 s43, {c.UB*R}')
        a('s_cselect_b32 s43, 0, s43')
    if c is C_WO:
        a('s_cmp_lg_u32 s10, 0')
        a(f's_cbranch_scc1 {n}_pk_ok')
        a(f's_mov_b32 s47, {WS_PKF}')
        spin_global(a, n + '_pk', 's47', 4, n4=4)
    def wpre():
        for u in range(lead): issue_w(u * c.UB)
        stamp(a, 1)
    if 'earlyw' not in OPT:
        if c is C_QKV:
            a('s_cmp_eq_u32 s10, 0')
            a(f's_cbranch_scc1 {n}_nf')
        def mid():
            wpre()
            if c is C_QKV:
                a('s_cmp_eq_u32 s10, 0')
                a(f's_cbranch_scc1 {n}_go')
        handoff(a, n, c.ph - 1, 's26', 's27', 's26', mid=mid)
    else:
        wpre()
        if c is C_QKV:
            a('s_cmp_eq_u32 s10, 0')
            a(f's_cbranch_scc1 {n}_go')
        handoff(a, n, c.ph - 1, 's26', 's27', 's26')
    stamp(a, 2)
    for u in range(lead): issue_x(u * c.UB)
    a(f's_mov_b32 s43, {lead * c.UB}')
    nl = c.nload
    q = [u for u in range(lead) for _ in range(2)]
    def wait_units(last, extra=0):
        k = max([i for i, t in enumerate(q) if t <= last], default=-1)
        a(f's_waitcnt vmcnt({len(q) - 1 - k + extra})')
        del q[:k + 1]
    wait_units(1)
    a('s_barrier')
    stamp(a, 3)
    issued = lead; t = 0
    while 2 * t + 4 < lead + 0:
        for _ in range(2): issue(); q += [issued] * nl; issued += 1
        wait_units(2 * t + 3); a('s_barrier'); t += 1
    nfull = (U - issued) // 2
    a(f's_mov_b32 s50, {nfull}')
    a('s_add_u32 m0, s43, s45')
    a(f's_branch {n}_lbody')
    a(f'{n}_lhead:')
    a(f's_waitcnt vmcnt({(lead-2)*nl})')
    a('s_barrier')
    a(f'{n}_lbody:')
    issue(first=True); issue()
    a('s_add_u32 m0, s43, s45')
    a('s_sub_u32 s50, s50, 1')
    a('s_cmp_lg_u32 s50, 0')
    a(f's_cbranch_scc1 {n}_lhead')
    issued += 2 * nfull; t += nfull - 1
    assert issued == U
    extra = stats_issue(a, c) if c.kind != 'res' else 0
    while t < T:
        if t == T - 1 and c.kind != 'res': stats_finish(a, c)
        else: a(f's_waitcnt vmcnt({max(0, issued - (2*t+4))*nl + extra})')
        a('s_barrier'); t += 1
    stamp(a, 4)
    prof_flush(a, c.ph, 0)

def mfma(d, x, y): return f'v_mfma_f32_16x16x32_bf16 v[{d}:{d+3}], v[{x}:{x+3}], v[{y}:{y+3}], v[{d}:{d+3}]'
def wrapmask(nsteps, period):
    m = 0
    for i in range(nsteps):
        if (i + 1) % period == 0: m |= 1 << i
    return m

def res_epilogue(a, c, acc, FR):
    n = c.name
    for m in range(4):
        d = FR + 4 * m
        for e in range(2):
            s_ = acc(m, e)
            a(f'v_cvt_pk_bf16_f32 v{d+2*e}, v{s_}, v{s_+1}')
            a(f'v_cvt_pk_bf16_f32 v{d+2*e+1}, v{s_+2}, v{s_+3}')
    if c is C_W2:
        a('s_cmp_lg_u32 s10, 0')
        a(f's_cbranch_scc1 {n}_final')
    a(f's_add_u32 s36, s36, {c.ooff}')
    for m in range(4):
        a(f'buffer_store_dwordx4 v[{FR+4*m}:{FR+4*m+3}], v8, s[16:19], s36 offen offset:{m*1024}{SC}')
    SQ = FR + 16
    a('v_mov_b32 v3, 0x3f803f80')
    for r in range(8): a(f'v_mov_b32 v{SQ+r}, 0')
    for r in range(4):
        for m in range(4):
            a(f'v_dot2c_f32_bf16 v{SQ+m}, v{FR+4*m+r}, v3')
            a(f'v_dot2c_f32_bf16 v{SQ+4+m}, v{FR+4*m+r}, v{FR+4*m+r}')
    for b in (0, 4):
        a(f'v_permlane32_swap_b32 v{SQ+b}, v{SQ+b+1}')
        a(f'v_permlane32_swap_b32 v{SQ+b+2}, v{SQ+b+3}')
    for b in (0, 4):
        a(f'v_add_f32 v{SQ+b}, v{SQ+b}, v{SQ+b+1}')
        a(f'v_add_f32 v{SQ+b+2}, v{SQ+b+2}, v{SQ+b+3}')
    for b in (0, 4): a(f'v_permlane16_swap_b32 v{SQ+b}, v{SQ+b+2}')
    a(f'v_add_f32 v{SQ}, v{SQ}, v{SQ+2}')
    a(f'v_add_f32 v{SQ+1}, v{SQ+4}, v{SQ+6}')
    a('v_and_b32 v13, 1, v2')
    a('v_lshrrev_b32 v14, 1, v2')
    a('v_lshl_add_u32 v13, v13, 1, v14')
    a('v_lshl_add_u32 v13, v13, 4, v1')
    a('v_lshlrev_b32 v13, 3, v13')
    a('s_lshl_b32 s37, s26, 5')
    a('s_lshl_b32 s38, s27, 1')
    a('s_add_u32 s37, s37, s38')
    a('s_add_u32 s37, s37, s33')
    a('s_lshl_b32 s37, s37, 10')
    a('s_lshl_b32 s38, s32, 9')
    a('s_add_u32 s37, s37, s38')
    a('s_add_u32 s37, s37, s10')
    a(f's_add_u32 s37, s37, {c.spoff}')
    a(f'buffer_store_dwordx2 v[{SQ}:{SQ+1}], v13, s[16:19], s37 offen{SC}')
    signal(a, c.ph, 's26', 's27')
    prof_flush(a, c.ph, 1)
    if c is C_W2:
        c.final = lambda: final_store(a, c, FR)

def gemm_consumer(a, c):
    n = c.name; R, U, T = c.R, c.U, c.T
    res = c.kind == 'res'
    NW = {'qkv': 6, 'w1': 8, 'res': 2}[c.kind]
    tiles = [(m, t) for t in range(min(NW, 6)) for m in range(4)]
    if c.kind == 'w1': tiles += [(m, t) for t in (6, 7) for m in range(2)]
    nsub = 2 if res else 1
    VX, VW = 4, 6
    FR = 16
    fset = nsub * (4 + NW) * 4
    ACC = FR + 2 * fset
    accmap = {mt: ACC + 4 * i for i, mt in enumerate(sorted(tiles))}
    c.vgpr = ACC + 4 * len(tiles)
    acc = lambda m, t: accmap[(m, t)]
    xf = lambda st, si, m: FR + st * fset + (si * (4 + NW) + m) * 4
    wf = lambda st, si, t: FR + st * fset + (si * (4 + NW) + 4 + t) * 4
    S = STAT
    stamp(a, 0)
    a('v_lshlrev_b32 v8, 4, v0')
    a('v_and_b32 v1, 15, v0')
    a('v_lshrrev_b32 v2, 4, v0')
    a('s_lshl_b32 s34, s32, 12')
    if c.kind == 'w1':
        a('s_lshl_b32 s35, s33, 11')
        a('s_add_u32 s34, s34, s35')
        a(f'v_add_u32 v{VX}, s34, v8')
        a(f'v_xor_b32 v{VX+1}, 2048, v{VX}')
        xsrc = lambda m: (VX + (m >> 1), (m & 1) * 1024)
        addr_regs = [VX, VX + 1, VW, VW + 1]
    else:
        a(f'v_add_u32 v{VX}, s34, v8')
        xsrc = lambda m: (VX, m * 1024)
        addr_regs = [VX, VW]
    a('s_lshl_b32 s34, s33, 11')
    a('s_add_u32 s34, s34, 8192')
    a(f'v_add_u32 v{VW}, s34, v8')
    if c.half: a(f'v_add_u32 v{VW+1}, {8192 + 12*1024}, v8')
    wsrc = lambda t: (VW, (t >> 1) * 4096 + (t & 1) * 1024) if t < 6 else (VW + 1, (t & 1) * 1024)
    if res:
        a('s_lshl_b32 s36, s26, 5')
        a('s_lshl_b32 s37, s27, 1')
        a('s_add_u32 s36, s36, s37')
        a('s_add_u32 s36, s36, s33')
        a('s_lshl_b32 s36, s36, 13')
        a('s_lshl_b32 s37, s32, 12')
        a('s_add_u32 s36, s36, s37')
        a('s_add_u32 s36, s36, s10')
        a(f's_add_u32 s37, s36, {c.roff}')
        for m in range(4):
            a(f'buffer_load_dwordx4 v[{FR+4*m}:{FR+4*m+3}], v8, s[16:19], s37 offen offset:{m*1024}{SC}')
        for m in range(4):
            a(f's_waitcnt vmcnt({3-m})')
            for e in range(2):
                d = acc(m, e); r = FR + 4 * m + 2 * e
                a(f'v_lshlrev_b32 v{d}, 16, v{r}')
                a(f'v_and_b32 v{d+1}, 0xffff0000, v{r}')
                a(f'v_lshlrev_b32 v{d+2}, 16, v{r+1}')
                a(f'v_and_b32 v{d+3}, 0xffff0000, v{r+1}')
    else:
        for r in range(ACC, c.vgpr): a(f'v_mov_b32 v{r}, 0')
    def reads(st):
        out = []
        for si in range(nsub):
            ub = si * c.UB
            for m in range(4):
                reg, off = xsrc(m)
                out.append(f'ds_read_b128 v[{xf(st,si,m)}:{xf(st,si,m)+3}], v{reg} offset:{ub + off}')
            for t in range(NW):
                reg, off = wsrc(t); d = wf(st, si, t)
                out.append(f'ds_read_b128 v[{d}:{d+3}], v{reg} offset:{ub + off}')
        return out
    def mfmas(st):
        out = []
        for si in range(nsub):
            for m, t in tiles:
                if c.kind == 'qkv' and t >= 4: out.append(mfma(acc(m, t), xf(st, si, m), wf(st, si, t)))
                else: out.append(mfma(acc(m, t), wf(st, si, t), xf(st, si, m)))
        return out
    step = c.UB * nsub; period = R // nsub; nsteps = U // nsub
    mask = wrapmask(nsteps + 1, period)
    a(f's_mov_b32 s44, {mask & 0xffffffff}')
    a(f's_mov_b32 s45, {mask >> 32}')
    a(f's_mov_b32 s43, {-(period-1)*step & 0xffffffff}')
    a('s_mov_b32 s41, 0')
    pre = ['s_bitcmp1_b64 s[44:45], s41', f's_cselect_b32 s42, s43, {step}', 's_add_u32 s41, s41, 1']
    adv = [f'v_add_u32 v{r}, s42, v{r}' for r in addr_regs]
    def weave(ms, fill, at=None):
        for i, m in enumerate(ms):
            for x in (at or {}).get(i, []): a(x)
            a(m)
            for x in (fill[i] if i < len(fill) else []): a(x)
    def spread(items, ngaps):
        out = [[] for _ in range(ngaps)]
        extra = max(0, len(items) - ngaps); k = 0
        for i in range(ngaps):
            cnt = 2 if i < extra else 1
            out[i] = items[k:k + cnt]; k += cnt
        assert k >= len(items)
        return out
    a('s_barrier')
    stamp(a, 1)
    for x in pre: a(x)
    for r in reads(0): a(r)
    for x in adv: a(x)
    nm = len(tiles) * nsub
    if not res:
        a('s_waitcnt lgkmcnt(0)')
        a(f'.p2align 6\n{n}_cloop:')
        weave(mfmas(0), spread(reads(1) + pre + adv, nm - 3), at={nm - 1: ['s_waitcnt lgkmcnt(0)', 's_barrier']})
        f = spread(reads(0) + pre + adv, nm - 4)
        f += [[f's_cmp_lt_u32 s41, {nsteps + 1}'], [], ['s_waitcnt lgkmcnt(0)'], [f's_cbranch_scc1 {n}_cloop']]
        weave(mfmas(1), f)
    else:
        a(f'.p2align 6\n{n}_cloop:')
        a('s_waitcnt lgkmcnt(0)')
        a('s_barrier')
        weave(mfmas(0), spread(reads(1) + pre + adv, nm))
        a('s_waitcnt lgkmcnt(0)')
        a(f's_cmp_lt_u32 s41, {nsteps}')
        a('s_barrier')
        a(f's_cbranch_scc0 {n}_clast')
        weave(mfmas(1), spread(reads(0) + pre + adv, nm))
        a(f's_branch {n}_cloop')
        a(f'{n}_clast:')
        weave(mfmas(1), [])
    stamp(a, 2)
    if res:
        res_epilogue(a, c, acc, FR)
        return
    a('s_lshl_b32 s34, s32, 8')
    a(f's_add_u32 s34, s34, {S}')
    a('v_lshlrev_b32 v3, 2, v1')
    if c.kind == 'w1':
        a('s_lshl_b32 s35, s33, 7')
        a('s_add_u32 s35, s35, s34')
        a('v_add_u32 v3, s35, v3')
        a('v_xor_b32 v14, 128, v3')
        msrc = lambda m: (3 if m < 2 else 14, (m & 1) * 64)
    else:
        a('v_add_u32 v3, s34, v3')
        msrc = lambda m: (3, m * 64)
    for m in range(4):
        r, o = msrc(m)
        a(f'ds_read_b32 v{FR+2*m}, v{r} offset:{o}')
        a(f'ds_read_b32 v{FR+2*m+1}, v{r} offset:{512 + o}')
    CS = FR + 8
    a('v_lshlrev_b32 v13, 4, v2')
    a(f'v_add_u32 v13, {S + 1024}, v13')
    a('s_lshl_b32 s35, s33, 7')
    a('v_add_u32 v15, s35, v13')
    def fold(d, cs, st, tmp):
        for h in range(2):
            a(f'v_pk_fma_f32 v[{d+2*h}:{d+2*h+1}], v[{cs+2*h}:{cs+2*h+1}], v[{st}:{st+1}], v[{d+2*h}:{d+2*h+1}] op_sel:[0,0,0] op_sel_hi:[1,0,1]')
        for h in range(2):
            a(f'v_pk_mul_f32 v[{d+2*h}:{d+2*h+1}], v[{d+2*h}:{d+2*h+1}], v[{st}:{st+1}] op_sel:[0,1] op_sel_hi:[1,1]')
        a(f'v_cvt_pk_bf16_f32 v{tmp}, v{d}, v{d+1}')
        a(f'v_cvt_pk_bf16_f32 v{tmp+1}, v{d+2}, v{d+3}')
    if c.kind == 'w1':
        for t in range(6): a(f'ds_read_b128 v[{CS+4*t}:{CS+4*t+3}], v15 offset:{(t>>1)*256 + (t&1)*64}')
        for t in (6, 7): a(f'ds_read_b128 v[{CS+4*t}:{CS+4*t+3}], v13 offset:{768 + (t&1)*64}')
        a('s_mul_i32 s36, s26, 112')
        a('s_mul_i32 s37, s27, 7')
        a('s_add_u32 s36, s36, s37')
        a('s_add_u32 s37, s36, s33')
        a('s_add_u32 s38, s36, 6')
        a('s_lshl_b32 s37, s37, 13')
        a('s_lshl_b32 s38, s38, 13')
        a('s_lshl_b32 s36, s32, 12')
        a('s_add_u32 s36, s36, s10')
        a(f's_add_u32 s36, s36, {c.ooff}')
        a('s_add_u32 s37, s37, s36')
        a('s_add_u32 s38, s38, s36')
        a('s_lshl_b32 s35, s33, 11')
        a('v_add_u32 v3, s35, v8')
        a('v_xor_b32 v14, 2048, v3')
        a('s_waitcnt lgkmcnt(0)')
        TM = CS + 32
        k = 0
        for p in range(4):
            for m in range(4 if p < 3 else 2):
                d = TM + 4 * (k % 4); k += 1
                for e in range(2): fold(acc(m, 2 * p + e), CS + 4 * (2 * p + e), FR + 2 * m, d + 2 * e)
                for r in range(4): a(f'v_pk_max_i16 v{d+r}, v{d+r}, 0')
                a(f'buffer_store_dwordx4 v[{d}:{d+3}], v{3 if m < 2 else 14}, s[16:19], {"s37" if p < 3 else "s38"} offen offset:{(m&1)*1024}{SC}')
            if p < 2: a(f's_add_u32 s37, s37, {2*8192}')
        signal(a, c.ph, 's26', 's27')
        prof_flush(a, c.ph, 1)
        return
    for t in range(4): a(f'ds_read_b128 v[{CS+4*t}:{CS+4*t+3}], v15 offset:{(t>>1)*256 + (t&1)*64}')
    a('v_lshlrev_b32 v14, 2, v1')
    a('v_add_u32 v14, s35, v14')
    a(f'v_add_u32 v14, {S + 1024 + 512}, v14')
    CV = CS + 16
    a(f'ds_read_b32 v{CV}, v14')
    a(f'ds_read_b32 v{CV+1}, v14 offset:64')
    a('v_lshlrev_b32 v14, 4, v2')
    a('v_add_u32 v14, s34, v14')
    MV = CV + 4
    a('s_waitcnt lgkmcnt(6)')
    for m in range(4):
        a(f'ds_read_b128 v[{MV+8*m}:{MV+8*m+3}], v14 offset:{m*64}')
        a(f'ds_read_b128 v[{MV+8*m+4}:{MV+8*m+7}], v14 offset:{512 + m*64}')
    TM = MV + 32
    assert TM + 16 <= ACC
    a('v_lshlrev_b32 v3, 4, v1')
    a('v_lshl_add_u32 v3, v2, 9, v3')
    a('v_and_b32 v13, 8, v1')
    a('v_lshl_add_u32 v15, v13, 4, v3')
    a('s_lshl_b32 s34, s27, 1')
    a('s_add_u32 s34, s34, s33')
    a('s_lshl_b32 s35, s26, 2')
    a('s_lshl_b32 s36, s32, 1')
    a('s_add_u32 s35, s35, s36')
    a('s_lshl_b32 s36, s34, 17')
    a('s_lshl_b32 s37, s35, 11')
    a('s_add_u32 s36, s36, s37')
    a('s_lshl_b32 s37, s36, 1')
    a('s_add_u32 s37, s37, s10')
    a(f's_add_u32 s37, s37, {L_KVF}')
    a('s_add_u32 s38, s37, 4096')
    a('s_add_u32 s36, s36, s10')
    a('s_lshl_b32 s34, s33, 14')
    a('s_lshl_b32 s35, s32, 13')
    a('s_add_u32 s34, s34, s35')
    a('v_add_u32 v9, s34, v15')
    a('v_add_u32 v10, s34, v3')
    a('s_lshl_b32 s35, s3, 12')
    a(f's_add_u32 s35, s35, {RING}')
    a('v_add_u32 v11, s35, v3')
    a(f's_mov_b32 s39, {f32bits(QSCALE)}')
    a('s_waitcnt lgkmcnt(0)')
    k = 0
    for m in range(4):
        d = TM + 4 * (k % 4); k += 1
        for e in range(2): fold(acc(m, 2 + e), CS + 4 * (2 + e), FR + 2 * m, d + 2 * e)
        a(f'buffer_store_dwordx4 v[{d}:{d+3}], v15, s[16:19], {"s37" if m < 2 else "s38"} offen offset:{(m&1)*128}{SC}')
        a(f'ds_write_b128 v9, v[{d}:{d+3}] offset:{(m>>1)*4096 + (m&1)*128}')
    for tp in range(2):
        for e in range(2):
            d = TM + 4 * (k % 4); k += 1
            for mm in range(2):
                m = 2 * tp + mm; s_ = acc(m, 4 + e)
                for h in range(2):
                    a(f'v_pk_fma_f32 v[{s_+2*h}:{s_+2*h+1}], v[{MV+8*m+2*h}:{MV+8*m+2*h+1}], v[{CV}:{CV+1}], v[{s_+2*h}:{s_+2*h+1}] op_sel:[0,{e},0] op_sel_hi:[1,{e},1]')
                for h in range(2):
                    a(f'v_pk_mul_f32 v[{s_+2*h}:{s_+2*h+1}], v[{s_+2*h}:{s_+2*h+1}], v[{MV+8*m+4+2*h}:{MV+8*m+5+2*h}]')
                a(f'v_cvt_pk_bf16_f32 v{d+2*mm}, v{s_}, v{s_+1}')
                a(f'v_cvt_pk_bf16_f32 v{d+2*mm+1}, v{s_+2}, v{s_+3}')
            a(f'buffer_store_dwordx4 v[{d}:{d+3}], v3, s[16:19], {"s37" if tp == 0 else "s38"} offen offset:{2048 + e*256}{SC}')
            a(f'ds_write_b128 v10, v[{d}:{d+3}] offset:{tp*4096 + 2048 + e*256}')
    for m in range(4): a(f'v_mul_f32 v{FR+2*m+1}, s39, v{FR+2*m+1}')
    for m in range(4):
        d = TM + 4 * (k % 4); k += 1
        for e in range(2): fold(acc(m, e), CS + 4 * e, FR + 2 * m, d + 2 * e)
        a(f'ds_write_b128 v11, v[{d}:{d+3}] offset:{(m>>1)*2048 + (m&1)*256}')
        if DBGQ: a(f'buffer_store_dwordx4 v[{d}:{d+3}], v3, s[16:19], s36 offen offset:{(m>>1)*2048 + (m&1)*256}{SC}')
    stamp(a, 3); stamp(a, 4)
    prof_flush(a, c.ph, 1)

def final_store(a, c, FR):
    a(f'{c.name}_final:')
    a('s_mov_b32 s20, s8')
    a('s_mov_b32 s21, s9')
    a(f's_mov_b32 s22, {2048*2048}')
    a('s_mov_b32 s23, 0x20000')
    a('v_and_b32 v3, 1, v2')
    a('v_lshlrev_b32 v3, 5, v3')
    a('v_lshrrev_b32 v13, 1, v2')
    a('v_lshl_add_u32 v3, v13, 4, v3')
    a('v_lshl_add_u32 v3, v1, 11, v3')
    a('s_lshl_b32 s36, s26, 18')
    a('s_lshl_b32 s37, s32, 17')
    a('s_add_u32 s36, s36, s37')
    a('s_lshl_b32 s37, s27, 7')
    a('s_add_u32 s36, s36, s37')
    a('s_lshl_b32 s37, s33, 6')
    a('s_add_u32 s36, s36, s37')
    for m in range(4):
        d = FR + 4 * m
        a(f'v_permlane16_swap_b32 v{d}, v{d+2}')
        a(f'v_permlane16_swap_b32 v{d+1}, v{d+3}')
        if m: a('s_add_u32 s36, s36, 32768')
        a(f'buffer_store_dwordx4 v[{d}:{d+3}], v3, s[20:23], s36 offen{SC}')
    stamp(a, 3)
    if dsl.PROF: a('s_waitcnt vmcnt(0)')
    stamp(a, 4)
    prof_flush(a, c.ph, 1)
    if 'dbgt' in OPT: a('s_waitcnt vmcnt(0)')
    dbgt(a, 13)
    a('s_endpgm')


N1 = int(([x[2:] for x in sys.argv if x.startswith('n1')] or [44])[0]); N2 = 112 - 2 * N1
UB2, R2, LEAD2 = 16384, 8, 6
EV_DRAIN, EV_LOAD = [int(x) for x in ([x[2:] for x in sys.argv if x.startswith('ev')] or ['24'])[0]]
def w2_loader(a):
    c = C_W2; n = 'w2'; lead = LEAD2; T1 = N1 // 2; T = (N1 + N2) // 2; U = N1 + N2
    stamp(a, 0)
    a('v_lshlrev_b32 v8, 4, v0')
    a('s_lshl_b32 s44, s3, 11')
    a('s_and_b32 s48, s27, 1')
    a(f's_mul_i32 s48, s48, {N1}')
    a(f's_mul_i32 s40, s26, 112')
    a('s_add_u32 s40, s40, s48')
    a('s_lshl_b32 s40, s40, 13')
    a('s_add_u32 s40, s40, s10')
    a(f's_add_u32 s40, s40, {c.xoff}')
    a('s_add_u32 s40, s40, s44')
    a('s_lshl_b32 s45, s3, 10')
    for r, x in (('s41', 0), ('s42', 1)):
        a(f's_xor_b32 {r}, s27, {x}')
        a(f's_mul_i32 {r}, {r}, 112')
        a(f's_add_u32 {r}, {r}, s48')
        a(f's_lshl_b32 {r}, {r}, 12')
        a(f's_add_u32 {r}, {r}, {c.woff - x*4096 + 0}')
        a(f's_add_u32 {r}, {r}, s45')
    a('s_add_u32 s42, s42, 4096')
    a('s_add_u32 s45, s45, 8192')
    a(f's_sub_u32 s48, {N1}, s48')
    def issue_w(slot, wide):
        a(f's_add_u32 m0, {slot}, s45')
        a('s_nop 0')
        a(f'buffer_load_dwordx4 v8, s[16:19], s41 offen{SC} lds')
        if wide:
            a('s_add_u32 m0, m0, 4096')
            a('s_add_u32 s41, s41, 4096')
            a(f'buffer_load_dwordx4 v8, s[16:19], s42 offen{SC} lds')
            a('s_add_u32 s42, s42, 4096')
        else:
            a('s_add_u32 s41, s41, 4096')
    def issue_x(slot):
        a(f's_add_u32 m0, {slot}, s44')
        a('s_nop 0')
        a(f'buffer_load_dwordx4 v8, s[16:19], s40 offen{SC} lds')
        a(f'buffer_load_dwordx4 v8, s[16:19], s40 offen offset:1024{SC} lds')
        a('s_add_u32 s40, s40, 8192')
    def issue(wide):
        issue_w('s43', wide); issue_x('s43')
        a(f's_add_u32 s43, s43, {UB2}')
        a(f's_and_b32 s43, s43, {UB2*R2 - 1}')
    def wpre():
        for u in range(lead): issue_w(u * UB2, True)
        stamp(a, 1)
    handoff(a, n, c.ph - 1, 's26', 's27', 's26', mid=wpre)
    stamp(a, 2)
    for u in range(lead): issue_x(u * UB2)
    a(f's_mov_b32 s43, {lead * UB2}')
    a('s_cmp_eq_u32 s10, 0')
    a(f's_cselect_b32 s46, 0, {PSTR}')
    a(f's_add_u32 s46, s46, {WS_FLG + 10*PSTR}')
    a(f's_mul_i32 s47, s26, {GSTR}')
    a('s_add_u32 s46, s46, s47')
    a('s_xor_b32 s47, s27, 1')
    a(f's_mul_i32 s47, s47, {FSTR}')
    a('s_add_u32 s47, s47, s46')
    a(f's_mul_i32 s49, s27, {FSTR}')
    a('s_add_u32 s46, s46, s49')
    a('v_mov_b32 v14, 0')
    a('v_mov_b32 v15, 1')
    cnt = lambda u: 2 if u < lead else (4 if u < N1 else 3)
    def allowed(t, issued): return sum(cnt(u) for u in range(2 * t + 4, issued))
    a(f's_waitcnt vmcnt({allowed(-1, lead)})')
    a('s_barrier')
    stamp(a, 3)
    BD = T1 + 2 * EV_DRAIN + 1; BL = T1 + 2 * EV_LOAD + 1
    def epoch_desc(t):
        us = [u for u in (lead + 2 * t, lead + 2 * t + 1) if u < U]
        issued = min(U, lead + 2 * t + 2)
        ev = []
        if us and us[0] == N1: ev.append('jump')
        if t == BD: ev.append('flag')
        if t == BL - 2: ev.append('poll')
        if t == BL - 1: ev.append('check')
        return (tuple(u < N1 for u in us), allowed(t, issued), tuple(ev))
    t = 0; seg = 0
    while t < T:
        d = epoch_desc(t); k = 1
        while not d[2] and t + k < T and epoch_desc(t + k) == d: k += 1
        if k > 1:
            a(f's_mov_b32 s50, {k}')
            a(f'{n}_l{seg}:')
        if 'jump' in d[2]:
            a('s_lshl_b32 s49, s48, 13')
            a('s_add_u32 s40, s40, s49')
            a('s_lshl_b32 s49, s48, 12')
            a('s_add_u32 s41, s41, s49')
        if 'flag' in d[2]:
            a('s_cmp_lg_u32 s3, 0')
            a(f's_cbranch_scc1 {n}_nf2')
            a('s_mov_b64 exec, 1')
            a(f'buffer_store_dword v15, v14, s[16:19], s46 offen{SC}')
            a('s_mov_b64 exec, -1')
            a(f'{n}_nf2:')
        for wide in d[0]: issue(wide)
        if 'poll' in d[2]: a(f'buffer_load_dword v16, v14, s[16:19], s47 offen{SC}')
        if 'check' in d[2]:
            a(f's_waitcnt vmcnt({3 * len(d[0])})')
            a('v_cmp_eq_u32 vcc, 0, v16')
            a(f's_cbranch_vccz {n}_x_ok')
            spin_global(a, n + '_x', 's47', 2, lanes=1)
        a(f's_waitcnt vmcnt({d[1]})')
        a('s_barrier')
        if k > 1:
            a('s_sub_u32 s50, s50, 1')
            a('s_cmp_lg_u32 s50, 0')
            a(f's_cbranch_scc1 {n}_l{seg}')
            seg += 1
        t += k
    stamp(a, 4)
    prof_flush(a, c.ph, 0)

def w2_consumer(a):
    c = C_W2; n = 'w2'
    VX, VW, FR, ACC, PAC = 4, 6, 16, 112, 144
    acc = lambda m, t: (ACC if t < 2 else PAC) + (m * 2 + (t & 1)) * 4
    stamp(a, 0)
    a('v_lshlrev_b32 v8, 4, v0')
    a('v_and_b32 v1, 15, v0')
    a('v_lshrrev_b32 v2, 4, v0')
    a('s_lshl_b32 s34, s32, 12')
    a('v_add_u32 v9, s34, v8')
    a('s_lshl_b32 s34, s33, 11')
    a('s_add_u32 s34, s34, 8192')
    a('v_add_u32 v10, s34, v8')
    a(f'v_mov_b32 v{VX}, v9')
    a(f'v_mov_b32 v{VW}, v10')
    a('s_lshl_b32 s36, s26, 5')
    a('s_lshl_b32 s37, s27, 1')
    a('s_add_u32 s36, s36, s37')
    a('s_add_u32 s36, s36, s33')
    a('s_lshl_b32 s36, s36, 13')
    a('s_lshl_b32 s37, s32, 12')
    a('s_add_u32 s36, s36, s37')
    a('s_add_u32 s36, s36, s10')
    a(f's_add_u32 s37, s36, {c.roff}')
    for m in range(4):
        a(f'buffer_load_dwordx4 v[{FR+4*m}:{FR+4*m+3}], v8, s[16:19], s37 offen offset:{m*1024}{SC}')
    for r in range(PAC, PAC + 32): a(f'v_mov_b32 v{r}, 0')
    a('s_cmp_eq_u32 s10, 0')
    a(f's_cselect_b32 s38, 0, {8*MB_}')
    a(f's_add_u32 s38, s38, {WS_EX}')
    a('s_lshl_b32 s39, s26, 19')
    a('s_add_u32 s38, s38, s39')
    a('s_lshl_b32 s39, s3, 13')
    a('s_add_u32 s38, s38, s39')
    a('s_lshl_b32 s39, s27, 15')
    a('s_add_u32 s39, s39, s38')
    a('s_xor_b32 s38, s39, 32768')
    for m in range(4):
        a(f's_waitcnt vmcnt({3-m})')
        for e in range(2):
            d = acc(m, e); r = FR + 4 * m + 2 * e
            a(f'v_lshlrev_b32 v{d}, 16, v{r}')
            a(f'v_and_b32 v{d+1}, 0xffff0000, v{r}')
            a(f'v_lshlrev_b32 v{d+2}, 16, v{r+1}')
            a(f'v_and_b32 v{d+3}, 0xffff0000, v{r+1}')
    def weave(ms, fill, at=None):
        for i, m in enumerate(ms):
            for x in (at or {}).get(i, []): a(x)
            a(m)
            for x in (fill[i] if i < len(fill) else []): a(x)
    def spread(items, ngaps):
        out = [[] for _ in range(ngaps)]
        extra = max(0, len(items) - ngaps); k = 0
        for i in range(ngaps):
            cnt = 2 if i < extra else 1
            out[i] = items[k:k + cnt]; k += cnt
        assert k >= len(items)
        return out
    def mk(nsub, NW):
        fs = nsub * (4 + NW) * 4
        xf = lambda st, si, m: FR + st * fs + (si * (4 + NW) + m) * 4
        wf = lambda st, si, t: FR + st * fs + (si * (4 + NW) + 4 + t) * 4
        def reads(st):
            out = []
            for si in range(nsub):
                out += [f'ds_read_b128 v[{xf(st,si,m)}:{xf(st,si,m)+3}], v{VX} offset:{si*UB2 + m*1024}' for m in range(4)]
                out += [f'ds_read_b128 v[{wf(st,si,t)}:{wf(st,si,t)+3}], v{VW} offset:{si*UB2 + (t>>1)*4096 + (t&1)*1024}' for t in range(NW)]
            return out
        def mfmas(st): return [mfma(acc(m, t), wf(st, si, t), xf(st, si, m)) for si in range(nsub) for t in range(NW) for m in range(4)]
        adv = [f's_add_u32 s42, s42, {nsub*UB2}', f's_and_b32 s42, s42, {UB2*R2 - 1}', 's_add_u32 s41, s41, 1',
               f'v_add_u32 v{VX}, s42, v9', f'v_add_u32 v{VW}, s42, v10']
        return reads, mfmas, adv
    a('s_mov_b32 s41, 0')
    a('s_mov_b32 s42, 0')
    a('s_barrier')
    stamp(a, 1)
    reads, mfmas, adv = mk(1, 4)
    for r in reads(0) + adv: a(r)
    a('s_waitcnt lgkmcnt(0)')
    a(f'.p2align 6\n{n}_c1:')
    weave(mfmas(0), spread(reads(1) + adv, 11), at={15: ['s_waitcnt lgkmcnt(0)', 's_barrier']})
    f = spread(reads(0) + adv, 11) + [[], [f's_cmp_lt_u32 s41, {N1 + 1}'], [], ['s_waitcnt lgkmcnt(0)'], [f's_cbranch_scc1 {n}_c1']]
    weave(mfmas(1), f)
    stamp(a, 5)
    reads, mfmas, adv = mk(2, 2)
    a(f's_mov_b32 s42, {(N1 % R2) * UB2}')
    a(f'v_add_u32 v{VX}, s42, v9')
    a(f'v_add_u32 v{VW}, s42, v10')
    a('s_mov_b32 s41, 0')
    for r in reads(0) + adv: a(r)
    a('s_add_u32 s40, s38, 4096')
    for i in range(8):
        a(f'buffer_store_dwordx4 v[{PAC+4*i}:{PAC+4*i+3}], v8, s[16:19], {"s38" if i < 4 else "s40"} offen offset:{(i&3)*1024}{SC}')
    a(f's_mov_b32 s44, {(1 << (2*EV_DRAIN + 1)) | (1 << (2*EV_LOAD + 1))}')
    a(f'.p2align 6\n{n}_c2:')
    a('s_waitcnt lgkmcnt(0)')
    a('s_barrier')
    a(f'{n}_c2b:')
    weave(mfmas(0), spread(reads(1) + adv, 16))
    a('s_waitcnt lgkmcnt(0)')
    a(f's_cmp_lt_u32 s41, {N2 // 2}')
    a('s_barrier')
    a(f's_cbranch_scc0 {n}_clast')
    weave(mfmas(1), spread(reads(0) + adv, 15) + [['s_bitcmp1_b32 s44, s41']])
    a(f's_cbranch_scc0 {n}_c2')
    a(f's_cmp_eq_u32 s41, {2*EV_DRAIN + 1}')
    a(f's_cbranch_scc0 {n}_ev2')
    a('s_waitcnt vmcnt(0)')
    a(f's_branch {n}_c2')
    a(f'{n}_ev2:')
    a('s_waitcnt lgkmcnt(0)')
    a('s_barrier')
    a('s_add_u32 s40, s39, 4096')
    for i in range(8):
        a(f'buffer_load_dwordx4 v[{PAC+4*i}:{PAC+4*i+3}], v8, s[16:19], {"s39" if i < 4 else "s40"} offen offset:{(i&3)*1024}{SC}')
    a(f's_branch {n}_c2b')
    a(f'{n}_clast:')
    weave(mfmas(1), [])
    stamp(a, 6)
    a('s_waitcnt vmcnt(0)')
    stamp(a, 2)
    for r in range(0, 32, 2): a(f'v_pk_add_f32 v[{ACC+r}:{ACC+r+1}], v[{ACC+r}:{ACC+r+1}], v[{PAC+r}:{PAC+r+1}]')
    res_epilogue(a, c, acc, FR)

import pack
pack.WS_PQ, pack.WS_PO, pack.WS_P1, pack.WS_P2, pack.WS_CSQ, pack.WS_CS1 = WS_PQ, WS_PO, WS_P1, WS_P2, WS_CSQ, WS_CS1
RING = 4 * 32768
Q, KB, VB, P, ONES, L, IDX, O, CI, S_ = (8, 16), (24, 32), (40, 48), 56, 64, (68, 72), 76, (80, 96), (112, 128), (144, 160)
VA, VBASE = 4, 5
def m32(d, x, y, c): return f'v_mfma_f32_32x32x16_bf16 v[{d}:{d+15}], v[{x}:{x+3}], v[{y}:{y+3}], ' + (f'v[{c}:{c+15}]' if c is not None else '0')
def sm(d): return f'v_smfmac_f32_16x16x64_bf16 v[{d}:{d+3}], v[{ONES}:{ONES+3}], v[{P}:{P+7}], v{IDX}'

def attn_loader(a):
    n = 'at'
    stamp(a, 0)
    a('v_lshlrev_b32 v2, 4, v0')
    a('s_lshr_b32 s28, s3, 1')
    a('s_and_b32 s29, s3, 1')
    a('s_lshl_b32 s12, s27, 1')
    a('s_add_u32 s12, s12, s28')
    a('s_lshl_b32 s12, s12, 18')
    a('s_lshl_b32 s13, s29, 13')
    a('s_add_u32 s12, s12, s13')
    a('s_add_u32 s12, s12, s10')
    a(f's_add_u32 s12, s12, {L_KVF}')
    a('s_lshl_b32 s15, s3, 13')
    a('s_add_u32 s15, s15, 32768')
    a('s_lshl_b32 s13, s26, 14')
    a('s_add_u32 s13, s13, s12')
    def issue_chunk():
        a('s_cmp_eq_u32 s12, s13')
        a('s_cselect_b32 s14, 16384, 0')
        a('s_add_u32 s12, s12, s14')
        a('s_mov_b32 m0, s15')
        a('s_add_u32 s14, s12, 4096')
        for i in range(4): a(f'buffer_load_dwordx4 v2, s[16:19], s12 offen offset:{i*1024}{SC} lds')
        a('s_add_u32 m0, s15, 4096')
        a('s_add_u32 s12, s12, 16384')
        for i in range(4): a(f'buffer_load_dwordx4 v2, s[16:19], s14 offen offset:{i*1024}{SC} lds')
        a('s_add_u32 s15, s15, 32768')
        a(f's_and_b32 s15, s15, {RING-1}')
    stamp(a, 1)
    a('s_barrier')
    handoff(a, n, 0, 's27', 's26', 's27')
    stamp(a, 2)
    issue_chunk(); issue_chunk()
    stamp(a, 3)
    a('s_cmp_eq_u32 s10, 0')
    a(f's_cbranch_scc1 {n}_ldpack')
    a('s_mov_b32 s20, 13')
    a(f'{n}_lloop:')
    issue_chunk()
    a('s_waitcnt vmcnt(16)')
    a('s_barrier')
    a('s_sub_u32 s20, s20, 1')
    a('s_cmp_lg_u32 s20, 0')
    a(f's_cbranch_scc1 {n}_lloop')
    a('s_waitcnt vmcnt(8)')
    a('s_barrier')
    a('s_waitcnt vmcnt(0)')
    a('s_barrier')
    a(f's_branch {n}_lend')
    a(f'{n}_ldpack:')
    PK = 8
    a('s_mov_b32 s35, 0x20000')
    a('s_lshl_b32 s45, s3, 12')
    a(f's_add_u32 s45, s45, {RING}')
    a('s_cmp_lt_u32 s2, 32')
    a(f's_cbranch_scc1 {n}_pk_wo')
    a('s_cmp_lt_u32 s2, 144')
    a(f's_cbranch_scc1 {n}_pk_w1')
    a('s_sub_u32 s46, s2, 144')
    a('s_lshr_b32 s47, s46, 4')
    a('s_and_b32 s46, s46, 15')
    pack.decode(a, 32, 'w2', 's46', 's47', 's3', ('s62', 's63'), 4)
    a(f's_branch {n}_pk1')
    a(f'{n}_pk_wo:')
    a('s_lshr_b32 s47, s2, 4')
    a('s_and_b32 s46, s2, 15')
    pack.decode(a, 32, 'wo', 's46', 's47', 's3', ('s56', 's57'), 4)
    a(f's_branch {n}_pk1')
    a(f'{n}_pk_w1:')
    a('s_cmp_ge_u32 s2, 88')
    a('s_cselect_b32 s47, 1, 0')
    a('s_cselect_b32 s46, 88, 32')
    a('s_sub_u32 s46, s2, s46')
    pack.decode(a, 32, 'w1', 's46', 's47', 's3', ('s60', 's61'), 4)
    a(f'{n}_pk1:')
    pack.setup(a, 32, 0, PK, 's45')
    q = [('c', 1)] * 8 + [('c', 2)] * 8
    def need(tag):
        last = max([i for i, t in enumerate(q) if t == tag], default=-1)
        a(f's_waitcnt vmcnt({len(q) - 1 - last})')
        del q[:last + 1]
    LOADS = {0: 0, 3: 1, 6: 2, 9: 3}
    FINS = {3: 0, 6: 1, 9: 2, 12: 3}
    for e in range(15):
        if e + 3 < 16: issue_chunk(); q += [('c', e + 3)] * 8
        if e in FINS:
            u = FINS[e]
            need(('p', u))
            pack.finish1(a, 32, 2, PK, 's[16:19]', st=SC, flip=None); q += [('s', u)] * 4
        if e in LOADS:
            pack.issue1(a, 32, PK, wrap=('s45', True)); q += [('p', LOADS[e])] * 4
        if e == 13:
            a('s_cmp_eq_u32 s41, 0')
            a(f's_cbranch_scc1 {n}_nocs')
            pack.colsum1(a, 32, 0, PK, 's[16:19]', st=SC)
            a(f'{n}_nocs:')
        if e == 14:
            a('s_lshl_b32 s46, s2, 4')
            a('s_lshl_b32 s47, s3, 2')
            a('s_add_u32 s46, s46, s47')
            a(f's_add_u32 s46, s46, {WS_PKF}')
            a('v_mov_b32 v3, 0')
            a('v_mov_b32 v1, 1')
            a('s_waitcnt vmcnt(0)'); q.clear()
            a('s_mov_b64 exec, 1')
            a(f'buffer_store_dword v1, v3, s[16:19], s46 offen{SC}')
            a('s_mov_b64 exec, -1')
        else:
            need(('c', e + 1))
        a('s_barrier')
    a(f'{n}_lend:')
    a('s_barrier')
    stamp(a, 4)
    prof_flush(a, 1, 0)

def attn_consumer(a):
    n = 'at'; S = S_
    stamp(a, 0)
    a('v_lshlrev_b32 v2, 4, v0')
    a('s_lshl_b32 s28, s27, 1')
    a('s_add_u32 s28, s28, s33')
    a('s_lshl_b32 s13, s3, 12')
    a(f's_add_u32 s13, s13, {RING}')
    a('v_add_u32 v3, s13, v2')
    a('s_waitcnt lgkmcnt(0)')
    for i in range(4): a(f'ds_read_b128 v[{Q[0]+4*i}:{Q[0]+4*i+3}], v3 offset:{i*1024}')
    a('v_lshrrev_b32 v3, 2, v0')
    a('v_mov_b32 v6, 0x3f803f80')
    a('v_and_b32 v1, 1, v3')
    a('v_cmp_eq_u32 vcc, 0, v1')
    a(f'v_cndmask_b32 v{ONES}, 0, v6, vcc')
    a(f'v_mov_b32 v{ONES+1}, v{ONES}')
    a(f'v_xor_b32 v{ONES+2}, v6, v{ONES}')
    a(f'v_mov_b32 v{ONES+3}, v{ONES+2}')
    a('v_and_b32 v1, 1, v0')
    a('v_cmp_eq_u32 vcc, 0, v1')
    a('v_mov_b32 v6, 0x44444444')
    a('v_mov_b32 v7, 0xeeeeeeee')
    a(f'v_cndmask_b32 v{IDX}, v7, v6, vcc')
    for r in list(range(L[0], L[0] + 8)) + list(range(O[0], O[0] + 32)) + list(range(P, P + 8)) + list(range(VB[1] + 4, VB[1] + 8)):
        a(f'v_mov_b32 v{r}, 0')
    a('s_lshl_b32 s14, s33, 14')
    a(f'v_add_u32 v{VBASE}, s14, v2')
    a(f'v_mov_b32 v{VA}, v{VBASE}')
    a('s_mov_b32 s20, 0')
    a('s_mov_b32 s21, 0')
    a('s_waitcnt lgkmcnt(0)')
    a('s_barrier')
    stamp(a, 5)
    def rd(dst, off): a(f'ds_read_b128 v[{dst}:{dst+3}], v{VA} offset:{off}')
    rd(KB[0], 0); rd(KB[0] + 4, 1024); rd(VB[0], 2048); rd(VB[0] + 4, 3072)
    a('s_waitcnt lgkmcnt(2)')
    for qi in range(2):
        a(m32(S[qi], KB[0], Q[qi], None))
        a(m32(S[qi], KB[0] + 4, Q[qi] + 4, S[qi]))
    for qi in range(2):
        s_, t_ = S[qi], 6 + qi
        a(f'v_max3_f32 v{t_}, v{s_}, v{s_+1}, v{s_+2}')
        for r in range(3, 15, 2): a(f'v_max3_f32 v{t_}, v{t_}, v{s_+r}, v{s_+r+1}')
        a(f'v_max_f32 v{t_}, v{t_}, v{s_+15}')
    a('v_mov_b32 v1, v6')
    a('v_mov_b32 v3, v7')
    a('v_permlane32_swap_b32 v6, v1')
    a('v_permlane32_swap_b32 v7, v3')
    a('v_max_f32 v6, v6, v1')
    a('v_max_f32 v7, v7, v3')
    for r in range(16): a(f'v_sub_f32 v{CI[0]+r}, 0, v6')
    a(m32(S[0], KB[0], Q[0], CI[0]))
    a(m32(S[0], KB[0] + 4, Q[0] + 4, S[0]))
    for r in range(16): a(f'v_sub_f32 v{CI[1]+r}, 0, v7')
    a('s_waitcnt vmcnt(0) lgkmcnt(0)')
    a('s_barrier')
    stamp(a, 1)
    a(f'.p2align 6\n{n}_loop:')
    for kt in range(4):
        for qi in range(2):
            sa, sb = S[qi], S[1 - qi]
            E = lambda *r: [a(f'v_exp_f32 v{sa+i}, v{sa+i}') for i in r]
            C = lambda *r: [a(f'v_cvt_pk_bf16_f32 v{P+i}, v{sa+2*i}, v{sa+2*i+1}') for i in r]
            kn = KB[kt % 2] if qi == 0 else KB[(kt + 1) % 2]
            vp = VB[(kt + 1) % 2] if qi == 0 else VB[kt % 2]
            nb = (kt + 1) % 2; off = ((kt + 1) % 4) * 4096
            f = [[] for _ in range(5)]
            if qi == 0:
                f[0] = [('rd', KB[nb], off)]; f[1] = [('rd', KB[nb] + 4, off + 1024)]
                f[2] = [('rd', VB[nb] + 4, off + 3072)]; f[3] = [('rd', VB[nb], off + 2048)]
                f[4] = ['s_waitcnt lgkmcnt(2)']
            else:
                f[1] = ['s_waitcnt lgkmcnt(0)']
                if kt == 1:
                    f[0] = ['s_add_u32 s21, s21, 32768']; f[2] = [f's_and_b32 s21, s21, {RING-1}']
                    f[3] = ['s_add_u32 s20, s20, 1']
                if kt == 2: f[3] = ['s_barrier', f'v_add_u32 v{VA}, s21, v{VBASE}']
                if kt == 3: f[0] = ['s_cmp_lg_u32 s20, 16']
            def F(i):
                for x in f[i]:
                    if isinstance(x, tuple): rd(x[1], x[2])
                    else: a(x)
            a(m32(sb, kn, Q[1 - qi], CI[1 - qi])); F(0); E(0, 1, 2)
            a(sm(L[1 - qi])); F(1); E(3, 4, 5)
            a(m32(O[1 - qi], vp + 4, P + 4, O[1 - qi])); F(2); E(6, 7); C(0, 1)
            a(m32(sb, kn + 4, Q[1 - qi] + 4, sb)); F(3); C(2, 3); E(8, 9)
            a(m32(O[qi], VB[kt % 2], P, O[qi])); F(4); E(10, 11, 12, 13, 14, 15); C(4, 5, 6, 7)
    a(f's_cbranch_scc1 {n}_loop')
    stamp(a, 2)
    a(sm(L[1]))
    a(m32(O[1], VB[1] + 4, P + 4, O[1]))
    for qi in range(2): a(f'v_add_f32 v{L[qi]}, v{L[qi]}, v{L[qi]+1}')
    a(f'v_add_f32 v1, v{L[0]}, v{L[1]}')
    for r in range(0, 32, 2): a(f'v_pk_fma_f32 v[6:7], v[{O[0]+r}:{O[0]+r+1}], 0, v[6:7]' if r else f'v_pk_mul_f32 v[6:7], v[{O[0]}:{O[0]+1}], 0')
    a('v_add_f32 v1, v1, v6')
    a('v_add_f32 v1, v1, v7')
    a(f's_mov_b32 s23, {f32bits(2.0**100)}')
    a('v_cmp_ngt_f32 vcc, s23, v1')
    a(f's_cbranch_vccnz {n}_slow')
    a(f'{n}_fin:')
    a(f'v_rcp_f32 v6, v{L[0]}')
    a(f'v_rcp_f32 v7, v{L[1]}')
    a('v_and_b32 v3, 15, v0')
    a('v_lshlrev_b32 v3, 4, v3')
    a('v_lshrrev_b32 v1, 5, v0')
    a('v_lshl_add_u32 v3, v1, 8, v3')
    a('v_bfe_u32 v1, v0, 4, 1')
    a('v_lshl_add_u32 v3, v1, 10, v3')
    a('s_lshl_b32 s24, s26, 5')
    a('s_add_u32 s24, s24, s28')
    a('s_lshl_b32 s24, s24, 13')
    a('s_lshl_b32 s25, s32, 12')
    a('s_add_u32 s24, s24, s25')
    a('s_add_u32 s24, s24, s10')
    a(f's_add_u32 s24, s24, {L_O}')
    for qi in range(2):
        for r in range(0, 16, 2):
            a(f'v_pk_mul_f32 v[{O[qi]+r}:{O[qi]+r+1}], v[{O[qi]+r}:{O[qi]+r+1}], v[6:7] op_sel:[0,{qi}] op_sel_hi:[1,{qi}]')
        for c in range(2):
            d = S[0] + 8 * qi + 4 * c
            for k, r in enumerate((4*c, 4*c + 2, 8 + 4*c, 8 + 4*c + 2)):
                a(f'v_cvt_pk_bf16_f32 v{d+k}, v{O[qi]+r}, v{O[qi]+r+1}')
            a(f'buffer_store_dwordx4 v[{d}:{d+3}], v3, s[16:19], s24 offen offset:{qi*2048 + c*512}{SC}')
    signal(a, 1, 's26', 's27')
    prof_flush(a, 1, 1)

def attn_slow(a):
    n = 'at'; S = S_
    a(f'{n}_slow:')
    M, LS, SA, KF, VF, OT = 6, 7, S[0], KB[0], VB[0], S[1]
    a('s_lshl_b32 s29, s28, 18')
    a('s_add_u32 s29, s29, s10')
    a(f's_add_u32 s29, s29, {L_KVF}')
    a('s_mov_b32 s21, 0')
    a(f'{n}_sq:')
    a(f'v_mov_b32 v{M}, {f32bits(-3.0e38)}')
    a(f'v_mov_b32 v{LS}, 0')
    for r in range(16): a(f'v_mov_b32 v{OT+r}, 0')
    a('s_mov_b32 s20, 0')
    a('s_mov_b32 s12, s29')
    a(f'{n}_sloop:')
    for i, d in enumerate((KF, KF + 4, VF, VF + 4)):
        a(f'buffer_load_dwordx4 v[{d}:{d+3}], v2, s[16:19], s12 offen offset:{i*1024}{SC}')
    a('s_add_u32 s12, s12, 4096')
    a('s_waitcnt vmcnt(0)')
    a(m32(SA, KF, Q[0], None))
    a(m32(SA, KF + 4, Q[0] + 4, SA))
    a(f'v_max3_f32 v1, v{SA}, v{SA+1}, v{SA+2}')
    for r in range(3, 15, 2): a(f'v_max3_f32 v1, v1, v{SA+r}, v{SA+r+1}')
    a(f'v_max3_f32 v1, v1, v{SA+15}, v{M}')
    a('v_mov_b32 v3, v1')
    a('v_permlane32_swap_b32 v1, v3')
    a('v_max_f32 v1, v1, v3')
    a(f'v_sub_f32 v3, v{M}, v1')
    a('v_exp_f32 v3, v3')
    a(f'v_mov_b32 v{M}, v1')
    for r in range(16): a(f'v_sub_f32 v{SA+r}, v{SA+r}, v1')
    for r in range(16): a(f'v_exp_f32 v{SA+r}, v{SA+r}')
    for r in range(16): a(f'v_mul_f32 v{OT+r}, v{OT+r}, v3')
    a(f'v_mul_f32 v{LS}, v{LS}, v3')
    for r in range(8): a(f'v_cvt_pk_bf16_f32 v{P+r}, v{SA+2*r}, v{SA+2*r+1}')
    for r in range(16): a(f'v_add_f32 v{LS}, v{LS}, v{SA+r}')
    a(m32(OT, VF, P, OT))
    a(m32(OT, VF + 4, P + 4, OT))
    a('s_add_u32 s20, s20, 1')
    a('s_cmp_lg_u32 s20, 64')
    a('s_nop 7')
    a(f's_cbranch_scc1 {n}_sloop')
    a(f'v_mov_b32 v3, v{LS}')
    a(f'v_permlane32_swap_b32 v{LS}, v3')
    a(f'v_add_f32 v{L[1]}, v{LS}, v3')
    for r in range(16): a(f'v_mov_b32 v{O[1]+r}, v{OT+r}')
    a('s_cmp_lg_u32 s21, 0')
    a(f's_cbranch_scc1 {n}_fin')
    a('s_mov_b32 s21, 1')
    a(f'v_mov_b32 v{L[0]}, v{L[1]}')
    for r in range(16): a(f'v_mov_b32 v{O[0]+r}, v{OT+r}')
    for r in range(8): a(f'v_mov_b32 v{Q[0]+r}, v{Q[1]+r}')
    a(f's_branch {n}_sq')

def main_kernel(a):
    label = 'main_kernel'
    a(f'.p2align 8\n.globl {label}\n.type {label},@function\n{label}:')
    a(f's_load_dwordx2 s[4:5], s[0:1], {KA["ws"]}')
    a(f's_load_dwordx2 s[8:9], s[0:1], {KA["out"]}')
    a(f's_load_dwordx2 s[56:57], s[0:1], {KA["wo"]}')
    a(f's_load_dwordx4 s[60:63], s[0:1], {KA["w1"]}')
    a('s_cmp_ge_u32 s2, 256')
    a('s_cbranch_scc1 main_exit')
    if dsl.PROF:
        for i in range(64, 80): a(f's_mov_b32 s{i}, 0')
    a('v_lshrrev_b32 v1, 6, v0')
    a('v_and_b32 v0, 63, v0')
    a('v_readfirstlane_b32 s3, v1')
    a('s_and_b32 s24, s2, 7')
    a('s_lshr_b32 s25, s2, 3')
    XN = 16 // NBK
    a(f's_lshr_b32 s26, s24, {log2(XN)}')
    a(f's_and_b32 s27, s24, {XN-1}')
    a(f's_lshl_b32 s26, s26, {log2(MBK)}')
    a(f's_lshl_b32 s27, s27, {log2(NBK)}')
    a(f's_and_b32 s28, s25, {MBK-1}')
    a(f's_lshr_b32 s29, s25, {log2(MBK)}')
    a('s_add_u32 s26, s26, s28')
    a('s_add_u32 s27, s27, s29')
    a(f's_mov_b32 s18, {WS_USED}')
    a('s_mov_b32 s19, 0x20000')
    a('s_mov_b32 s10, 0')
    a(f's_mov_b32 s11, {WS_FLG}')
    a('s_waitcnt lgkmcnt(0)')
    a('s_mov_b32 s16, s4')
    a('s_mov_b32 s17, s5')
    a('s_cmp_ge_u32 s3, 4')
    a('s_cbranch_scc1 main_cons')
    a('s_mov_b32 s58, 0')
    code_srd(a, 80, 'main')
    a(f'v_mov_b32 v11, {RDY}')
    a('v_mov_b32 v10, 0')
    a('ds_write_b32 v11, v10')
    a('main_lay_l:')
    gemm_loader(a, C_QKV); attn_loader(a); gemm_loader(a, C_WO); gemm_loader(a, C_W1); (gemm_loader(a, C_W2) if 'nosplit' in OPT else w2_loader(a))
    a('s_cmp_lg_u32 s10, 0')
    a('s_cbranch_scc1 main_exit')
    a(f's_mov_b32 s10, {LSTR}')
    a(f's_mov_b32 s11, {WS_FLG + 5*PSTR}')
    a('s_branch main_lay_l')
    a('main_exit:')
    a('s_endpgm')
    a('.p2align 6\nmain_cons:')
    a('s_setprio 2')
    a('s_sub_u32 s3, s3, 4')
    a('s_lshr_b32 s32, s3, 1')
    a('s_and_b32 s33, s3, 1')
    dbgt_init(a, True)
    a('main_lay_c:')
    dbgt(a, 2, True); gemm_consumer(a, C_QKV); dbgt(a, 3, True); attn_consumer(a); dbgt(a, 4, True); gemm_consumer(a, C_WO); dbgt(a, 5, True); gemm_consumer(a, C_W1); dbgt(a, 6, True)
    (gemm_consumer(a, C_W2) if 'nosplit' in OPT else w2_consumer(a))
    a(f's_mov_b32 s10, {LSTR}')
    a(f's_mov_b32 s11, {WS_FLG + 5*PSTR}')
    a('s_branch main_lay_c')
    C_W2.final()
    attn_slow(a)
    a('main_end:')

GRID_PRE0 = 224 + (12 * PSTR + 4096 + 16383) // 16384
GRID_PRE = GRID_PRE0 + (64 if 'wwarm' in sys.argv else 0)
def pre_kernel(a):
    n = 'pre'; label = 'pre_kernel'
    a(f'.p2align 8\n.globl {label}\n.type {label},@function\n{label}:')
    a(f's_load_dwordx2 s[4:5], s[0:1], {KA["ws"]}')
    a(f's_load_dwordx2 s[6:7], s[0:1], {KA["x"]}')
    a(f's_load_dwordx2 s[8:9], s[0:1], {KA["wqkv"]}')
    a(f's_cmp_ge_u32 s2, {GRID_PRE}')
    a(f's_cbranch_scc1 {n}_exit')
    a('v_lshrrev_b32 v1, 6, v0')
    a('v_mov_b32 v30, v0')
    a('v_and_b32 v0, 63, v0')
    a('v_readfirstlane_b32 s3, v1')
    dbgt_init(a, False); dbgt(a, 0)
    a(f's_mov_b32 s18, {WS_USED}')
    a('s_mov_b32 s19, 0x20000')
    a('s_mov_b32 s23, 0x20000')
    a('s_cmp_lt_u32 s2, 96')
    a(f's_cbranch_scc1 {n}_cs')
    if 'wwarm' in OPT:
        a(f's_cmp_ge_u32 s2, {GRID_PRE0}')
        a(f's_cbranch_scc1 {n}_ww')
    a('s_cmp_ge_u32 s2, 224')
    a(f's_cbranch_scc1 {n}_fl')
    a('s_sub_u32 s24, s2, 96')
    a('v_and_b32 v1, 15, v0')
    a('v_lshrrev_b32 v2, 4, v0')
    a('v_lshlrev_b32 v3, 3, v2')
    a('v_lshl_add_u32 v3, v1, 11, v3')
    a('v_lshlrev_b32 v4, 4, v0')
    a('s_lshl_b32 s25, s24, 15')
    a('s_lshl_b32 s26, s3, 8')
    a('s_add_u32 s25, s25, s26')
    a(f's_mov_b32 s22, {2048*2048}')
    a('s_waitcnt lgkmcnt(0)')
    a('s_mov_b32 s16, s4\ns_mov_b32 s17, s5\ns_mov_b32 s20, s6\ns_mov_b32 s21, s7')
    for k in range(4):
        for u in range(2):
            a(f'buffer_load_dwordx2 v[{8+4*k+2*u}:{9+4*k+2*u}], v3, s[20:23], s25 offen offset:{k*64 + u*32}')
    a('s_lshr_b32 s26, s24, 3')
    a('s_and_b32 s27, s24, 7')
    a('s_lshl_b32 s28, s26, 5')
    a('s_lshl_b32 s29, s3, 2')
    a('s_add_u32 s29, s28, s29')
    a('s_lshl_b32 s28, s29, 3')
    a('s_add_u32 s28, s28, s27')
    a('s_lshl_b32 s28, s28, 10')
    a(f's_add_u32 s28, s28, {L_XA}')
    a('v_mov_b32 v5, 0x3f803f80')
    for r in range(8): a(f'v_mov_b32 v{32+r}, 0')
    for k in range(4):
        a(f's_waitcnt vmcnt({6 - k})')
        a(f'buffer_store_dwordx4 v[{8+4*k}:{11+4*k}], v4, s[16:19], s28 offen{SC}')
        a('s_add_u32 s28, s28, 8192')
        for r in range(4):
            a(f'v_dot2c_f32_bf16 v{32+k}, v{8+4*k+r}, v5')
            a(f'v_dot2c_f32_bf16 v{36+k}, v{8+4*k+r}, v{8+4*k+r}')
    for b in (32, 36):
        a(f'v_permlane32_swap_b32 v{b}, v{b+1}')
        a(f'v_permlane32_swap_b32 v{b+2}, v{b+3}')
    for b in (32, 36):
        a(f'v_add_f32 v{b}, v{b}, v{b+1}')
        a(f'v_add_f32 v{b+2}, v{b+2}, v{b+3}')
    for b in (32, 36): a(f'v_permlane16_swap_b32 v{b}, v{b+2}')
    a('v_add_f32 v32, v32, v34')
    a('v_add_f32 v33, v36, v38')
    a('v_and_b32 v3, 1, v2')
    a('v_lshrrev_b32 v2, 1, v2')
    a('v_lshl_add_u32 v3, v3, 1, v2')
    a('v_lshlrev_b32 v3, 10, v3')
    a('v_lshl_add_u32 v3, v1, 3, v3')
    a('s_lshl_b32 s28, s29, 10')
    a('s_lshl_b32 s29, s27, 7')
    a('s_add_u32 s28, s28, s29')
    a(f's_add_u32 s28, s28, {L_SPA}')
    a(f'buffer_store_dwordx2 v[32:33], v3, s[16:19], s28 offen{SC}')
    a(f'{n}_exit:')
    a('s_endpgm')
    a(f'{n}_fl:')
    a('s_sub_u32 s24, s2, 224')
    a('s_lshl_b32 s24, s24, 14')
    a(f's_add_u32 s24, s24, {WS_PKF}')
    a('v_lshlrev_b32 v1, 5, v30')
    for r in range(4): a(f'v_mov_b32 v{4+r}, 0')
    a('s_waitcnt lgkmcnt(0)')
    a('s_mov_b32 s16, s4\ns_mov_b32 s17, s5')
    a(f'buffer_store_dwordx4 v[4:7], v1, s[16:19], s24 offen{SC}')
    a(f'buffer_store_dwordx4 v[4:7], v1, s[16:19], s24 offen offset:16{SC}')
    if 'nocodepf' not in OPT:
        a('s_cmp_lg_u32 s3, 0')
        a(f's_cbranch_scc1 {n}_exit')
        code_srd(a, 28, 'pre')
        code_touch(a, 28, 8, 9, 's24')
        if 'tlb' in OPT:
            a('v_lshlrev_b32 v8, 18, v0')
            for i in range(8):
                a(f's_mov_b32 s24, {i * (16 << 20) + 262144 - 128}')
                a('buffer_load_dword v9, v8, s[16:19], s24 offen')
        a('s_waitcnt vmcnt(0)')
    a('s_endpgm')
    if 'wwarm' in OPT:
        a(f'{n}_ww:')
        a(f's_load_dwordx2 s[10:11], s[0:1], {KA["wo"]}')
        a(f's_load_dwordx4 s[12:15], s[0:1], {KA["w1"]}')
        a(f's_sub_u32 s24, s2, {GRID_PRE0}')
        a('s_waitcnt lgkmcnt(0)')
        a('s_cmp_lt_u32 s24, 36')
        a('s_cselect_b32 s20, s12, s14')
        a('s_cselect_b32 s21, s13, s15')
        a('s_cselect_b32 s25, 8, 36')
        a('s_cmp_lt_u32 s24, 8')
        a('s_cselect_b32 s20, s10, s20')
        a('s_cselect_b32 s21, s11, s21')
        a('s_cselect_b32 s25, 0, s25')
        a(f's_mov_b32 s22, {7 * MB_}')
        a(f's_cselect_b32 s22, {2 * MB_}, s22')
        a('s_sub_u32 s24, s24, s25')
        a('s_lshl_b32 s24, s24, 18')
        a('v_lshlrev_b32 v1, 7, v30')
        for i in range(4):
            a('buffer_load_dword v9, v1, s[20:23], s24 offen')
            a('s_add_u32 s24, s24, 65536')
        a('s_waitcnt vmcnt(0)')
        a('s_endpgm')
    a(f'{n}_cs:')
    a('s_cmp_ge_u32 s2, 48')
    a('s_cselect_b32 s13, 1, 0')
    a('s_cselect_b32 s12, 48, 0')
    a('s_sub_u32 s12, s2, s12')
    a('s_lshl_b32 s14, s3, 13')
    a('v_lshlrev_b32 v4, 4, v0')
    a('s_waitcnt lgkmcnt(0)')
    a('s_mov_b32 s16, s4\ns_mov_b32 s17, s5')
    pack.decode(a, 20, 'qkv', 's12', 's13', 's3', ('s8', 's9'), 2)
    pack.issue(a, 20, 0, 1, 's14', 2)
    pack.finish(a, 20, 0, 4, 8, 's14', 's[16:19]', n, 2, st=SC, wait=lambda u: a('s_waitcnt vmcnt(4)'))
    if 'dbgt' in OPT: a('s_waitcnt vmcnt(0)')
    dbgt(a, 1)
    a('s_endpgm')

def build(path):
    a = Asm()
    a('.amdgcn_target "amdgcn-amd-amdhsa--gfx950"\n.text')
    pre_kernel(a)
    main_kernel(a)
    a.finalize()
    txt = a.text() + kd('pre_kernel', 64, 102 if 'dbgt' in OPT else 64) + kd('main_kernel', 224, 102 if dsl.PROF or 'dbgt' in OPT else 88)
    hdr = open('interleave_layers__softmax_full_mha__dense_activation_relu__prompt.s.ref').read().split('; Override launch')[0]
    hdr += '; Generated by my own generator scripts (gen/mega.py).\n'
    hdr += f'; @launch kernel=pre_kernel grid=({GRID_PRE},1,1) block=(512,1,1) lds=65536\n'
    hdr += '; @launch kernel=main_kernel grid=(256,1,1) block=(512,1,1) lds=163840\n'
    open(path, 'w').write(hdr + txt)

if __name__ == '__main__':
    if 'prof' in sys.argv[2:]: dsl.PROF = True
    if 'dbgq' in sys.argv[2:]: DBGQ = True
    OPT = set(sys.argv[2:])
    if 'sleep0' in OPT: SLEEP = 0
    build(sys.argv[1])
```

```python
import sys, struct
import dsl
from dsl import Asm, kd

MB_ = 1 << 20
LSTR  = 40 * MB_
L_QF, L_KVF, L_O, L_XA, L_XB, L_H, L_SPA, L_SPB = 0, 4*MB_, 12*MB_, 16*MB_, 20*MB_, 24*MB_, 38*MB_, 38*MB_ + 524288
WS_CSQ, WS_CS1 = 80*MB_, 80*MB_ + 262144
WS_FLG = 81*MB_ + 65536
WS_PKF = 81*MB_
WS_TAG = 81*MB_ + 8192
WS_PQ, WS_PO, WS_P1, WS_P2 = 82*MB_, 88*MB_, 90*MB_, 97*MB_
WS_EX = 104 * MB_
WS_USED = 120 * MB_
KA = dict(x=0, wqkv=8, wo=16, bx=24, w1=32, w2=40, out=48, dbg=56, ws=64)
QSCALE = (32 ** -0.5) * 1.4426950408889634
STAT = 163840 - 2048
SC = ' sc1'
MBK, NBK = (4, 8) if 'm48' in sys.argv else ((2, 16) if 'm216' in sys.argv else (8, 4))
TIMEOUT = 200000
SLEEP = 2
DBGQ = False
OPT = set()
RING = 4 * 32768

def f32bits(x): return struct.unpack('<I', struct.pack('<f', x))[0]
def log2(x):
    assert x & (x - 1) == 0
    return x.bit_length() - 1

def stamp(a, i):
    if not dsl.PROF: return
    a(f's_memrealtime s[{64+2*i}:{65+2*i}]')
    a('s_waitcnt lgkmcnt(0)')
_dbg_n = [0]
def dbgt(a, word, layered=False):
    if 'dbgt' not in OPT: return
    _dbg_n[0] += 1; t = f'dbgt{_dbg_n[0]}'
    a('s_add_u32 s97, s2, s3')
    a('s_cmp_lg_u32 s97, 0')
    a(f's_cbranch_scc1 {t}')
    a('s_memrealtime s[98:99]')
    if layered:
        a('s_cmp_eq_u32 s10, 0')
        a(f's_cselect_b32 s97, {word*4}, {(word+6)*4}')
    else: a(f's_mov_b32 s97, {word*4}')
    a('s_waitcnt lgkmcnt(0)')
    a('v_mov_b32 v3, s98')
    a('v_mov_b32 v13, 0')
    a('buffer_store_dword v3, v13, s[92:95], s97 offen')
    a(f'{t}:')
def dbgt_init(a, back):
    if 'dbgt' not in OPT: return
    a('s_load_dwordx2 s[92:93], s[0:1], 56')
    a('s_waitcnt lgkmcnt(0)')
    if not back:
        a('s_add_u32 s92, s92, 512')
        a('s_addc_u32 s93, s93, 0')
    a('s_mov_b32 s94, 64')
    a('s_mov_b32 s95, 0x20000')

def prof_flush(a, ph, role):
    if not dsl.PROF: return
    a('s_cmp_eq_u32 s10, 0')
    a(f's_cselect_b32 s97, {ph}, {ph + 5}')
    a('s_lshl_b32 s97, s97, 8')
    a('s_add_u32 s97, s97, s2')
    a('s_lshl_b32 s97, s97, 3')
    a('s_add_u32 s97, s97, s3')
    if role: a('s_add_u32 s97, s97, 4')
    a('s_lshl_b32 s97, s97, 5')
    a(f's_add_u32 s97, s97, {dsl.PROF_OFF}')
    a('s_mov_b32 s88, s4\ns_mov_b32 s89, s5\ns_mov_b32 s90, 0x10000000\ns_mov_b32 s91, 0x20000')
    a('v_mov_b32 v1, 0')
    for i in range(8):
        a(f'v_mov_b32 v3, s{64+2*i}')
        a(f'buffer_store_dword v3, v1, s[88:91], s97 offen offset:{4*i}')

FSTR = int(([x[4:] for x in sys.argv if x.startswith('fstr')] or [64])[0])
GSTR = max(16 * FSTR, 256)
PSTR = 16 * GSTR
RDY = STAT - 64
def code_srd(a, B, tag):
    a(f's_getpc_b64 s[{B}:{B+1}]')
    a(f'{tag}_pc:')
    a(f's_add_u32 s{B}, s{B}, main_kernel-{tag}_pc')
    a(f's_addc_u32 s{B+1}, s{B+1}, {0 if tag == "pre" else -1}')
    a(f's_mov_b32 s{B+2}, main_end-main_kernel')
    a(f's_mov_b32 s{B+3}, 0x20000')
def code_touch(a, B, va, vd, st):
    a(f'v_lshlrev_b32 v{va}, 7, v0')
    for i in range(5):
        a(f's_mov_b32 {st}, {i*8192}')
        a(f'buffer_load_dword v{vd}, v{va}, s[{B}:{B+3}], {st} offen')

def put_flag(a, soff):
    a('v_mov_b32 v9, 0')
    a('v_mov_b32 v12, s52')
    a('v_mov_b32 v13, s53')
    a('s_mov_b64 exec, 1')
    a(f'buffer_store_dwordx2 v[12:13], v9, s[16:19], {soff} offen{SC}')
    a('s_mov_b64 exec, -1')

def spin_global(a, tag, soff, shift, lanes=-1, n4=0):
    a(f's_mov_b32 s55, {TIMEOUT}')
    a(f'v_lshlrev_b32 v9, {shift}, v0')
    if lanes != -1: a(f's_mov_b64 exec, {lanes}')
    a(f'{tag}_poll:')
    if n4:
        for i in range(n4): a(f'buffer_load_dwordx4 v[{12+4*i}:{15+4*i}], v9, s[16:19], {soff} offen offset:{i*1024}{SC}')
    else:
        a(f'buffer_load_dwordx2 v[12:13], v9, s[16:19], {soff} offen{SC}')
    a('s_waitcnt vmcnt(0)')
    nr = 4 * n4 if n4 else 2
    for r in range(nr): a(f'v_xor_b32 v{12+r}, s{52 + (r & 1)}, v{12+r}')
    a('v_or_b32 v10, v12, v13')
    for r in range(2, nr, 2): a(f'v_or3_b32 v10, v10, v{12+r}, v{13+r}')
    a('v_cmp_ne_u32 vcc, 0, v10')
    a(f's_cbranch_vccz {tag}_ok')
    a(f's_sleep {SLEEP}')
    a('s_sub_u32 s55, s55, 1')
    a('s_cmp_lg_u32 s55, 0')
    a(f's_cbranch_scc1 {tag}_poll')
    a(f'{tag}_ok:')
    if lanes != -1: a('s_mov_b64 exec, -1')

def handoff(a, tag, ph, pgroup, pidx, cgroup, mid=None, put0=None, get0=None):
    a('s_barrier')
    a('s_add_u32 s58, s58, 1')
    a(f'v_mov_b32 v11, {RDY}')
    a('s_cmp_lg_u32 s3, 0')
    a(f's_cbranch_scc1 {tag}_nf')
    a(f's_mul_i32 s54, {pgroup}, {GSTR}')
    a(f's_mul_i32 s55, {pidx}, {FSTR}')
    a('s_add_u32 s54, s54, s55')
    a('s_add_u32 s54, s54, s11')
    a(f's_add_u32 s54, s54, {ph*PSTR & 0xffffffff}')
    put_flag(a, 's54')
    if put0:
        a('s_cmp_lg_u32 s10, 0')
        a(f's_cbranch_scc1 {tag}_nf')
        put0()
    a(f'{tag}_nf:')
    if mid: mid()
    a('s_cmp_lg_u32 s3, 0')
    a(f's_cbranch_scc1 {tag}_wait')
    a(f's_mul_i32 s54, {cgroup}, {GSTR}')
    a('s_add_u32 s54, s54, s11')
    a(f's_add_u32 s54, s54, {ph*PSTR & 0xffffffff}')
    spin_global(a, tag, 's54', log2(FSTR), lanes=0xffff)
    if get0:
        a('s_cmp_lg_u32 s10, 0')
        a(f's_cbranch_scc1 {tag}_g0')
        get0()
        a(f'{tag}_g0:')
    a('v_mov_b32 v10, s58')
    a('ds_write_b32 v11, v10')
    a(f's_branch {tag}_go')
    a(f'{tag}_wait:')
    if 'nocodepf' not in OPT:
        a('s_add_u32 s55, s10, s3')
        a('s_cmp_lg_u32 s55, 1')
        a(f's_cbranch_scc1 {tag}_np')
        code_touch(a, 80, 12, 13, 's55')
        a(f'{tag}_np:')
    a(f's_mov_b32 s55, {TIMEOUT * 32}')
    a(f'{tag}_w2:')
    a('ds_read_b32 v10, v11')
    a('s_waitcnt lgkmcnt(0)')
    a('v_cmp_ne_u32 vcc, s58, v10')
    a(f's_cbranch_vccz {tag}_go')
    a('s_sleep 1')
    a('s_sub_u32 s55, s55, 1')
    a('s_cmp_lg_u32 s55, 0')
    a(f's_cbranch_scc1 {tag}_w2')
    a(f'{tag}_go:')

def signal(a, ph, group, idx):
    stamp(a, 3)
    a('s_waitcnt vmcnt(0)')
    stamp(a, 4)
    a('s_barrier')

class Cfg:
    def __init__(s, name, kind, ph, K, woff, R, lead, xoff, ooff, roff=0, spoff=0):
        s.name, s.kind, s.ph, s.K, s.woff, s.R, s.lead = name, kind, ph, K, woff, R, lead
        s.xoff, s.ooff, s.roff, s.spoff = xoff, ooff, roff, spoff
        s.npanel = 1 if kind == 'res' else 3
        s.half = kind == 'w1'
        s.NF = 4 * s.npanel + (2 if s.half else 0)
        s.UB = 8192 + s.NF * 1024
        s.U = K // 32
        s.T = s.U // 2
        s.nw = s.npanel + (1 if s.half else 0)
        s.nload = 2 + s.nw
        assert lead <= R - 2 and lead % 2 == 0 and s.UB * R <= STAT - 64 and s.nload * R <= 63

C_QKV = Cfg('qkv', 'qkv', 0, 1024, WS_PQ, 7, 4, L_XA, 0, spoff=L_SPA)
C_WO  = Cfg('wo',  'res', 2, 1024, WS_PO, 12, 6, L_O, L_XB, roff=L_XA, spoff=L_SPB)
C_W1  = Cfg('w1',  'w1',  3, 1024, WS_P1, 7, 4, L_XB, L_H, spoff=L_SPB)
C_W2  = Cfg('w2',  'res', 4, 3584, WS_P2, 12, 6, L_H, L_XA + LSTR, roff=L_XB, spoff=L_SPA + LSTR)

def stats_issue(a, c):
    FR = 16
    a('v_and_b32 v1, 15, v0')
    a('v_lshrrev_b32 v2, 4, v0')
    a('v_lshlrev_b32 v3, 4, v1')
    a('v_lshl_add_u32 v3, v2, 10, v3')
    a('s_lshl_b32 s36, s26, 15')
    a('s_lshl_b32 s37, s3, 8')
    a('s_add_u32 s36, s36, s37')
    a('s_add_u32 s36, s36, s10')
    a(f's_add_u32 s36, s36, {c.spoff}')
    for i in range(8):
        if i: a('s_add_u32 s36, s36, 4096')
        a(f'buffer_load_dwordx4 v[{FR+4*i}:{FR+4*i+3}], v3, s[16:19], s36 offen{SC}')
    csoff, csld = (WS_CSQ, 3072 * 4) if c.kind == 'qkv' else (WS_CS1, 3584 * 4)
    if c.kind == 'qkv':
        a('s_min_u32 s37, s3, 2')
        a('s_lshl_b32 s37, s37, 12')
        a('s_lshl_b32 s38, s27, 8')
    else:
        a('s_lshl_b32 s37, s3, 8')
        a('s_mul_i32 s38, s27, 896')
    a('s_add_u32 s37, s37, s38')
    a(f's_add_u32 s37, s37, {csoff}')
    a('v_lshlrev_b32 v13, 2, v0')
    ncs = 16 if c.kind == 'qkv' else 8
    for i in range(ncs):
        a(f'buffer_load_dword v{FR+32+i}, v13, s[16:19], s37 offen{SC}')
        if i < ncs - 1: a(f's_add_u32 s37, s37, {csld}')
    return 8 + ncs

def stats_finish(a, c):
    FR = 16; S = STAT; CSR = FR + 32
    ncs = 16 if c.kind == 'qkv' else 8
    a('s_lshl_b32 s38, s3, 8')
    a(f's_add_u32 s38, s38, {S + 1024}')
    a('v_add_u32 v13, s38, v13')
    a('s_waitcnt vmcnt(0)')
    for i in range(1, ncs // 2): a(f'v_pk_add_f32 v[{CSR}:{CSR+1}], v[{CSR}:{CSR+1}], v[{CSR+2*i}:{CSR+1+2*i}]')
    a(f'v_add_f32 v{CSR}, v{CSR}, v{CSR+1}')
    a(f'ds_write_b32 v13, v{CSR}')
    for i in range(1, 8):
        for h in range(2):
            a(f'v_pk_add_f32 v[{FR+2*h}:{FR+2*h+1}], v[{FR+2*h}:{FR+2*h+1}], v[{FR+4*i+2*h}:{FR+4*i+2*h+1}]')
    for sw in ('v_permlane32_swap_b32', 'v_permlane16_swap_b32'):
        for r in range(4): a(f'v_mov_b32 v{FR+4+r}, v{FR+r}')
        for r in range(4): a(f'{sw} v{FR+r}, v{FR+4+r}')
        for r in range(4): a(f'v_add_f32 v{FR+r}, v{FR+r}, v{FR+4+r}')
    a(f's_mov_b32 s36, {f32bits(1.0/1024)}')
    a(f's_mov_b32 s37, {f32bits(1e-5)}')
    for r in range(4): a(f'v_mul_f32 v{FR+r}, s36, v{FR+r}')
    for q in (0, 2): a(f'v_fma_f32 v{FR+q+1}, -v{FR+q}, v{FR+q}, v{FR+q+1}')
    for q in (0, 2): a(f'v_max_f32 v{FR+q+1}, 0, v{FR+q+1}')
    for q in (0, 2): a(f'v_add_f32 v{FR+q+1}, s37, v{FR+q+1}')
    a(f'v_rsq_f32 v{FR+6}, v{FR+1}')
    a(f'v_rsq_f32 v{FR+7}, v{FR+3}')
    a(f'v_sub_f32 v{FR+4}, 0, v{FR}')
    a(f'v_sub_f32 v{FR+5}, 0, v{FR+2}')
    a('s_lshl_b32 s36, s3, 7')
    a(f's_add_u32 s36, s36, {S}')
    a('v_lshlrev_b32 v3, 3, v1')
    a('v_add_u32 v3, s36, v3')
    a(f'ds_write_b64 v3, v[{FR+4}:{FR+5}]')
    a(f'ds_write_b64 v3, v[{FR+6}:{FR+7}] offset:512')
    a('s_waitcnt lgkmcnt(0)')

def gemm_loader(a, c):
    n = c.name; R, U, T, lead, npw = c.R, c.U, c.T, c.lead, c.npanel
    stamp(a, 0)
    a('v_lshlrev_b32 v8, 4, v0')
    a('s_lshl_b32 s44, s3, 11')
    a(f's_mul_i32 s40, s26, {U * 8192}')
    a('s_add_u32 s40, s40, s10')
    a(f's_add_u32 s40, s40, {c.xoff}')
    a('s_add_u32 s40, s40, s44')
    a(f's_mul_i32 s45, s3, {npw * 1024}')
    a(f's_mul_i32 s41, s27, {U * c.NF * 1024}')
    a(f's_add_u32 s41, s41, {c.woff}')
    if c.half:
        a('s_lshl_b32 s46, s3, 9')
        a(f's_add_u32 s46, s46, {12 * 1024}')
        a('s_add_u32 s42, s41, s46')
        a('s_add_u32 s46, s46, 8192')
    a('s_add_u32 s41, s41, s45')
    a('s_add_u32 s45, s45, 8192')
    def issue_w(slot, first=False):
        if not first:
            a(f's_add_u32 m0, {slot}, s45')
            a('s_nop 0')
        for p in range(npw): a(f'buffer_load_dwordx4 v8, s[16:19], s41 offen offset:{p*1024}{SC} lds')
        if c.half:
            a(f's_add_u32 m0, {slot}, s46')
            a('s_mov_b32 exec_hi, 0')
            a(f'buffer_load_dwordx4 v8, s[16:19], s42 offen{SC} lds')
            a('s_mov_b32 exec_hi, -1')
            a(f's_add_u32 s42, s42, {c.NF*1024}')
        a(f's_add_u32 s41, s41, {c.NF*1024}')
    def issue_x(slot):
        a(f's_add_u32 m0, {slot}, s44')
        a('s_nop 0')
        a(f'buffer_load_dwordx4 v8, s[16:19], s40 offen{SC} lds')
        a(f'buffer_load_dwordx4 v8, s[16:19], s40 offen offset:1024{SC} lds')
        a('s_add_u32 s40, s40, 8192')
    def issue(first=False):
        issue_w('s43', first); issue_x('s43')
        a(f's_add_u32 s43, s43, {c.UB}')
        a(f's_cmp_eq_u32 s43, {c.UB*R}')
        a('s_cselect_b32 s43, 0, s43')
    def wpre():
        for u in range(lead): issue_w(u * c.UB)
        stamp(a, 1)
    if c in (C_QKV, C_WO):
        def mid():
            a('s_cmp_eq_u32 s10, 0')
            a(f's_cbranch_scc1 {n}_m0')
            wpre()
            a(f'{n}_m0:')
        def colflag(dst, idx):
            a(f's_mul_i32 {dst}, s27, {GSTR}')
            if idx:
                a(f's_mul_i32 s55, s26, {FSTR}')
                a(f's_add_u32 {dst}, {dst}, s55')
            a(f's_add_u32 {dst}, {dst}, {WS_FLG + 12*PSTR}')
        if c is C_QKV:
            put0 = lambda: (colflag('s54', True), put_flag(a, 's54'))
            get0 = lambda: (colflag('s54', False), spin_global(a, n + '_c', 's54', log2(FSTR), lanes=0xffff))
        else:
            put0 = None
            get0 = lambda: (a(f's_mov_b32 s54, {WS_PKF}'), spin_global(a, n + '_c', 's54', 4, n4=2))
        handoff(a, n, c.ph - 1, 's26', 's27', 's26', mid=mid, put0=put0, get0=get0)
        a('s_cmp_lg_u32 s10, 0')
        a(f's_cbranch_scc1 {n}_m1')
        wpre()
        a(f'{n}_m1:')
    else:
        handoff(a, n, c.ph - 1, 's26', 's27', 's26', mid=wpre)
    stamp(a, 2)
    for u in range(lead): issue_x(u * c.UB)
    a(f's_mov_b32 s43, {lead * c.UB}')
    nl = c.nload
    q = [u for u in range(lead) for _ in range(2)]
    def wait_units(last, extra=0):
        k = max([i for i, t in enumerate(q) if t <= last], default=-1)
        a(f's_waitcnt vmcnt({len(q) - 1 - k + extra})')
        del q[:k + 1]
    wait_units(1)
    a('s_barrier')
    stamp(a, 3)
    issued = lead; t = 0
    while 2 * t + 4 < lead + 0:
        for _ in range(2): issue(); q += [issued] * nl; issued += 1
        wait_units(2 * t + 3); a('s_barrier'); t += 1
    nfull = (U - issued) // 2
    a(f's_mov_b32 s50, {nfull}')
    a('s_add_u32 m0, s43, s45')
    a(f's_branch {n}_lbody')
    a(f'{n}_lhead:')
    a(f's_waitcnt vmcnt({(lead-2)*nl})')
    a('s_barrier')
    a(f'{n}_lbody:')
    issue(first=True); issue()
    a('s_add_u32 m0, s43, s45')
    a('s_sub_u32 s50, s50, 1')
    a('s_cmp_lg_u32 s50, 0')
    a(f's_cbranch_scc1 {n}_lhead')
    issued += 2 * nfull; t += nfull - 1
    assert issued == U
    extra = stats_issue(a, c) if c.kind != 'res' else 0
    while t < T:
        if t == T - 1 and c.kind != 'res': stats_finish(a, c)
        else: a(f's_waitcnt vmcnt({max(0, issued - (2*t+4))*nl + extra})')
        a('s_barrier'); t += 1
    stamp(a, 4)
    prof_flush(a, c.ph, 0)

def mfma(d, x, y): return f'v_mfma_f32_16x16x32_bf16 v[{d}:{d+3}], v[{x}:{x+3}], v[{y}:{y+3}], v[{d}:{d+3}]'
def wrapmask(nsteps, period):
    m = 0
    for i in range(nsteps):
        if (i + 1) % period == 0: m |= 1 << i
    return m

def res_epilogue(a, c, acc, FR):
    n = c.name
    for m in range(4 if acc else 0):
        d = FR + 4 * m
        for e in range(2):
            s_ = acc(m, e)
            a(f'v_cvt_pk_bf16_f32 v{d+2*e}, v{s_}, v{s_+1}')
            a(f'v_cvt_pk_bf16_f32 v{d+2*e+1}, v{s_+2}, v{s_+3}')
    if c is C_W2:
        a('s_cmp_lg_u32 s10, 0')
        a(f's_cbranch_scc1 {n}_final')
    a(f's_add_u32 s36, s36, {c.ooff}')
    for m in range(4):
        a(f'buffer_store_dwordx4 v[{FR+4*m}:{FR+4*m+3}], v8, s[16:19], s36 offen offset:{m*1024}{SC}')
    SQ = FR + 16
    a('v_mov_b32 v3, 0x3f803f80')
    for r in range(8): a(f'v_mov_b32 v{SQ+r}, 0')
    for r in range(4):
        for m in range(4):
            a(f'v_dot2c_f32_bf16 v{SQ+m}, v{FR+4*m+r}, v3')
            a(f'v_dot2c_f32_bf16 v{SQ+4+m}, v{FR+4*m+r}, v{FR+4*m+r}')
    for b in (0, 4):
        a(f'v_permlane32_swap_b32 v{SQ+b}, v{SQ+b+1}')
        a(f'v_permlane32_swap_b32 v{SQ+b+2}, v{SQ+b+3}')
    for b in (0, 4):
        a(f'v_add_f32 v{SQ+b}, v{SQ+b}, v{SQ+b+1}')
        a(f'v_add_f32 v{SQ+b+2}, v{SQ+b+2}, v{SQ+b+3}')
    for b in (0, 4): a(f'v_permlane16_swap_b32 v{SQ+b}, v{SQ+b+2}')
    a(f'v_add_f32 v{SQ}, v{SQ}, v{SQ+2}')
    a(f'v_add_f32 v{SQ+1}, v{SQ+4}, v{SQ+6}')
    a('v_and_b32 v13, 1, v2')
    a('v_lshrrev_b32 v14, 1, v2')
    a('v_lshl_add_u32 v13, v13, 1, v14')
    a('v_lshl_add_u32 v13, v13, 4, v1')
    a('v_lshlrev_b32 v13, 3, v13')
    a('s_lshl_b32 s37, s26, 5')
    a('s_lshl_b32 s38, s27, 1')
    a('s_add_u32 s37, s37, s38')
    a('s_add_u32 s37, s37, s33')
    a('s_lshl_b32 s37, s37, 10')
    a('s_lshl_b32 s38, s32, 9')
    a('s_add_u32 s37, s37, s38')
    a('s_add_u32 s37, s37, s10')
    a(f's_add_u32 s37, s37, {c.spoff}')
    a(f'buffer_store_dwordx2 v[{SQ}:{SQ+1}], v13, s[16:19], s37 offen{SC}')
    signal(a, c.ph, 's26', 's27')
    if acc: prof_flush(a, c.ph, 1)
    if c is C_W2:
        c.final = lambda: final_store(a, c, FR)

def gemm_consumer(a, c):
    n = c.name; R, U, T = c.R, c.U, c.T
    res = c.kind == 'res'
    NW = {'qkv': 6, 'w1': 8, 'res': 2}[c.kind]
    tiles = [(m, t) for t in range(min(NW, 6)) for m in range(4)]
    if c.kind == 'w1': tiles += [(m, t) for t in (6, 7) for m in range(2)]
    nsub = 2 if res else 1
    VX, VW = 4, 6
    FR = 16
    fset = nsub * (4 + NW) * 4
    ACC = FR + 2 * fset
    accmap = {mt: ACC + 4 * i for i, mt in enumerate(sorted(tiles))}
    c.vgpr = ACC + 4 * len(tiles)
    acc = lambda m, t: accmap[(m, t)]
    xf = lambda st, si, m: FR + st * fset + (si * (4 + NW) + m) * 4
    wf = lambda st, si, t: FR + st * fset + (si * (4 + NW) + 4 + t) * 4
    S = STAT
    stamp(a, 0)
    a('v_lshlrev_b32 v8, 4, v0')
    a('v_and_b32 v1, 15, v0')
    a('v_lshrrev_b32 v2, 4, v0')
    a('s_lshl_b32 s34, s32, 12')
    if c.kind == 'w1':
        a('s_lshl_b32 s35, s33, 11')
        a('s_add_u32 s34, s34, s35')
        a(f'v_add_u32 v{VX}, s34, v8')
        a(f'v_xor_b32 v{VX+1}, 2048, v{VX}')
        xsrc = lambda m: (VX + (m >> 1), (m & 1) * 1024)
        addr_regs = [VX, VX + 1, VW, VW + 1]
    else:
        a(f'v_add_u32 v{VX}, s34, v8')
        xsrc = lambda m: (VX, m * 1024)
        addr_regs = [VX, VW]
    a('s_lshl_b32 s34, s33, 11')
    a('s_add_u32 s34, s34, 8192')
    a(f'v_add_u32 v{VW}, s34, v8')
    if c.half: a(f'v_add_u32 v{VW+1}, {8192 + 12*1024}, v8')
    wsrc = lambda t: (VW, (t >> 1) * 4096 + (t & 1) * 1024) if t < 6 else (VW + 1, (t & 1) * 1024)
    if res:
        a('s_lshl_b32 s36, s26, 5')
        a('s_lshl_b32 s37, s27, 1')
        a('s_add_u32 s36, s36, s37')
        a('s_add_u32 s36, s36, s33')
        a('s_lshl_b32 s36, s36, 13')
        a('s_lshl_b32 s37, s32, 12')
        a('s_add_u32 s36, s36, s37')
        a('s_add_u32 s36, s36, s10')
        a(f's_add_u32 s37, s36, {c.roff}')
        for m in range(4):
            a(f'buffer_load_dwordx4 v[{FR+4*m}:{FR+4*m+3}], v8, s[16:19], s37 offen offset:{m*1024}{SC}')
        for m in range(4):
            a(f's_waitcnt vmcnt({3-m})')
            for e in range(2):
                d = acc(m, e); r = FR + 4 * m + 2 * e
                a(f'v_lshlrev_b32 v{d}, 16, v{r}')
                a(f'v_and_b32 v{d+1}, 0xffff0000, v{r}')
                a(f'v_lshlrev_b32 v{d+2}, 16, v{r+1}')
                a(f'v_and_b32 v{d+3}, 0xffff0000, v{r+1}')
    else:
        for r in range(ACC, c.vgpr): a(f'v_mov_b32 v{r}, 0')
    def reads(st):
        out = []
        for si in range(nsub):
            ub = si * c.UB
            for m in range(4):
                reg, off = xsrc(m)
                out.append(f'ds_read_b128 v[{xf(st,si,m)}:{xf(st,si,m)+3}], v{reg} offset:{ub + off}')
            for t in range(NW):
                reg, off = wsrc(t); d = wf(st, si, t)
                out.append(f'ds_read_b128 v[{d}:{d+3}], v{reg} offset:{ub + off}')
        return out
    def mfmas(st):
        out = []
        for si in range(nsub):
            for m, t in tiles:
                if c.kind == 'qkv' and t >= 4: out.append(mfma(acc(m, t), xf(st, si, m), wf(st, si, t)))
                else: out.append(mfma(acc(m, t), wf(st, si, t), xf(st, si, m)))
        return out
    step = c.UB * nsub; period = R // nsub; nsteps = U // nsub
    mask = wrapmask(nsteps + 1, period)
    a(f's_mov_b32 s44, {mask & 0xffffffff}')
    a(f's_mov_b32 s45, {mask >> 32}')
    a(f's_mov_b32 s43, {-(period-1)*step & 0xffffffff}')
    a('s_mov_b32 s41, 0')
    pre = ['s_bitcmp1_b64 s[44:45], s41', f's_cselect_b32 s42, s43, {step}', 's_add_u32 s41, s41, 1']
    adv = [f'v_add_u32 v{r}, s42, v{r}' for r in addr_regs]
    def weave(ms, fill, at=None):
        for i, m in enumerate(ms):
            for x in (at or {}).get(i, []): a(x)
            a(m)
            for x in (fill[i] if i < len(fill) else []): a(x)
    def spread(items, ngaps):
        out = [[] for _ in range(ngaps)]
        extra = max(0, len(items) - ngaps); k = 0
        for i in range(ngaps):
            cnt = 2 if i < extra else 1
            out[i] = items[k:k + cnt]; k += cnt
        assert k >= len(items)
        return out
    a('s_barrier')
    stamp(a, 1)
    for x in pre: a(x)
    for r in reads(0): a(r)
    for x in adv: a(x)
    nm = len(tiles) * nsub
    if not res:
        a('s_waitcnt lgkmcnt(0)')
        a(f'.p2align 6\n{n}_cloop:')
        weave(mfmas(0), spread(reads(1) + pre + adv, nm - 3), at={nm - 1: ['s_waitcnt lgkmcnt(0)', 's_barrier']})
        f = spread(reads(0) + pre + adv, nm - 4)
        f += [[f's_cmp_lt_u32 s41, {nsteps + 1}'], [], ['s_waitcnt lgkmcnt(0)'], [f's_cbranch_scc1 {n}_cloop']]
        weave(mfmas(1), f)
    else:
        a(f'.p2align 6\n{n}_cloop:')
        a('s_waitcnt lgkmcnt(0)')
        a('s_barrier')
        weave(mfmas(0), spread(reads(1) + pre + adv, nm))
        a('s_waitcnt lgkmcnt(0)')
        a(f's_cmp_lt_u32 s41, {nsteps}')
        a('s_barrier')
        a(f's_cbranch_scc0 {n}_clast')
        weave(mfmas(1), spread(reads(0) + pre + adv, nm))
        a(f's_branch {n}_cloop')
        a(f'{n}_clast:')
        weave(mfmas(1), [])
    stamp(a, 2)
    if res:
        res_epilogue(a, c, acc, FR)
        return
    a('s_lshl_b32 s34, s32, 8')
    a(f's_add_u32 s34, s34, {S}')
    a('v_lshlrev_b32 v3, 2, v1')
    if c.kind == 'w1':
        a('s_lshl_b32 s35, s33, 7')
        a('s_add_u32 s35, s35, s34')
        a('v_add_u32 v3, s35, v3')
        a('v_xor_b32 v14, 128, v3')
        msrc = lambda m: (3 if m < 2 else 14, (m & 1) * 64)
    else:
        a('v_add_u32 v3, s34, v3')
        msrc = lambda m: (3, m * 64)
    for m in range(4):
        r, o = msrc(m)
        a(f'ds_read_b32 v{FR+2*m}, v{r} offset:{o}')
        a(f'ds_read_b32 v{FR+2*m+1}, v{r} offset:{512 + o}')
    CS = FR + 8
    a('v_lshlrev_b32 v13, 4, v2')
    a(f'v_add_u32 v13, {S + 1024}, v13')
    a('s_lshl_b32 s35, s33, 7')
    a('v_add_u32 v15, s35, v13')
    def fold(d, cs, st, tmp):
        for h in range(2):
            a(f'v_pk_fma_f32 v[{d+2*h}:{d+2*h+1}], v[{cs+2*h}:{cs+2*h+1}], v[{st}:{st+1}], v[{d+2*h}:{d+2*h+1}] op_sel:[0,0,0] op_sel_hi:[1,0,1]')
        for h in range(2):
            a(f'v_pk_mul_f32 v[{d+2*h}:{d+2*h+1}], v[{d+2*h}:{d+2*h+1}], v[{st}:{st+1}] op_sel:[0,1] op_sel_hi:[1,1]')
        a(f'v_cvt_pk_bf16_f32 v{tmp}, v{d}, v{d+1}')
        a(f'v_cvt_pk_bf16_f32 v{tmp+1}, v{d+2}, v{d+3}')
    if c.kind == 'w1':
        for t in range(6): a(f'ds_read_b128 v[{CS+4*t}:{CS+4*t+3}], v15 offset:{(t>>1)*256 + (t&1)*64}')
        for t in (6, 7): a(f'ds_read_b128 v[{CS+4*t}:{CS+4*t+3}], v13 offset:{768 + (t&1)*64}')
        a('s_mul_i32 s36, s26, 112')
        a('s_mul_i32 s37, s27, 7')
        a('s_add_u32 s36, s36, s37')
        a('s_add_u32 s37, s36, s33')
        a('s_add_u32 s38, s36, 6')
        a('s_lshl_b32 s37, s37, 13')
        a('s_lshl_b32 s38, s38, 13')
        a('s_lshl_b32 s36, s32, 12')
        a('s_add_u32 s36, s36, s10')
        a(f's_add_u32 s36, s36, {c.ooff}')
        a('s_add_u32 s37, s37, s36')
        a('s_add_u32 s38, s38, s36')
        a('s_lshl_b32 s35, s33, 11')
        a('v_add_u32 v3, s35, v8')
        a('v_xor_b32 v14, 2048, v3')
        a('s_waitcnt lgkmcnt(0)')
        TM = CS + 32
        k = 0
        for p in range(4):
            for m in range(4 if p < 3 else 2):
                d = TM + 4 * (k % 4); k += 1
                for e in range(2): fold(acc(m, 2 * p + e), CS + 4 * (2 * p + e), FR + 2 * m, d + 2 * e)
                for r in range(4): a(f'v_pk_max_i16 v{d+r}, v{d+r}, 0')
                a(f'buffer_store_dwordx4 v[{d}:{d+3}], v{3 if m < 2 else 14}, s[16:19], {"s37" if p < 3 else "s38"} offen offset:{(m&1)*1024}{SC}')
            if p < 2: a(f's_add_u32 s37, s37, {2*8192}')
        signal(a, c.ph, 's26', 's27')
        prof_flush(a, c.ph, 1)
        return
    for t in range(4): a(f'ds_read_b128 v[{CS+4*t}:{CS+4*t+3}], v15 offset:{(t>>1)*256 + (t&1)*64}')
    a('v_lshlrev_b32 v14, 2, v1')
    a('v_add_u32 v14, s35, v14')
    a(f'v_add_u32 v14, {S + 1024 + 512}, v14')
    CV = CS + 16
    a(f'ds_read_b32 v{CV}, v14')
    a(f'ds_read_b32 v{CV+1}, v14 offset:64')
    a('v_lshlrev_b32 v14, 4, v2')
    a('v_add_u32 v14, s34, v14')
    MV = CV + 4
    a('s_waitcnt lgkmcnt(6)')
    for m in range(4):
        a(f'ds_read_b128 v[{MV+8*m}:{MV+8*m+3}], v14 offset:{m*64}')
        a(f'ds_read_b128 v[{MV+8*m+4}:{MV+8*m+7}], v14 offset:{512 + m*64}')
    TM = MV + 32
    assert TM + 16 <= ACC
    a('v_lshlrev_b32 v3, 4, v1')
    a('v_lshl_add_u32 v3, v2, 9, v3')
    a('v_and_b32 v13, 8, v1')
    a('v_lshl_add_u32 v15, v13, 4, v3')
    a('s_lshl_b32 s34, s27, 1')
    a('s_add_u32 s34, s34, s33')
    a('s_lshl_b32 s35, s26, 2')
    a('s_lshl_b32 s36, s32, 1')
    a('s_add_u32 s35, s35, s36')
    a('s_lshl_b32 s36, s34, 17')
    a('s_lshl_b32 s37, s35, 11')
    a('s_add_u32 s36, s36, s37')
    a('s_lshl_b32 s37, s36, 1')
    a('s_add_u32 s37, s37, s10')
    a(f's_add_u32 s37, s37, {L_KVF}')
    a('s_add_u32 s38, s37, 4096')
    a('s_add_u32 s36, s36, s10')
    a('s_lshl_b32 s34, s33, 14')
    a('s_lshl_b32 s35, s32, 13')
    a('s_add_u32 s34, s34, s35')
    a('v_add_u32 v9, s34, v15')
    a('v_add_u32 v10, s34, v3')
    a('s_lshl_b32 s35, s3, 12')
    a(f's_add_u32 s35, s35, {RING}')
    a('v_add_u32 v11, s35, v3')
    a(f's_mov_b32 s39, {f32bits(QSCALE)}')
    a('s_waitcnt lgkmcnt(0)')
    k = 0
    for m in range(4):
        d = TM + 4 * (k % 4); k += 1
        for e in range(2): fold(acc(m, 2 + e), CS + 4 * (2 + e), FR + 2 * m, d + 2 * e)
        a(f'buffer_store_dwordx4 v[{d}:{d+3}], v15, s[16:19], {"s37" if m < 2 else "s38"} offen offset:{(m&1)*128}{SC}')
        a(f'ds_write_b128 v9, v[{d}:{d+3}] offset:{(m>>1)*4096 + (m&1)*128}')
    for tp in range(2):
        for e in range(2):
            d = TM + 4 * (k % 4); k += 1
            for mm in range(2):
                m = 2 * tp + mm; s_ = acc(m, 4 + e)
                for h in range(2):
                    a(f'v_pk_fma_f32 v[{s_+2*h}:{s_+2*h+1}], v[{MV+8*m+2*h}:{MV+8*m+2*h+1}], v[{CV}:{CV+1}], v[{s_+2*h}:{s_+2*h+1}] op_sel:[0,{e},0] op_sel_hi:[1,{e},1]')
                for h in range(2):
                    a(f'v_pk_mul_f32 v[{s_+2*h}:{s_+2*h+1}], v[{s_+2*h}:{s_+2*h+1}], v[{MV+8*m+4+2*h}:{MV+8*m+5+2*h}]')
                a(f'v_cvt_pk_bf16_f32 v{d+2*mm}, v{s_}, v{s_+1}')
                a(f'v_cvt_pk_bf16_f32 v{d+2*mm+1}, v{s_+2}, v{s_+3}')
            a(f'buffer_store_dwordx4 v[{d}:{d+3}], v3, s[16:19], {"s37" if tp == 0 else "s38"} offen offset:{2048 + e*256}{SC}')
            a(f'ds_write_b128 v10, v[{d}:{d+3}] offset:{tp*4096 + 2048 + e*256}')
    for m in range(4): a(f'v_mul_f32 v{FR+2*m+1}, s39, v{FR+2*m+1}')
    for m in range(4):
        d = TM + 4 * (k % 4); k += 1
        for e in range(2): fold(acc(m, e), CS + 4 * e, FR + 2 * m, d + 2 * e)
        a(f'ds_write_b128 v11, v[{d}:{d+3}] offset:{(m>>1)*2048 + (m&1)*256}')
        if DBGQ: a(f'buffer_store_dwordx4 v[{d}:{d+3}], v3, s[16:19], s36 offen offset:{(m>>1)*2048 + (m&1)*256}{SC}')
    stamp(a, 3); stamp(a, 4)
    prof_flush(a, c.ph, 1)

def final_store(a, c, FR):
    a(f'{c.name}_final:')
    a('s_mov_b32 s20, s8')
    a('s_mov_b32 s21, s9')
    a(f's_mov_b32 s22, {2048*2048}')
    a('s_mov_b32 s23, 0x20000')
    a('v_and_b32 v3, 1, v2')
    a('v_lshlrev_b32 v3, 5, v3')
    a('v_lshrrev_b32 v13, 1, v2')
    a('v_lshl_add_u32 v3, v13, 4, v3')
    a('v_lshl_add_u32 v3, v1, 11, v3')
    a('s_lshl_b32 s36, s26, 18')
    a('s_lshl_b32 s37, s32, 17')
    a('s_add_u32 s36, s36, s37')
    a('s_lshl_b32 s37, s27, 7')
    a('s_add_u32 s36, s36, s37')
    a('s_lshl_b32 s37, s33, 6')
    a('s_add_u32 s36, s36, s37')
    for m in range(4):
        d = FR + 4 * m
        a(f'v_permlane16_swap_b32 v{d}, v{d+2}')
        a(f'v_permlane16_swap_b32 v{d+1}, v{d+3}')
        if m: a('s_add_u32 s36, s36, 32768')
        a(f'buffer_store_dwordx4 v[{d}:{d+3}], v3, s[20:23], s36 offen{SC}')
    stamp(a, 3)
    if dsl.PROF: a('s_waitcnt vmcnt(0)')
    stamp(a, 4)
    prof_flush(a, c.ph, 1)
    if 'dbgt' in OPT: a('s_waitcnt vmcnt(0)')
    dbgt(a, 13)
    a('s_endpgm')


N1 = int(([x[2:] for x in sys.argv if x.startswith('n1')] or [44])[0]); N2 = 112 - 2 * N1
UB2, R2, LEAD2 = 16384, 8, 6
EV_DRAIN, EV_LOAD = [int(x) for x in ([x[2:] for x in sys.argv if x.startswith('ev')] or ['24'])[0]]
def w2_loader(a):
    c = C_W2; n = 'w2'; lead = LEAD2; T1 = N1 // 2; T = (N1 + N2) // 2; U = N1 + N2
    stamp(a, 0)
    a('v_lshlrev_b32 v8, 4, v0')
    a('s_lshl_b32 s44, s3, 11')
    a('s_and_b32 s48, s27, 1')
    a(f's_mul_i32 s48, s48, {N1}')
    a(f's_mul_i32 s40, s26, 112')
    a('s_add_u32 s40, s40, s48')
    a('s_lshl_b32 s40, s40, 13')
    a('s_add_u32 s40, s40, s10')
    a(f's_add_u32 s40, s40, {c.xoff}')
    a('s_add_u32 s40, s40, s44')
    a('s_lshl_b32 s45, s3, 10')
    for r, x in (('s41', 0), ('s42', 1)):
        a(f's_xor_b32 {r}, s27, {x}')
        a(f's_mul_i32 {r}, {r}, 112')
        a(f's_add_u32 {r}, {r}, s48')
        a(f's_lshl_b32 {r}, {r}, 12')
        a(f's_add_u32 {r}, {r}, {c.woff - x*4096 + 0}')
        a(f's_add_u32 {r}, {r}, s45')
    a('s_add_u32 s42, s42, 4096')
    a('s_add_u32 s45, s45, 8192')
    a(f's_sub_u32 s48, {N1}, s48')
    def issue_w(slot, wide):
        a(f's_add_u32 m0, {slot}, s45')
        a('s_nop 0')
        a(f'buffer_load_dwordx4 v8, s[16:19], s41 offen{SC} lds')
        if wide:
            a('s_add_u32 m0, m0, 4096')
            a('s_add_u32 s41, s41, 4096')
            a(f'buffer_load_dwordx4 v8, s[16:19], s42 offen{SC} lds')
            a('s_add_u32 s42, s42, 4096')
        else:
            a('s_add_u32 s41, s41, 4096')
    def issue_x(slot):
        a(f's_add_u32 m0, {slot}, s44')
        a('s_nop 0')
        a(f'buffer_load_dwordx4 v8, s[16:19], s40 offen{SC} lds')
        a(f'buffer_load_dwordx4 v8, s[16:19], s40 offen offset:1024{SC} lds')
        a('s_add_u32 s40, s40, 8192')
    def issue(wide):
        issue_w('s43', wide); issue_x('s43')
        a(f's_add_u32 s43, s43, {UB2}')
        a(f's_and_b32 s43, s43, {UB2*R2 - 1}')
    def wpre():
        for u in range(lead): issue_w(u * UB2, True)
        stamp(a, 1)
    handoff(a, n, c.ph - 1, 's26', 's27', 's26', mid=wpre)
    stamp(a, 2)
    for u in range(lead): issue_x(u * UB2)
    a(f's_mov_b32 s43, {lead * UB2}')
    a('s_add_u32 s46, s2, s3')
    a('s_cmp_eq_u32 s10, 0')
    a('s_cselect_b32 s46, 1, s46')
    a('s_cmp_lg_u32 s46, 0')
    a(f's_cbranch_scc1 {n}_nt')
    a(f's_mov_b32 s46, {WS_TAG}')
    put_flag(a, 's46')
    a(f'{n}_nt:')
    a('s_cmp_eq_u32 s10, 0')
    a(f's_cselect_b32 s46, 0, {PSTR}')
    a(f's_add_u32 s46, s46, {WS_FLG + 10*PSTR}')
    a(f's_mul_i32 s47, s26, {GSTR}')
    a('s_add_u32 s46, s46, s47')
    a('s_xor_b32 s47, s27, 1')
    a(f's_mul_i32 s47, s47, {FSTR}')
    a('s_add_u32 s47, s47, s46')
    a(f's_mul_i32 s49, s27, {FSTR}')
    a('s_add_u32 s46, s46, s49')
    a('v_mov_b32 v14, 0')
    cnt = lambda u: 2 if u < lead else (4 if u < N1 else 3)
    def allowed(t, issued): return sum(cnt(u) for u in range(2 * t + 4, issued))
    a(f's_waitcnt vmcnt({allowed(-1, lead)})')
    a('s_barrier')
    stamp(a, 3)
    BD = T1 + 2 * EV_DRAIN + 1; BL = T1 + 2 * EV_LOAD + 1
    def epoch_desc(t):
        us = [u for u in (lead + 2 * t, lead + 2 * t + 1) if u < U]
        issued = min(U, lead + 2 * t + 2)
        ev = []
        if us and us[0] == N1: ev.append('jump')
        if t == BD: ev.append('flag')
        if t == BL - 2: ev.append('poll')
        if t == BL - 1: ev.append('check')
        return (tuple(u < N1 for u in us), allowed(t, issued), tuple(ev))
    t = 0; seg = 0
    while t < T:
        d = epoch_desc(t); k = 1
        while not d[2] and t + k < T and epoch_desc(t + k) == d: k += 1
        if k > 1:
            a(f's_mov_b32 s50, {k}')
            a(f'{n}_l{seg}:')
        if 'jump' in d[2]:
            a('s_lshl_b32 s49, s48, 13')
            a('s_add_u32 s40, s40, s49')
            a('s_lshl_b32 s49, s48, 12')
            a('s_add_u32 s41, s41, s49')
        if 'flag' in d[2]:
            a('s_cmp_lg_u32 s3, 0')
            a(f's_cbranch_scc1 {n}_nf2')
            put_flag(a, 's46')
            a(f'{n}_nf2:')
        for wide in d[0]: issue(wide)
        if 'poll' in d[2]: a(f'buffer_load_dwordx2 v[16:17], v14, s[16:19], s47 offen{SC}')
        if 'check' in d[2]:
            a(f's_waitcnt vmcnt({3 * len(d[0])})')
            a('v_xor_b32 v16, s52, v16')
            a('v_xor_b32 v17, s53, v17')
            a('v_or_b32 v16, v16, v17')
            a('v_cmp_ne_u32 vcc, 0, v16')
            a(f's_cbranch_vccz {n}_x_ok')
            spin_global(a, n + '_x', 's47', 2, lanes=1)
        a(f's_waitcnt vmcnt({d[1]})')
        a('s_barrier')
        if k > 1:
            a('s_sub_u32 s50, s50, 1')
            a('s_cmp_lg_u32 s50, 0')
            a(f's_cbranch_scc1 {n}_l{seg}')
            seg += 1
        t += k
    stamp(a, 4)
    prof_flush(a, c.ph, 0)

def w2_consumer(a):
    c = C_W2; n = 'w2'
    VX, VW, FR, ACC, PAC = 4, 6, 16, 112, 144
    acc = lambda m, t: (ACC if t < 2 else PAC) + (m * 2 + (t & 1)) * 4
    stamp(a, 0)
    a('v_lshlrev_b32 v8, 4, v0')
    a('v_and_b32 v1, 15, v0')
    a('v_lshrrev_b32 v2, 4, v0')
    a('s_lshl_b32 s34, s32, 12')
    a('v_add_u32 v9, s34, v8')
    a('s_lshl_b32 s34, s33, 11')
    a('s_add_u32 s34, s34, 8192')
    a('v_add_u32 v10, s34, v8')
    a(f'v_mov_b32 v{VX}, v9')
    a(f'v_mov_b32 v{VW}, v10')
    a('s_lshl_b32 s36, s26, 5')
    a('s_lshl_b32 s37, s27, 1')
    a('s_add_u32 s36, s36, s37')
    a('s_add_u32 s36, s36, s33')
    a('s_lshl_b32 s36, s36, 13')
    a('s_lshl_b32 s37, s32, 12')
    a('s_add_u32 s36, s36, s37')
    a('s_add_u32 s36, s36, s10')
    a(f's_add_u32 s37, s36, {c.roff}')
    for m in range(4):
        a(f'buffer_load_dwordx4 v[{FR+4*m}:{FR+4*m+3}], v8, s[16:19], s37 offen offset:{m*1024}{SC}')
    for r in range(PAC, PAC + 32): a(f'v_mov_b32 v{r}, 0')
    a('s_cmp_eq_u32 s10, 0')
    a(f's_cselect_b32 s38, 0, {8*MB_}')
    a(f's_add_u32 s38, s38, {WS_EX}')
    a('s_lshl_b32 s39, s26, 19')
    a('s_add_u32 s38, s38, s39')
    a('s_lshl_b32 s39, s3, 13')
    a('s_add_u32 s38, s38, s39')
    a('s_lshl_b32 s39, s27, 15')
    a('s_add_u32 s39, s39, s38')
    a('s_xor_b32 s38, s39, 32768')
    for m in range(4):
        a(f's_waitcnt vmcnt({3-m})')
        for e in range(2):
            d = acc(m, e); r = FR + 4 * m + 2 * e
            a(f'v_lshlrev_b32 v{d}, 16, v{r}')
            a(f'v_and_b32 v{d+1}, 0xffff0000, v{r}')
            a(f'v_lshlrev_b32 v{d+2}, 16, v{r+1}')
            a(f'v_and_b32 v{d+3}, 0xffff0000, v{r+1}')
    def weave(ms, fill, at=None):
        for i, m in enumerate(ms):
            for x in (at or {}).get(i, []): a(x)
            a(m)
            for x in (fill[i] if i < len(fill) else []): a(x)
    def spread(items, ngaps):
        out = [[] for _ in range(ngaps)]
        extra = max(0, len(items) - ngaps); k = 0
        for i in range(ngaps):
            cnt = 2 if i < extra else 1
            out[i] = items[k:k + cnt]; k += cnt
        assert k >= len(items)
        return out
    def mk(nsub, NW):
        fs = nsub * (4 + NW) * 4
        xf = lambda st, si, m: FR + st * fs + (si * (4 + NW) + m) * 4
        wf = lambda st, si, t: FR + st * fs + (si * (4 + NW) + 4 + t) * 4
        def reads(st):
            out = []
            for si in range(nsub):
                out += [f'ds_read_b128 v[{xf(st,si,m)}:{xf(st,si,m)+3}], v{VX} offset:{si*UB2 + m*1024}' for m in range(4)]
                out += [f'ds_read_b128 v[{wf(st,si,t)}:{wf(st,si,t)+3}], v{VW} offset:{si*UB2 + (t>>1)*4096 + (t&1)*1024}' for t in range(NW)]
            return out
        def mfmas(st): return [mfma(acc(m, t), wf(st, si, t), xf(st, si, m)) for si in range(nsub) for t in range(NW) for m in range(4)]
        adv = [f's_add_u32 s42, s42, {nsub*UB2}', f's_and_b32 s42, s42, {UB2*R2 - 1}', 's_add_u32 s41, s41, 1',
               f'v_add_u32 v{VX}, s42, v9', f'v_add_u32 v{VW}, s42, v10']
        return reads, mfmas, adv
    a('s_mov_b32 s41, 0')
    a('s_mov_b32 s42, 0')
    a('s_barrier')
    stamp(a, 1)
    reads, mfmas, adv = mk(1, 4)
    for r in reads(0) + adv: a(r)
    a('s_waitcnt lgkmcnt(0)')
    a(f'.p2align 6\n{n}_c1:')
    weave(mfmas(0), spread(reads(1) + adv, 11), at={15: ['s_waitcnt lgkmcnt(0)', 's_barrier']})
    f = spread(reads(0) + adv, 11) + [[], [f's_cmp_lt_u32 s41, {N1 + 1}'], [], ['s_waitcnt lgkmcnt(0)'], [f's_cbranch_scc1 {n}_c1']]
    weave(mfmas(1), f)
    stamp(a, 5)
    reads, mfmas, adv = mk(2, 2)
    a(f's_mov_b32 s42, {(N1 % R2) * UB2}')
    a(f'v_add_u32 v{VX}, s42, v9')
    a(f'v_add_u32 v{VW}, s42, v10')
    a('s_mov_b32 s41, 0')
    for r in reads(0) + adv: a(r)
    a('s_add_u32 s40, s38, 4096')
    for i in range(8):
        a(f'buffer_store_dwordx4 v[{PAC+4*i}:{PAC+4*i+3}], v8, s[16:19], {"s38" if i < 4 else "s40"} offen offset:{(i&3)*1024}{SC}')
    a(f's_mov_b32 s44, {(1 << (2*EV_DRAIN + 1)) | (1 << (2*EV_LOAD + 1))}')
    a(f'.p2align 6\n{n}_c2:')
    a('s_waitcnt lgkmcnt(0)')
    a('s_barrier')
    a(f'{n}_c2b:')
    weave(mfmas(0), spread(reads(1) + adv, 16))
    a('s_waitcnt lgkmcnt(0)')
    a(f's_cmp_lt_u32 s41, {N2 // 2}')
    a('s_barrier')
    a(f's_cbranch_scc0 {n}_clast')
    weave(mfmas(1), spread(reads(0) + adv, 15) + [['s_bitcmp1_b32 s44, s41']])
    a(f's_cbranch_scc0 {n}_c2')
    a(f's_cmp_eq_u32 s41, {2*EV_DRAIN + 1}')
    a(f's_cbranch_scc0 {n}_ev2')
    a('s_waitcnt vmcnt(0)')
    a(f's_branch {n}_c2')
    a(f'{n}_ev2:')
    a('s_waitcnt lgkmcnt(0)')
    a('s_barrier')
    a('s_add_u32 s40, s39, 4096')
    for i in range(8):
        a(f'buffer_load_dwordx4 v[{PAC+4*i}:{PAC+4*i+3}], v8, s[16:19], {"s39" if i < 4 else "s40"} offen offset:{(i&3)*1024}{SC}')
    a(f's_branch {n}_c2b')
    a(f'{n}_clast:')
    weave(mfmas(1), [])
    stamp(a, 6)
    a('s_waitcnt vmcnt(0)')
    stamp(a, 2)
    for r in range(0, 32, 2): a(f'v_pk_add_f32 v[{ACC+r}:{ACC+r+1}], v[{ACC+r}:{ACC+r+1}], v[{PAC+r}:{PAC+r+1}]')
    res_epilogue(a, c, acc, FR)

import pack
pack.WS_PQ, pack.WS_PO, pack.WS_P1, pack.WS_P2, pack.WS_CSQ, pack.WS_CS1 = WS_PQ, WS_PO, WS_P1, WS_P2, WS_CSQ, WS_CS1
RING = 4 * 32768
Q, KB, VB, P, ONES, L, IDX, O, CI, S_ = (8, 16), (24, 32), (40, 48), 56, 64, (68, 72), 76, (80, 96), (112, 128), (144, 160)
VA, VBASE = 4, 5
def m32(d, x, y, c): return f'v_mfma_f32_32x32x16_bf16 v[{d}:{d+15}], v[{x}:{x+3}], v[{y}:{y+3}], ' + (f'v[{c}:{c+15}]' if c is not None else '0')
def sm(d): return f'v_smfmac_f32_16x16x64_bf16 v[{d}:{d+3}], v[{ONES}:{ONES+3}], v[{P}:{P+7}], v{IDX}'

def attn_loader(a):
    n = 'at'
    stamp(a, 0)
    a('v_lshlrev_b32 v2, 4, v0')
    a('s_lshr_b32 s28, s3, 1')
    a('s_and_b32 s29, s3, 1')
    a('s_lshl_b32 s12, s27, 1')
    a('s_add_u32 s12, s12, s28')
    a('s_lshl_b32 s12, s12, 18')
    a('s_lshl_b32 s13, s29, 13')
    a('s_add_u32 s12, s12, s13')
    a('s_add_u32 s12, s12, s10')
    a(f's_add_u32 s12, s12, {L_KVF}')
    a('s_lshl_b32 s15, s3, 13')
    a('s_add_u32 s15, s15, 32768')
    a('s_lshl_b32 s13, s26, 14')
    a('s_add_u32 s13, s13, s12')
    def issue_chunk():
        a('s_cmp_eq_u32 s12, s13')
        a('s_cselect_b32 s14, 16384, 0')
        a('s_add_u32 s12, s12, s14')
        a('s_mov_b32 m0, s15')
        a('s_add_u32 s14, s12, 4096')
        for i in range(4): a(f'buffer_load_dwordx4 v2, s[16:19], s12 offen offset:{i*1024}{SC} lds')
        a('s_add_u32 m0, s15, 4096')
        a('s_add_u32 s12, s12, 16384')
        for i in range(4): a(f'buffer_load_dwordx4 v2, s[16:19], s14 offen offset:{i*1024}{SC} lds')
        a('s_add_u32 s15, s15, 32768')
        a(f's_and_b32 s15, s15, {RING-1}')
    stamp(a, 1)
    a('s_barrier')
    handoff(a, n, 0, 's27', 's26', 's27')
    stamp(a, 2)
    issue_chunk(); issue_chunk()
    stamp(a, 3)
    a('s_cmp_eq_u32 s10, 0')
    a(f's_cbranch_scc1 {n}_ldpack')
    a('s_mov_b32 s20, 13')
    a(f'{n}_lloop:')
    issue_chunk()
    a('s_waitcnt vmcnt(16)')
    a('s_barrier')
    a('s_sub_u32 s20, s20, 1')
    a('s_cmp_lg_u32 s20, 0')
    a(f's_cbranch_scc1 {n}_lloop')
    a('s_waitcnt vmcnt(8)')
    a('s_barrier')
    a('s_waitcnt vmcnt(0)')
    a('s_barrier')
    a(f's_branch {n}_lend')
    a(f'{n}_ldpack:')
    PK = 8
    a('s_mov_b32 s35, 0x20000')
    a('s_lshl_b32 s45, s3, 12')
    a(f's_add_u32 s45, s45, {RING}')
    a('s_cmp_lt_u32 s2, 32')
    a(f's_cbranch_scc1 {n}_pk_wo')
    a('s_cmp_lt_u32 s2, 144')
    a(f's_cbranch_scc1 {n}_pk_w1')
    a('s_sub_u32 s46, s2, 144')
    a('s_lshr_b32 s47, s46, 4')
    a('s_and_b32 s46, s46, 15')
    pack.decode(a, 32, 'w2', 's46', 's47', 's3', ('s62', 's63'), 4)
    a(f's_branch {n}_pk1')
    a(f'{n}_pk_wo:')
    a('s_lshr_b32 s47, s2, 4')
    a('s_and_b32 s46, s2, 15')
    pack.decode(a, 32, 'wo', 's46', 's47', 's3', ('s56', 's57'), 4)
    a(f's_branch {n}_pk1')
    a(f'{n}_pk_w1:')
    a('s_cmp_ge_u32 s2, 88')
    a('s_cselect_b32 s47, 1, 0')
    a('s_cselect_b32 s46, 88, 32')
    a('s_sub_u32 s46, s2, s46')
    pack.decode(a, 32, 'w1', 's46', 's47', 's3', ('s60', 's61'), 4)
    a(f'{n}_pk1:')
    pack.setup(a, 32, 0, PK, 's45')
    q = [('c', 1)] * 8 + [('c', 2)] * 8
    def need(tag):
        last = max([i for i, t in enumerate(q) if t == tag], default=-1)
        a(f's_waitcnt vmcnt({len(q) - 1 - last})')
        del q[:last + 1]
    LOADS = {0: 0, 3: 1, 6: 2, 9: 3}
    FINS = {3: 0, 6: 1, 9: 2, 12: 3}
    for e in range(15):
        if e + 3 < 16: issue_chunk(); q += [('c', e + 3)] * 8
        if e in FINS:
            u = FINS[e]
            need(('p', u))
            pack.finish1(a, 32, 2, PK, 's[16:19]', st=SC, flip=None); q += [('s', u)] * 4
        if e in LOADS:
            pack.issue1(a, 32, PK, wrap=('s45', True)); q += [('p', LOADS[e])] * 4
        if e == 13:
            a('s_cmp_eq_u32 s41, 0')
            a(f's_cbranch_scc1 {n}_nocs')
            pack.colsum1(a, 32, 0, PK, 's[16:19]', st=SC)
            a(f'{n}_nocs:')
        if e == 14: a('s_waitcnt vmcnt(0)'); q.clear()
        else: need(('c', e + 1))
        a('s_barrier')
    a('s_cmp_lg_u32 s3, 0')
    a(f's_cbranch_scc1 {n}_lend')
    a('s_lshl_b32 s46, s2, 3')
    a(f's_add_u32 s46, s46, {WS_PKF}')
    put_flag(a, 's46')
    a(f'{n}_lend:')
    a('s_barrier')
    stamp(a, 4)
    prof_flush(a, 1, 0)

def attn_consumer(a):
    n = 'at'; S = S_
    stamp(a, 0)
    a('v_lshlrev_b32 v2, 4, v0')
    a('s_lshl_b32 s28, s27, 1')
    a('s_add_u32 s28, s28, s33')
    a('s_lshl_b32 s13, s3, 12')
    a(f's_add_u32 s13, s13, {RING}')
    a('v_add_u32 v3, s13, v2')
    a('s_waitcnt lgkmcnt(0)')
    for i in range(4): a(f'ds_read_b128 v[{Q[0]+4*i}:{Q[0]+4*i+3}], v3 offset:{i*1024}')
    a('v_lshrrev_b32 v3, 2, v0')
    a('v_mov_b32 v6, 0x3f803f80')
    a('v_and_b32 v1, 1, v3')
    a('v_cmp_eq_u32 vcc, 0, v1')
    a(f'v_cndmask_b32 v{ONES}, 0, v6, vcc')
    a(f'v_mov_b32 v{ONES+1}, v{ONES}')
    a(f'v_xor_b32 v{ONES+2}, v6, v{ONES}')
    a(f'v_mov_b32 v{ONES+3}, v{ONES+2}')
    a('v_and_b32 v1, 1, v0')
    a('v_cmp_eq_u32 vcc, 0, v1')
    a('v_mov_b32 v6, 0x44444444')
    a('v_mov_b32 v7, 0xeeeeeeee')
    a(f'v_cndmask_b32 v{IDX}, v7, v6, vcc')
    for r in list(range(L[0], L[0] + 8)) + list(range(O[0], O[0] + 32)) + list(range(P, P + 8)) + list(range(VB[1] + 4, VB[1] + 8)):
        a(f'v_mov_b32 v{r}, 0')
    a('s_lshl_b32 s14, s33, 14')
    a(f'v_add_u32 v{VBASE}, s14, v2')
    a(f'v_mov_b32 v{VA}, v{VBASE}')
    a('s_mov_b32 s20, 0')
    a('s_mov_b32 s21, 0')
    a('s_waitcnt lgkmcnt(0)')
    a('s_barrier')
    stamp(a, 5)
    def rd(dst, off): a(f'ds_read_b128 v[{dst}:{dst+3}], v{VA} offset:{off}')
    rd(KB[0], 0); rd(KB[0] + 4, 1024); rd(VB[0], 2048); rd(VB[0] + 4, 3072)
    a('s_waitcnt lgkmcnt(2)')
    for qi in range(2):
        a(m32(S[qi], KB[0], Q[qi], None))
        a(m32(S[qi], KB[0] + 4, Q[qi] + 4, S[qi]))
    for qi in range(2):
        s_, t_ = S[qi], 6 + qi
        a(f'v_max3_f32 v{t_}, v{s_}, v{s_+1}, v{s_+2}')
        for r in range(3, 15, 2): a(f'v_max3_f32 v{t_}, v{t_}, v{s_+r}, v{s_+r+1}')
        a(f'v_max_f32 v{t_}, v{t_}, v{s_+15}')
    a('v_mov_b32 v1, v6')
    a('v_mov_b32 v3, v7')
    a('v_permlane32_swap_b32 v6, v1')
    a('v_permlane32_swap_b32 v7, v3')
    a('v_max_f32 v6, v6, v1')
    a('v_max_f32 v7, v7, v3')
    for r in range(16): a(f'v_sub_f32 v{CI[0]+r}, 0, v6')
    a(m32(S[0], KB[0], Q[0], CI[0]))
    a(m32(S[0], KB[0] + 4, Q[0] + 4, S[0]))
    for r in range(16): a(f'v_sub_f32 v{CI[1]+r}, 0, v7')
    a('s_waitcnt vmcnt(0) lgkmcnt(0)')
    a('s_barrier')
    stamp(a, 1)
    a(f'.p2align 6\n{n}_loop:')
    for kt in range(4):
        for qi in range(2):
            sa, sb = S[qi], S[1 - qi]
            E = lambda *r: [a(f'v_exp_f32 v{sa+i}, v{sa+i}') for i in r]
            C = lambda *r: [a(f'v_cvt_pk_bf16_f32 v{P+i}, v{sa+2*i}, v{sa+2*i+1}') for i in r]
            kn = KB[kt % 2] if qi == 0 else KB[(kt + 1) % 2]
            vp = VB[(kt + 1) % 2] if qi == 0 else VB[kt % 2]
            nb = (kt + 1) % 2; off = ((kt + 1) % 4) * 4096
            f = [[] for _ in range(5)]
            if qi == 0:
                f[0] = [('rd', KB[nb], off)]; f[1] = [('rd', KB[nb] + 4, off + 1024)]
                f[2] = [('rd', VB[nb] + 4, off + 3072)]; f[3] = [('rd', VB[nb], off + 2048)]
                f[4] = ['s_waitcnt lgkmcnt(2)']
            else:
                f[1] = ['s_waitcnt lgkmcnt(0)']
                if kt == 1:
                    f[0] = ['s_add_u32 s21, s21, 32768']; f[2] = [f's_and_b32 s21, s21, {RING-1}']
                    f[3] = ['s_add_u32 s20, s20, 1']
                if kt == 2: f[3] = ['s_barrier', f'v_add_u32 v{VA}, s21, v{VBASE}']
                if kt == 3: f[0] = ['s_cmp_lg_u32 s20, 16']
            def F(i):
                for x in f[i]:
                    if isinstance(x, tuple): rd(x[1], x[2])
                    else: a(x)
            a(m32(sb, kn, Q[1 - qi], CI[1 - qi])); F(0); E(0, 1, 2)
            a(sm(L[1 - qi])); F(1); E(3, 4, 5)
            a(m32(O[1 - qi], vp + 4, P + 4, O[1 - qi])); F(2); E(6, 7); C(0, 1)
            a(m32(sb, kn + 4, Q[1 - qi] + 4, sb)); F(3); C(2, 3); E(8, 9)
            a(m32(O[qi], VB[kt % 2], P, O[qi])); F(4); E(10, 11, 12, 13, 14, 15); C(4, 5, 6, 7)
    a(f's_cbranch_scc1 {n}_loop')
    stamp(a, 2)
    a(sm(L[1]))
    a(m32(O[1], VB[1] + 4, P + 4, O[1]))
    for qi in range(2): a(f'v_add_f32 v{L[qi]}, v{L[qi]}, v{L[qi]+1}')
    a(f'v_add_f32 v1, v{L[0]}, v{L[1]}')
    for r in range(0, 32, 2): a(f'v_pk_fma_f32 v[6:7], v[{O[0]+r}:{O[0]+r+1}], 0, v[6:7]' if r else f'v_pk_mul_f32 v[6:7], v[{O[0]}:{O[0]+1}], 0')
    a('v_add_f32 v1, v1, v6')
    a('v_add_f32 v1, v1, v7')
    a(f's_mov_b32 s23, {f32bits(2.0**100)}')
    a('v_cmp_ngt_f32 vcc, s23, v1')
    a(f's_cbranch_vccnz {n}_slow')
    a(f'{n}_fin:')
    a(f'v_rcp_f32 v6, v{L[0]}')
    a(f'v_rcp_f32 v7, v{L[1]}')
    a('v_and_b32 v3, 15, v0')
    a('v_lshlrev_b32 v3, 4, v3')
    a('v_lshrrev_b32 v1, 5, v0')
    a('v_lshl_add_u32 v3, v1, 8, v3')
    a('v_bfe_u32 v1, v0, 4, 1')
    a('v_lshl_add_u32 v3, v1, 10, v3')
    a('s_lshl_b32 s24, s26, 5')
    a('s_add_u32 s24, s24, s28')
    a('s_lshl_b32 s24, s24, 13')
    a('s_lshl_b32 s25, s32, 12')
    a('s_add_u32 s24, s24, s25')
    a('s_add_u32 s24, s24, s10')
    a(f's_add_u32 s24, s24, {L_O}')
    for qi in range(2):
        for r in range(0, 16, 2):
            a(f'v_pk_mul_f32 v[{O[qi]+r}:{O[qi]+r+1}], v[{O[qi]+r}:{O[qi]+r+1}], v[6:7] op_sel:[0,{qi}] op_sel_hi:[1,{qi}]')
        for c in range(2):
            d = S[0] + 8 * qi + 4 * c
            for k, r in enumerate((4*c, 4*c + 2, 8 + 4*c, 8 + 4*c + 2)):
                a(f'v_cvt_pk_bf16_f32 v{d+k}, v{O[qi]+r}, v{O[qi]+r+1}')
            a(f'buffer_store_dwordx4 v[{d}:{d+3}], v3, s[16:19], s24 offen offset:{qi*2048 + c*512}{SC}')
    signal(a, 1, 's26', 's27')
    prof_flush(a, 1, 1)

def attn_slow(a):
    n = 'at'; S = S_
    a(f'{n}_slow:')
    M, LS, SA, KF, VF, OT = 6, 7, S[0], KB[0], VB[0], S[1]
    a('s_lshl_b32 s29, s28, 18')
    a('s_add_u32 s29, s29, s10')
    a(f's_add_u32 s29, s29, {L_KVF}')
    a('s_mov_b32 s21, 0')
    a(f'{n}_sq:')
    a(f'v_mov_b32 v{M}, {f32bits(-3.0e38)}')
    a(f'v_mov_b32 v{LS}, 0')
    for r in range(16): a(f'v_mov_b32 v{OT+r}, 0')
    a('s_mov_b32 s20, 0')
    a('s_mov_b32 s12, s29')
    a(f'{n}_sloop:')
    for i, d in enumerate((KF, KF + 4, VF, VF + 4)):
        a(f'buffer_load_dwordx4 v[{d}:{d+3}], v2, s[16:19], s12 offen offset:{i*1024}{SC}')
    a('s_add_u32 s12, s12, 4096')
    a('s_waitcnt vmcnt(0)')
    a(m32(SA, KF, Q[0], None))
    a(m32(SA, KF + 4, Q[0] + 4, SA))
    a(f'v_max3_f32 v1, v{SA}, v{SA+1}, v{SA+2}')
    for r in range(3, 15, 2): a(f'v_max3_f32 v1, v1, v{SA+r}, v{SA+r+1}')
    a(f'v_max3_f32 v1, v1, v{SA+15}, v{M}')
    a('v_mov_b32 v3, v1')
    a('v_permlane32_swap_b32 v1, v3')
    a('v_max_f32 v1, v1, v3')
    a(f'v_sub_f32 v3, v{M}, v1')
    a('v_exp_f32 v3, v3')
    a(f'v_mov_b32 v{M}, v1')
    for r in range(16): a(f'v_sub_f32 v{SA+r}, v{SA+r}, v1')
    for r in range(16): a(f'v_exp_f32 v{SA+r}, v{SA+r}')
    for r in range(16): a(f'v_mul_f32 v{OT+r}, v{OT+r}, v3')
    a(f'v_mul_f32 v{LS}, v{LS}, v3')
    for r in range(8): a(f'v_cvt_pk_bf16_f32 v{P+r}, v{SA+2*r}, v{SA+2*r+1}')
    for r in range(16): a(f'v_add_f32 v{LS}, v{LS}, v{SA+r}')
    a(m32(OT, VF, P, OT))
    a(m32(OT, VF + 4, P + 4, OT))
    a('s_add_u32 s20, s20, 1')
    a('s_cmp_lg_u32 s20, 64')
    a('s_nop 7')
    a(f's_cbranch_scc1 {n}_sloop')
    a(f'v_mov_b32 v3, v{LS}')
    a(f'v_permlane32_swap_b32 v{LS}, v3')
    a(f'v_add_f32 v{L[1]}, v{LS}, v3')
    for r in range(16): a(f'v_mov_b32 v{O[1]+r}, v{OT+r}')
    a('s_cmp_lg_u32 s21, 0')
    a(f's_cbranch_scc1 {n}_fin')
    a('s_mov_b32 s21, 1')
    a(f'v_mov_b32 v{L[0]}, v{L[1]}')
    for r in range(16): a(f'v_mov_b32 v{O[0]+r}, v{OT+r}')
    for r in range(8): a(f'v_mov_b32 v{Q[0]+r}, v{Q[1]+r}')
    a(f's_branch {n}_sq')

C_PREP = Cfg('prep', 'res', -1, 1024, 0, 12, 6, 0, L_XA, spoff=L_SPA)
def prep_loader(a):
    a(f's_mov_b32 s54, {WS_TAG}')
    a('v_mov_b32 v9, 0')
    a(f'buffer_load_dword v70, v9, s[16:19], s54 offen{SC}')
    a('s_cmp_eq_u32 s3, 3')
    a('s_cbranch_scc1 prep_w3')
    a('s_mov_b32 s35, 0x20000')
    a('s_lshl_b32 s46, s3, 4')
    a('s_add_u32 s46, s46, s27')
    a('s_lshl_b32 s45, s3, 13')
    a('v_lshlrev_b32 v4, 4, v0')
    pack.decode(a, 32, 'qkv', 's46', '0', 's26', ('s86', 's87'), 2)
    pack.issue(a, 32, 0, 1, 's45', 2)
    pack.finish(a, 32, 0, 4, 8, 's45', 's[16:19]', 'prep', 2, st=SC, wait=lambda u: a('s_waitcnt vmcnt(4)'))
    a('s_branch prep_ld')
    a('prep_w3:')
    a('s_cmp_ge_u32 s2, 8')
    a('s_cbranch_scc1 prep_ld')
    code_touch(a, 80, 12, 13, 's55')
    a('v_lshlrev_b32 v12, 18, v0')
    for i in range(8):
        a(f's_mov_b32 s55, {i * (16 << 20) + 262144 - 128}')
        a(f'buffer_load_dword v13, v12, s[16:19], s55 offen{SC}')
    a('prep_ld:')
    a('s_waitcnt vmcnt(0)')
    a('v_readfirstlane_b32 s52, v70')
    a('s_nop 3')
    a('s_add_u32 s52, s52, 1')
    a('s_not_b32 s53, s52')

def prep_consumer(a):
    FR = 16
    a('v_lshlrev_b32 v8, 4, v0')
    a('v_and_b32 v1, 15, v0')
    a('v_lshrrev_b32 v2, 4, v0')
    a('s_mov_b32 s20, s84')
    a('s_mov_b32 s21, s85')
    a(f's_mov_b32 s22, {2048*2048}')
    a('s_mov_b32 s23, 0x20000')
    a('v_lshlrev_b32 v3, 3, v2')
    a('v_lshl_add_u32 v3, v1, 11, v3')
    a('s_lshl_b32 s36, s26, 18')
    a('s_lshl_b32 s37, s32, 17')
    a('s_add_u32 s36, s36, s37')
    a('s_lshl_b32 s37, s27, 7')
    a('s_add_u32 s36, s36, s37')
    a('s_lshl_b32 s37, s33, 6')
    a('s_add_u32 s36, s36, s37')
    for m in range(4):
        for e in range(2):
            a(f'buffer_load_dwordx2 v[{FR+4*m+2*e}:{FR+4*m+2*e+1}], v3, s[20:23], s36 offen offset:{e*32}')
        if m < 3: a('s_add_u32 s36, s36, 32768')
    a('s_lshl_b32 s36, s26, 5')
    a('s_lshl_b32 s37, s27, 1')
    a('s_add_u32 s36, s36, s37')
    a('s_add_u32 s36, s36, s33')
    a('s_lshl_b32 s36, s36, 13')
    a('s_lshl_b32 s37, s32, 12')
    a('s_add_u32 s36, s36, s37')
    a('s_waitcnt vmcnt(0)')
    res_epilogue(a, C_PREP, None, FR)

def main_kernel(a):
    label = 'main_kernel'
    a(f'.p2align 8\n.globl {label}\n.type {label},@function\n{label}:')
    a(f's_load_dwordx2 s[4:5], s[0:1], {KA["ws"]}')
    a(f's_load_dwordx2 s[8:9], s[0:1], {KA["out"]}')
    a(f's_load_dwordx4 s[84:87], s[0:1], {KA["x"]}')
    a(f's_load_dwordx2 s[56:57], s[0:1], {KA["wo"]}')
    a(f's_load_dwordx4 s[60:63], s[0:1], {KA["w1"]}')
    a('s_cmp_ge_u32 s2, 256')
    a('s_cbranch_scc1 main_exit')
    if dsl.PROF:
        for i in range(64, 80): a(f's_mov_b32 s{i}, 0')
        stamp(a, 7)
    a('v_lshrrev_b32 v1, 6, v0')
    a('v_and_b32 v0, 63, v0')
    a('v_readfirstlane_b32 s3, v1')
    a('s_and_b32 s24, s2, 7')
    a('s_lshr_b32 s25, s2, 3')
    XN = 16 // NBK
    a(f's_lshr_b32 s26, s24, {log2(XN)}')
    a(f's_and_b32 s27, s24, {XN-1}')
    a(f's_lshl_b32 s26, s26, {log2(MBK)}')
    a(f's_lshl_b32 s27, s27, {log2(NBK)}')
    a(f's_and_b32 s28, s25, {MBK-1}')
    a(f's_lshr_b32 s29, s25, {log2(MBK)}')
    a('s_add_u32 s26, s26, s28')
    a('s_add_u32 s27, s27, s29')
    a(f's_mov_b32 s18, {WS_USED}')
    a('s_mov_b32 s19, 0x20000')
    a('s_mov_b32 s10, 0')
    a(f's_mov_b32 s11, {WS_FLG}')
    a('s_waitcnt lgkmcnt(0)')
    a('s_mov_b32 s16, s4')
    a('s_mov_b32 s17, s5')
    a('s_cmp_ge_u32 s3, 4')
    a('s_cbranch_scc1 main_cons')
    a('s_mov_b32 s58, 0')
    code_srd(a, 80, 'main')
    a(f'v_mov_b32 v11, {RDY}')
    a('v_mov_b32 v10, 0')
    a('ds_write_b32 v11, v10')
    prep_loader(a)
    a('main_lay_l:')
    gemm_loader(a, C_QKV); attn_loader(a); gemm_loader(a, C_WO); gemm_loader(a, C_W1); (gemm_loader(a, C_W2) if 'nosplit' in OPT else w2_loader(a))
    a('s_cmp_lg_u32 s10, 0')
    a('s_cbranch_scc1 main_exit')
    a(f's_mov_b32 s10, {LSTR}')
    a(f's_mov_b32 s11, {WS_FLG + 5*PSTR}')
    a('s_branch main_lay_l')
    a('main_exit:')
    a('s_endpgm')
    a('.p2align 6\nmain_cons:')
    a('s_setprio 2')
    a('s_sub_u32 s3, s3, 4')
    a('s_lshr_b32 s32, s3, 1')
    a('s_and_b32 s33, s3, 1')
    dbgt_init(a, True)
    dbgt(a, 0)
    prep_consumer(a)
    a('main_lay_c:')
    dbgt(a, 2, True); gemm_consumer(a, C_QKV); dbgt(a, 3, True); attn_consumer(a); dbgt(a, 4, True); gemm_consumer(a, C_WO); dbgt(a, 5, True); gemm_consumer(a, C_W1); dbgt(a, 6, True)
    (gemm_consumer(a, C_W2) if 'nosplit' in OPT else w2_consumer(a))
    a(f's_mov_b32 s10, {LSTR}')
    a(f's_mov_b32 s11, {WS_FLG + 5*PSTR}')
    a('s_branch main_lay_c')
    C_W2.final()
    attn_slow(a)
    a('main_end:')

def build(path):
    a = Asm()
    a('.amdgcn_target "amdgcn-amd-amdhsa--gfx950"\n.text')
    main_kernel(a)
    a.finalize()
    txt = a.text() + kd('main_kernel', 224, 102 if dsl.PROF or 'dbgt' in OPT else 88)
    hdr = open('interleave_layers__softmax_full_mha__dense_activation_relu__prompt.s.ref').read().split('; Override launch')[0]
    hdr += '; Generated by my own generator scripts (gen/mega.py).\n'
    hdr += '; @launch kernel=main_kernel grid=(256,1,1) block=(512,1,1) lds=163840\n'
    open(path, 'w').write(hdr + txt)

if __name__ == '__main__':
    if 'prof' in sys.argv[2:]: dsl.PROF = True
    if 'dbgq' in sys.argv[2:]: DBGQ = True
    OPT = set(sys.argv[2:])
    if 'sleep0' in OPT: SLEEP = 0
    build(sys.argv[1])
```
